```python
import torch

def _softmax(x, axis=-1):
    return torch.softmax(x, dim=axis)
def _gelu(x):
    return torch.nn.functional.gelu(x, approximate="tanh")
def _silu(x):
    return torch.nn.functional.silu(x)
def _sigmoid(x):
    return torch.sigmoid(x)
def _layernorm(x, axis=-1, eps=1e-5):
    m = x.mean(dim=axis, keepdim=True)
    v = x.var(dim=axis, keepdim=True, unbiased=False)
    return (x - m) / torch.sqrt(v + eps)
def _scatter_add(tgt, idx, src, axis=0):
    return tgt.clone().index_add_(axis, idx, src)
def _segment_sum(src, seg, n):
    out = torch.zeros((n,) + src.shape[1:], dtype=src.dtype)
    return out.index_add_(0, seg, src)
def _pad(x, pw):
    flat = tuple(v for pair in reversed(pw) for v in pair)
    return torch.nn.functional.pad(x, flat)

kernel_name = 'concat_heads__sliding_block__sliding_block__prompt'

def setup_inputs():

    _w = (lambda a: (lambda t: t.to(torch.bfloat16) if t.is_floating_point() else t)(torch.as_tensor(a)))
    def _A_setup():
        B, S, D = 1, 2048, 1024
        return {
            "x": _w((lambda *s: torch.randn(*s, dtype=torch.bfloat16) * 0.2)(B, S, D)),
            "wqkv": _w((lambda *s: torch.randn(*s, dtype=torch.bfloat16) * 0.2)(D, 3 * D)),
            "wo": _w((lambda *s: torch.randn(*s, dtype=torch.bfloat16) * 0.05)(D, D)),
        }
    _A_in = _A_setup()

    def _B_setup():
        B, S, D = 1, 2048, 1024
        return {
            "x": _w((lambda *s: torch.randn(*s, dtype=torch.bfloat16) * 0.2)(B, S, D)),
            "wqkv": _w((lambda *s: torch.randn(*s, dtype=torch.bfloat16) * 0.2)(D, 3 * D)),
            "wo": _w((lambda *s: torch.randn(*s, dtype=torch.bfloat16) * 0.05)(D, D)),
        }
    _B_in = _B_setup()

    return {
        "A_x": _A_in["x"],
        "A_wqkv": _A_in["wqkv"],
        "A_wo": _A_in["wo"],
        "B_x": _B_in["x"],
        "B_wqkv": _B_in["wqkv"],
        "B_wo": _B_in["wo"],
    }

def reference(A_x, A_wqkv, A_wo, B_x, B_wqkv, B_wo):
    def _A_ref(x, wqkv, wo):
        B, S, D = x.shape
        H = 32; Dh = D // H; W = 256
        qkv = (lambda x, *d: x.permute(*d))((x @ wqkv).reshape(B, S, 3, H, Dh), 2, 0, 3, 1, 4)
        q, k, v = qkv[0], qkv[1], qkv[2]
        scores = torch.einsum("bhqd,bhkd->bhqk", q, k) * (Dh ** -0.5)
        idx = torch.arange(S)
        mask = (idx[:, None] - idx[None, :] >= 0) & (idx[:, None] - idx[None, :] < W)
        scores = torch.where(mask[None, None], scores, -1e9)
        p = _softmax(scores, axis=-1)
        o = torch.einsum("bhqk,bhkd->bhqd", p, v)
        return (lambda x, *d: x.permute(*d))(o, 0, 2, 1, 3).reshape(B, S, D) @ wo

    def _B_ref(x, wqkv, wo):
        B, S, D = x.shape
        H = 32; Dh = D // H; W = 256
        qkv = (lambda x, *d: x.permute(*d))((x @ wqkv).reshape(B, S, 3, H, Dh), 2, 0, 3, 1, 4)
        q, k, v = qkv[0], qkv[1], qkv[2]
        scores = torch.einsum("bhqd,bhkd->bhqk", q, k) * (Dh ** -0.5)
        idx = torch.arange(S)
        mask = (idx[:, None] - idx[None, :] >= 0) & (idx[:, None] - idx[None, :] < W)
        scores = torch.where(mask[None, None], scores, -1e9)
        p = _softmax(scores, axis=-1)
        o = torch.einsum("bhqk,bhkd->bhqd", p, v)
        return (lambda x, *d: x.permute(*d))(o, 0, 2, 1, 3).reshape(B, S, D) @ wo

    a = _A_ref(A_x, A_wqkv, A_wo)
    b = _B_ref(B_x, B_wqkv, B_wo)
    return torch.concatenate([a, b], axis=-1)
```

```python
import sys, struct

class Asm:
    def __init__(self):
        self.l = []
        self.q = []
    def __call__(self, s):
        for x in s.strip("\n").split("\n"):
            x = x.strip()
            if not x: continue
            self.l.append(x if x.endswith(":") else "    " + x)
    def text(self):
        return "\n".join(self.l) + "\n"
    def lds(self, s, tag):
        self(s); self.q.append(tag)
    def wait_lds(self, *tags):
        idx = [i for i, t in enumerate(self.q) if t in tags]
        if not idx: return
        last = max(idx)
        n = len(self.q) - 1 - last
        assert n <= 15, n
        self(f"s_waitcnt lgkmcnt({n})")
        self.q = self.q[last+1:]
    def wait_lds_all(self):
        self("s_waitcnt lgkmcnt(0)"); self.q = []

def vr(a, n): return f"v[{a}:{a+n-1}]"
def sr(a, n): return f"s[{a}:{a+n-1}]"
def f32bits(x): return struct.unpack("<I", struct.pack("<f", x))[0]

WS_KV = 0
WS_O = 16 << 20
WS_FLAG = 24 << 20
WS_FKV = WS_FLAG + 4096
WS_FO = WS_FLAG + 65536
WS_STAMP = 25 << 20
WS_BYTES = 26 << 20
TAGX = 0x5bd1e995

A_SLOT = 32768; B_BASE = 3 * A_SLOT; B_SLOT = 12288
LDS_BYTES = 160 * 1024
R_OWN = 0; R_PREV = 65536; R_Q = 131072
WO_SLOT = [0, 16384, 32768, 49152, 131072, 147456, 65536, 81920, 98304, 114688]

S_X = 36; S_W = 40; S_WS = 44; S_WO = 48; S_OUT = 52; S_DBG = 56
S_P = 60; S_C = 61; S_HP = 62; S_WID = 63
S_T0 = 64; S_T1 = 65; S_T2 = 66; S_T3 = 67
S_ASL = 68; S_BSL = 69; S_KA = 70; S_KB = 71; S_CNT = 72
S_TH = 73; S_HH = 74; S_DA = 75; S_DB = 76
S_NON = 77
S_KVB = 78
S_OC = 79; S_OHF = 80; S_OJ = 81
S_LA = 82; S_LB = 83
S_M0 = 84; S_M1 = 86
S_QB = 88
S_ST = 90

QSCALE = 0.17677669529663687 * 1.4426950408889634

def gen(stamps=False, name="concat_heads__sliding_block__sliding_block__prompt_kernel", opts=None):
    opts = opts or {}
    a = Asm()
    def stamp(i):
        if stamps:
            a(f"s_memrealtime s[{S_ST+2*i}:{S_ST+2*i+1}]")
    a(f"""
    s_cmp_ge_u32 s2, 256
    s_cbranch_scc1 L_end
    s_load_dwordx16 s[16:31], s[0:1], 0
    s_load_dwordx2 s[32:33], s[0:1], 64
    """)
    stamp(0)
    a(f"""
    v_lshrrev_b32 v1, 6, v0
    v_and_b32 v0, 63, v0
    s_and_b32 s{S_T0}, s2, 7
    v_readfirstlane_b32 s{S_WID}, v1
    s_lshr_b32 s{S_T1}, s2, 3
    s_lshr_b32 s{S_P}, s{S_T0}, 2
    s_and_b32 s{S_T2}, s{S_T0}, 3              ; hq
    s_lshr_b32 s{S_C}, s{S_T1}, 2              ; chunk
    s_and_b32 s{S_T3}, s{S_T1}, 3
    s_lshl_b32 s{S_HP}, s{S_T2}, 2
    s_add_u32 s{S_HP}, s{S_HP}, s{S_T3}
    s_lshr_b32 s{S_OC}, s{S_T1}, 4
    s_lshl_b32 s{S_T3}, s{S_T2}, 1
    s_add_u32 s{S_OC}, s{S_OC}, s{S_T3}
    s_bfe_u32 s{S_OHF}, s{S_T1}, 0x10003
    s_and_b32 s{S_OJ}, s{S_T1}, 7
    s_and_b32 s{S_HH}, s{S_WID}, 1
    s_waitcnt lgkmcnt(0)
    s_cmp_eq_u32 s{S_P}, 0
    s_cselect_b32 s{S_X}, s16, s22
    s_cselect_b32 s{S_X+1}, s17, s23
    s_cselect_b32 s{S_W}, s18, s24
    s_cselect_b32 s{S_W+1}, s19, s25
    s_cselect_b32 s{S_WO}, s20, s26
    s_cselect_b32 s{S_WO+1}, s21, s27
    s_lshl_b32 s{S_T0}, s{S_C}, 19
    s_add_u32 s{S_X}, s{S_X}, s{S_T0}
    s_addc_u32 s{S_X+1}, s{S_X+1}, 0
    s_mov_b32 s{S_X+2}, 0x80000
    s_mov_b32 s{S_X+3}, 0x20000
    s_mov_b32 s{S_W+2}, 0x600000
    s_mov_b32 s{S_W+3}, 0x20000
    s_cmp_ge_u32 s{S_WID}, 4
    s_cbranch_scc1 L_loader
    """)
    def common_setup():
        a(f"""
        s_add_u32 s{S_T0}, s32, {WS_FLAG}
        s_addc_u32 s{S_T1}, s33, 0
        s_load_dword s{S_NON}, s[{S_T0}:{S_T1}], 0
        s_mov_b32 s{S_WS}, s32
        s_mov_b32 s{S_WS+1}, s33
        s_mov_b32 s{S_WS+2}, {WS_BYTES}
        s_mov_b32 s{S_WS+3}, 0x20000
        s_mov_b32 s{S_WO+2}, 0x200000
        s_mov_b32 s{S_WO+3}, 0x20000
        s_mov_b32 s{S_OUT}, s28
        s_mov_b32 s{S_OUT+1}, s29
        s_mov_b32 s{S_OUT+2}, 0x800000
        s_mov_b32 s{S_OUT+3}, 0x20000
        s_mov_b32 s{S_DBG}, s30
        s_mov_b32 s{S_DBG+1}, s31
        s_mov_b32 s{S_DBG+2}, 256
        s_mov_b32 s{S_DBG+3}, 0x20000
        s_lshl_b32 s{S_T2}, s{S_P}, 5
        s_lshl_b32 s{S_T3}, s{S_HP}, 1
        s_add_u32 s{S_T2}, s{S_T2}, s{S_T3}
        s_add_u32 s{S_T2}, s{S_T2}, s{S_HH}        ; p*32+head
        s_lshl_b32 s{S_T2}, s{S_T2}, 6
        s_lshl_b32 s{S_T3}, s{S_C}, 3
        s_add_u32 s{S_T2}, s{S_T2}, s{S_T3}
        s_lshl_b32 s{S_KVB}, s{S_T2}, 12
        s_waitcnt lgkmcnt(0)
        s_add_u32 s{S_NON}, s{S_NON}, 1
        """)
    VA = 1; VB = 3; VT = 5
    XF = 8; WF = 40; ACC = 64
    def acc(rb, nb): return ACC + (rb * 6 + nb) * 4
    def xf(rb): return XF + 4 * rb
    def wf(nb): return WF + 4 * nb
    a(f"""
    s_lshr_b32 s{S_TH}, s{S_WID}, 1
    v_and_b32 v{VT}, 15, v0              ; row
    v_lshrrev_b32 v{VT+1}, 4, v0         ; g
    v_bfe_u32 v{VT+2}, v0, 1, 3          ; f(row)
    v_xor_b32 v{VT+2}, v{VT+2}, v{VT+1}
    v_lshlrev_b32 v{VT+2}, 4, v{VT+2}
    v_lshl_add_u32 v{VT+2}, v{VT}, 7, v{VT+2}
    s_lshl_b32 s{S_T0}, s{S_TH}, 14
    v_add_u32 v{VA}, s{S_T0}, v{VT+2}
    v_xor_b32 v{VA+1}, 64, v{VA}
    v_bfe_u32 v{VT}, v0, 2, 2            ; r'
    v_lshlrev_b32 v{VB}, 7, v{VT}
    v_and_b32 v{VT}, 3, v0
    v_lshl_add_u32 v{VB}, v{VT}, 3, v{VB}
    v_mul_u32_u24 v{VT}, 3072, v{VT+1}
    v_add_u32 v{VB}, v{VB}, v{VT}
    v_bfe_u32 v{VT}, v0, 3, 2
    s_lshl_b32 s{S_T0}, s{S_HH}, 1
    v_xor_b32 v{VT}, s{S_T0}, v{VT}
    v_lshl_add_u32 v{VB}, v{VT}, 5, v{VB}
    v_add_u32 v{VB}, {B_BASE}, v{VB}
    v_xor_b32 v{VB+1}, 32, v{VB}
    """)
    common_setup()
    for r in range(ACC, 256):
        a(f"v_mov_b32 v{r}, 0")
    a(f"""
    s_mov_b32 s{S_ASL}, 0
    s_mov_b32 s{S_BSL}, 0
    s_mov_b32 s{S_CNT}, 16
    s_barrier
    """)
    stamp(1)
    if stamps: a("s_waitcnt lgkmcnt(0)")
    def rdX(rb, kk):
        a.lds(f"ds_read_b128 {vr(xf(rb),4)}, v{VA+kk} offset:{2048*rb}", f"x{rb}")
    def rdW(nb, half):
        seg, nbi = divmod(nb, 2)
        a.lds(f"ds_read_b64_tr_b16 {vr(wf(nb)+2*half,2)}, v{VB+nbi} offset:{seg*1024+half*512}", f"w{nb}")
    def mf(rb, nb):
        d = vr(acc(rb, nb), 4)
        if nb < 4:
            a(f"v_mfma_f32_16x16x32_bf16 {d}, {vr(wf(nb),4)}, {vr(xf(rb),4)}, {d}")
        else:
            a(f"v_mfma_f32_16x16x32_bf16 {d}, {vr(xf(rb),4)}, {vr(wf(nb),4)}, {d}")
    for nb in range(3):
        rdW(nb, 0); rdW(nb, 1)
    for rb in range(8): rdX(rb, 0)
    q0 = list(a.q)
    a("L_cloop:")
    for kk in range(2):
        pend = [(nb, h) for nb in (3, 4, 5) for h in (0, 1)]
        for rb in range(8):
            a.wait_lds("w0", "w1", "w2", f"x{rb}") if rb == 0 else a.wait_lds(f"x{rb}")
            for nb in range(3):
                mf(rb, nb)
                if pend and rb < 3: rdW(*pend.pop(0))
            if rb == 3:
                a(f"""
                s_add_u32 s{S_T0}, s{S_BSL}, {B_SLOT}
                s_cmp_eq_u32 s{S_T0}, {5*B_SLOT}
                s_cselect_b32 s{S_T0}, 0, s{S_T0}
                s_sub_u32 s{S_DB}, s{S_T0}, s{S_BSL}
                s_mov_b32 s{S_BSL}, s{S_T0}
                """)
            if rb == 4:
                a(f"v_add_u32 v{VB}, s{S_DB}, v{VB}")
                a(f"v_add_u32 v{VB+1}, s{S_DB}, v{VB+1}")
            if rb == 5 and kk == 1:
                a(f"""
                s_add_u32 s{S_T0}, s{S_ASL}, {A_SLOT}
                s_cmp_eq_u32 s{S_T0}, {3*A_SLOT}
                s_cselect_b32 s{S_T0}, 0, s{S_T0}
                s_sub_u32 s{S_DA}, s{S_T0}, s{S_ASL}
                s_mov_b32 s{S_ASL}, s{S_T0}
                """)
            if rb == 6 and kk == 1:
                a(f"v_add_u32 v{VA}, s{S_DA}, v{VA}")
                a(f"v_add_u32 v{VA+1}, s{S_DA}, v{VA+1}")
        a.wait_lds_all()
        a("s_barrier")
        pend = [(nb, h) for nb in (0, 1, 2) for h in (0, 1)]
        for rb in range(8):
            for nb in range(3, 6):
                mf(rb, nb)
                if rb == 0:
                    rdW(*pend.pop(0)); rdW(*pend.pop(0))
            rdX(rb, kk ^ 1)
            if rb == 6 and kk == 1:
                a(f"s_sub_u32 s{S_CNT}, s{S_CNT}, 1")
                a(f"s_cmp_lg_u32 s{S_CNT}, 0")
        assert a.q == q0, (a.q, q0)
    a("s_cbranch_scc1 L_cloop")
    a.wait_lds_all()
    stamp(2)
    VL = 1
    VG = 2
    VD = 3
    a(f"""
    v_lshlrev_b32 v{VL}, 4, v0
    s_lshl_b32 s{S_T0}, s{S_TH}, 14            ; 4 tb * 4096
    s_add_u32 s{S_T1}, s{S_KVB}, s{S_T0}
    v_add_u32 v{VG}, s{S_T1}, v{VL}
    s_lshl_b32 s{S_T1}, s{S_HH}, 15
    s_add_u32 s{S_T1}, s{S_T1}, s{S_T0}
    v_add_u32 v{VD}, s{S_T1}, v{VL}
    s_mov_b32 s{S_T2}, {f32bits(QSCALE)}
    s_nop 7
    """)
    def pack(ra, rb_, scale=False):
        if scale:
            for i in range(4):
                a(f"v_mul_f32 v{ra+i}, s{S_T2}, v{ra+i}")
                a(f"v_mul_f32 v{rb_+i}, s{S_T2}, v{rb_+i}")
        a(f"v_cvt_pk_bf16_f32 v{ra}, v{ra}, v{ra+1}")
        a(f"v_cvt_pk_bf16_f32 v{ra+1}, v{ra+2}, v{ra+3}")
        a(f"v_cvt_pk_bf16_f32 v{ra+2}, v{rb_}, v{rb_+1}")
        a(f"v_cvt_pk_bf16_f32 v{ra+3}, v{rb_+2}, v{rb_+3}")
    def swap(ra):
        a(f"v_permlane16_swap_b32 v{ra}, v{ra+2}")
        a(f"v_permlane16_swap_b32 v{ra+1}, v{ra+3}")
    frs = []
    for tb in range(4):
        frs.append((acc(2*tb, 2), acc(2*tb+1, 2), tb, 0))
        frs.append((acc(2*tb, 3), acc(2*tb+1, 3), tb, 1))
        frs.append((acc(2*tb, 4), acc(2*tb, 5), tb, 2))
        frs.append((acc(2*tb+1, 4), acc(2*tb+1, 5), tb, 3))
    prev = None
    def emit_store(fr):
        ra, _, tb, sl = fr
        a(f"s_movk_i32 s{S_T3}, {tb*4096}")
        a(f"buffer_store_dwordx4 {vr(ra,4)}, v{VG}, {sr(S_WS,4)}, s{S_T3} offen offset:{sl*1024} sc1")
        a(f"ds_write_b128 v{VD}, {vr(ra,4)} offset:{tb*4096+sl*1024}")
    for i, fr in enumerate(frs):
        pack(fr[0], fr[1])
        if prev is not None:
            swap(prev[0])
        if i >= 2:
            emit_store(frs[i-2])
        prev = fr
    qfr = [(acc(2*tb, f), acc(2*tb+1, f), tb, f) for tb in range(4) for f in range(2)]
    a(f"""
    s_lshl_b32 s{S_T1}, s{S_HH}, 14
    s_lshl_b32 s{S_T0}, s{S_TH}, 13
    s_add_u32 s{S_T1}, s{S_T1}, s{S_T0}
    s_add_u32 s{S_T1}, s{S_T1}, {R_Q}
    """)
    pack(qfr[0][0], qfr[0][1], True)
    swap(frs[15][0])
    emit_store(frs[14])
    pack(qfr[1][0], qfr[1][1], True)
    emit_store(frs[15])
    a(f"v_add_u32 v{VD}, s{S_T1}, v{VL}")
    swap(qfr[0][0])
    for i in range(1, 8):
        if i + 1 < 8: pack(qfr[i+1][0], qfr[i+1][1], True)
        else: a("s_nop 1")
        swap(qfr[i][0])
        r, _, tb, f = qfr[i-1]
        a(f"ds_write_b128 v{VD}, {vr(r,4)} offset:{tb*2048+f*1024}")
    r, _, tb, f = qfr[7]
    a("s_nop 0")
    a(f"ds_write_b128 v{VD}, {vr(r,4)} offset:{tb*2048+f*1024}")
    a("s_branch L_attn")
    a("L_loader:")
    VOA = 2; VOB = 6
    a(f"""
    s_sub_u32 s{S_T3}, s{S_WID}, 4           ; w
    v_lshrrev_b32 v10, 3, v0                 ; r
    v_and_b32 v11, 7, v0                     ; c
    v_lshrrev_b32 v12, 1, v10
    v_xor_b32 v13, v11, v12
    v_xor_b32 v14, 4, v13
    s_lshl_b32 s{S_T0}, s{S_T3}, 16
    v_lshlrev_b32 v15, 11, v10
    v_add_u32 v15, s{S_T0}, v15
    v_lshl_add_u32 v{VOA}, v13, 4, v15
    v_lshl_add_u32 v{VOA+1}, v14, 4, v15
    v_add_u32 v{VOA+1}, {16384-1024}, v{VOA+1}
    v_add_u32 v{VOA+2}, {2*(16384-1024)}, v{VOA}
    v_add_u32 v{VOA+3}, {2*(16384-1024)}, v{VOA+1}
    s_lshl_b32 s{S_LA}, s{S_T3}, 12
    """)
    def ldA(m0expr, soff):
        a(m0expr); a("s_nop 0")
        for i in range(4):
            a(f"buffer_load_dwordx4 v{VOA+i}, {sr(S_X,4)}, {soff} offen offset:{1024*i} lds")
    def ldB(m0expr, soff):
        a(m0expr); a("s_nop 0")
        for i in range(3):
            a(f"buffer_load_dwordx4 v{VOB+i}, {sr(S_W,4)}, {soff} offen offset:{1024*i} lds")
    def pA(blk, hf):
        a(f"s_mov_b32 s{S_KA}, {hf*128*2048 + blk*128}")
        ldA(f"s_add_u32 m0, s{S_LA}, {blk*A_SLOT + hf*16384}", f"s{S_KA}")
    def pB(u):
        a(f"s_mov_b32 s{S_KB}, {u*32*6144}")
        ldB(f"s_add_u32 m0, s{S_LB}, {u*B_SLOT}", f"s{S_KB}")
    pA(0, 0)
    a(f"""
    v_and_b32 v12, 1, v12                    ; (r>>1)&1
    s_and_b32 s{S_T0}, s{S_T3}, 1
    s_lshl_b32 s{S_T0}, s{S_T0}, 1
    v_or_b32 v12, s{S_T0}, v12               ; swz
    v_lshlrev_b32 v12, 1, v12
    v_xor_b32 v13, v11, v12                  ; c ^ 2*swz
    s_mul_i32 s{S_T0}, s{S_T3}, {8*6144}
    s_lshl_b32 s{S_T1}, s{S_HP}, 7
    s_add_u32 s{S_T0}, s{S_T0}, s{S_T1}
    v_mul_u32_u24 v15, 6144, v10
    v_add_u32 v15, s{S_T0}, v15
    v_lshl_add_u32 v{VOB}, v13, 4, v15
    v_add_u32 v{VOB+1}, {2048-1024}, v{VOB}
    v_add_u32 v{VOB+2}, {2*(2048-1024)}, v{VOB}
    s_mul_i32 s{S_LB}, s{S_T3}, 3072
    s_add_u32 s{S_LB}, s{S_LB}, {B_BASE}
    """)
    pA(0, 1); pB(0); pB(1); pA(1, 0); pA(1, 1); pB(2); pB(3)
    common_setup()
    a(f"""
    s_mov_b32 s{S_ASL}, {2*A_SLOT}
    s_mov_b32 s{S_BSL}, {4*B_SLOT}
    s_mov_b32 s{S_KA}, {2*128}
    s_mov_b32 s{S_KB}, {4*32*6144}
    s_mov_b32 s{S_CNT}, 14
    s_waitcnt vmcnt(17)
    s_barrier
    L_lloop:
    s_add_u32 s{S_T0}, s{S_LA}, s{S_ASL}
    """)
    ldA(f"s_mov_b32 m0, s{S_T0}", f"s{S_KA}")
    ldB(f"s_add_u32 m0, s{S_LB}, s{S_BSL}", f"s{S_KB}")
    a(f"""
    s_add_u32 s{S_KB}, s{S_KB}, {32*6144}
    s_add_u32 s{S_BSL}, s{S_BSL}, {B_SLOT}
    s_cmp_eq_u32 s{S_BSL}, {5*B_SLOT}
    s_cselect_b32 s{S_BSL}, 0, s{S_BSL}
    s_add_u32 s{S_T1}, s{S_KA}, {128*2048}
    s_waitcnt vmcnt(21)
    s_barrier
    """)
    ldA(f"s_add_u32 m0, s{S_T0}, 16384", f"s{S_T1}")
    ldB(f"s_add_u32 m0, s{S_LB}, s{S_BSL}", f"s{S_KB}")
    a(f"""
    s_add_u32 s{S_KB}, s{S_KB}, {32*6144}
    s_add_u32 s{S_BSL}, s{S_BSL}, {B_SLOT}
    s_cmp_eq_u32 s{S_BSL}, {5*B_SLOT}
    s_cselect_b32 s{S_BSL}, 0, s{S_BSL}
    s_add_u32 s{S_KA}, s{S_KA}, 128
    s_add_u32 s{S_ASL}, s{S_ASL}, {A_SLOT}
    s_cmp_eq_u32 s{S_ASL}, {3*A_SLOT}
    s_cselect_b32 s{S_ASL}, 0, s{S_ASL}
    s_sub_u32 s{S_CNT}, s{S_CNT}, 1
    s_cmp_lg_u32 s{S_CNT}, 0
    s_waitcnt vmcnt(17)
    s_barrier
    s_cbranch_scc1 L_lloop
    s_waitcnt vmcnt(14)
    s_barrier
    s_waitcnt vmcnt(3)
    s_barrier
    s_waitcnt vmcnt(0)
    s_barrier
    s_barrier
    """)
    VL = 1; VK = 2; VV = 3; VT = 4
    QA = 8; QB = 16; OA = 24; OB = 40; LA = 56; LB = 60
    BD = 64; BF = 80; ON = 96; SS = [100, 116]; PP = [132, 140]; KF = 148; VF = 156
    VW = 164
    a("L_attn:")
    a(f"""
    v_lshlrev_b32 v{VL}, 4, v0
    v_and_b32 v{VT}, 0x33, v0
    v_bfe_u32 v{VT+1}, v0, 2, 1
    v_lshl_or_b32 v{VT}, v{VT+1}, 3, v{VT}
    v_bfe_u32 v{VT+1}, v0, 3, 1
    v_lshl_or_b32 v{VT}, v{VT+1}, 2, v{VT}
    s_lshl_b32 s{S_T0}, s{S_HH}, 15
    v_lshlrev_b32 v{VK}, 4, v{VT}
    v_add_u32 v{VK}, s{S_T0}, v{VK}
    v_add_u32 v{VV}, s{S_T0}, v{VL}
    v_and_b32 v{VT}, 31, v0
    v_lshrrev_b32 v{VT+1}, 5, v0
    v_lshlrev_b32 v{VT+1}, 3, v{VT+1}
    v_sub_u32 v{VT}, v{VT}, v{VT+1}           ; q - 8h
    s_mov_b32 s{S_T1}, 0xff800000
    """)
    for r in range(16):
        f, u_, e = r >> 3, (r >> 2) & 1, r & 3
        kc = 16*f + 4*u_ + e
        a(f"v_subrev_u32 v{BD+r}, {kc}, v{VT}")
        a(f"v_ashrrev_i32 v{BD+r}, 31, v{BD+r}")
        a(f"v_and_b32 v{BD+r}, s{S_T1}, v{BD+r}")
        a(f"v_xor_b32 v{BF+r}, s{S_T1}, v{BD+r}")
    a(f"""
    v_lshrrev_b32 v{VT}, 2, v0
    v_lshrrev_b32 v{VT+1}, 4, v0
    v_xor_b32 v{VT}, v{VT}, v{VT+1}
    v_and_b32 v{VT}, 1, v{VT}
    v_subrev_u32 v{VT}, 1, v{VT}              ; 0 -> -1 (match), 1 -> 0
    v_and_b32 v{ON}, 0x3f803f80, v{VT}
    v_mov_b32 v{ON+1}, v{ON}
    v_mov_b32 v{ON+2}, v{ON}
    v_mov_b32 v{ON+3}, v{ON}
    v_lshrrev_b32 v{VT}, 3, v0                ; r
    v_and_b32 v{VT+1}, 7, v0                  ; c
    v_bfe_u32 v{VT+2}, v0, 4, 2               ; (r>>1)&3
    v_lshlrev_b32 v{VT+2}, 1, v{VT+2}
    v_xor_b32 v{VT+1}, v{VT+1}, v{VT+2}
    s_lshr_b32 s{S_T0}, s{S_WID}, 2
    s_lshl_b32 s{S_T0}, s{S_T0}, 20           ; 512 rows*2048
    s_and_b32 s{S_T1}, s{S_WID}, 3
    s_lshl_b32 s{S_T1}, s{S_T1}, 14           ; 8 rows * 2048
    s_add_u32 s{S_T0}, s{S_T0}, s{S_T1}
    s_lshl_b32 s{S_T1}, s{S_OJ}, 8
    s_add_u32 s{S_T0}, s{S_T0}, s{S_T1}
    v_lshlrev_b32 v{VT}, 11, v{VT}
    v_add_u32 v{VT}, s{S_T0}, v{VT}
    v_lshl_add_u32 v{VW}, v{VT+1}, 4, v{VT}
    v_add_u32 v{VW+1}, 128, v{VW}
    s_lshl_b32 s{S_LA}, s{S_WID}, 11
    s_lshr_b32 s{S_T0}, s{S_WID}, 1
    s_waitcnt lgkmcnt(0)
    s_barrier
    """)
    stamp(3)
    a(f"""
    s_cmp_eq_u32 s{S_T0}, 1
    s_cbranch_scc1 L_u1
    s_cmp_eq_u32 s{S_T0}, 2
    s_cbranch_scc1 L_u2
    s_cmp_eq_u32 s{S_T0}, 3
    s_cbranch_scc1 L_u3
    """)
    def wo_dma(step):
        VW = 164 if step < 6 else 2
        a(f"s_add_u32 m0, s{S_LA}, {WO_SLOT[step % 10]}")
        a(f"s_mov_b32 s{S_T3}, {step*32*2048}")
        a(f"buffer_load_dwordx4 v{VW}, {sr(S_WO,4)}, s{S_T3} offen lds")
        a(f"s_add_u32 m0, s{S_LA}, {WO_SLOT[step % 10] + 1024}")
        a("s_nop 0")
        a(f"buffer_load_dwordx4 v{VW+1}, {sr(S_WO,4)}, s{S_T3} offen lds")
    def run_tasks(tasks, hooks, first_touch):
        n = len(tasks)
        def rdK(i):
            for f in range(2):
                a.lds(f"ds_read_b128 {vr(KF+4*f,4)}, v{VK} offset:{tasks[i][1]+1024*f}", f"k{f}")
        def rdV(i):
            for f in range(2):
                a.lds(f"ds_read_b128 {vr(VF+4*f,4)}, v{VV} offset:{tasks[i][1]+2048+1024*f}", f"v{f}")
        def qk(i, f):
            u, _, bias = tasks[i]
            q = QA if u == "A" else QB
            s = vr(SS[i % 2], 16)
            c = s if f else (vr(bias, 16) if bias is not None else "0")
            a.wait_lds(f"k{f}")
            a(f"v_mfma_f32_32x32x16_bf16 {s}, {vr(KF+4*f,4)}, {vr(q+4*f,4)}, {c}")
        def pv(i, f):
            u = tasks[i][0]
            o = vr(OA if u == "A" else OB, 16)
            c = o
            if u in first_touch and f == 0:
                c = "0"
            a.wait_lds(f"v{f}")
            a(f"v_mfma_f32_32x32x16_bf16 {o}, {vr(VF+4*f,4)}, {vr(PP[i%2]+4*f,4)}, {c}")
        def sm(i, f):
            u = tasks[i][0]
            l = vr(LA if u == "A" else LB, 4)
            c = l
            if u in first_touch and f == 0:
                c = "0"; first_touch.discard(u)
            a(f"v_mfma_f32_16x16x32_bf16 {l}, {vr(ON,4)}, {vr(PP[i%2]+4*f,4)}, {c}")
        rdK(0)
        qk(0, 0); qk(0, 1)
        if n > 1: rdK(1)
        for i in range(n + 1):
            if i in hooks: hooks[i]()
            s = SS[i % 2]; p = PP[i % 2]
            ex = [f"v_exp_f32 v{s+r}, v{s+r}" for r in range(16)] if i < n else []
            cv = [f"v_cvt_pk_bf16_f32 v{p+j}, v{s+2*j}, v{s+2*j+1}" for j in range(8)] if i < n else []
            def E(k):
                for _ in range(k):
                    if ex: a(ex.pop(0))
            def C(k):
                for _ in range(k):
                    if cv: a(cv.pop(0))
            if i + 1 < n: qk(i+1, 0)
            if i == 0: a("s_nop 7"); a("s_nop 3")
            if i == n: a("s_nop 1")
            E(3)
            if i >= 1: pv(i-1, 0)
            E(3)
            if i + 1 < n:
                qk(i+1, 1)
                if i + 2 < n: rdK(i+2)
            E(3)
            if i >= 1: pv(i-1, 1)
            if i < n: rdV(i)
            E(3); C(2)
            if i >= 1: sm(i-1, 0)
            E(2); C(3)
            if i >= 1: sm(i-1, 1)
            E(2); C(2)
            if i < n: a("s_nop 0")
            C(1)
    for u in range(4):
        if u: a(f"L_u{u}:")
        qa, qb = u, 7 - u
        a(f"s_lshl_b32 s{S_T1}, s{S_HH}, 14")
        a(f"v_add_u32 v{VT}, s{S_T1}, v{VL}")
        a(f"v_add_u32 v{VT}, {R_Q}, v{VT}")
        for f in range(2):
            a.lds(f"ds_read_b128 {vr(QA+4*f,4)}, v{VT} offset:{qa*2048+f*1024}", "q")
            a.lds(f"ds_read_b128 {vr(QB+4*f,4)}, v{VT} offset:{qb*2048+f*1024}", "q")
        a.wait_lds("q")
        t1 = [("B", R_OWN + t*4096, None) for t in range(qb)] + [("B", R_OWN + qb*4096, BD)] + \
             [("A", R_OWN + t*4096, None) for t in range(qa)] + [("A", R_OWN + qa*4096, BD)]
        hooks = {}
        if u < 2:
            def publish():
                a(f"""
                s_lshl_b32 s{S_T0}, s{S_P}, 7
                s_lshl_b32 s{S_T1}, s{S_HP}, 3
                s_add_u32 s{S_T0}, s{S_T0}, s{S_T1}
                s_add_u32 s{S_T0}, s{S_T0}, s{S_C}
                s_lshl_b32 s{S_T0}, s{S_T0}, 7
                s_lshl_b32 s{S_T1}, s{S_WID}, 3
                s_add_u32 s{S_T0}, s{S_T0}, s{S_T1}
                s_add_u32 s{S_T0}, s{S_T0}, {WS_FKV}
                s_xor_b32 s{S_T1}, s{S_NON}, {TAGX}
                v_mov_b32 v{VT}, s{S_NON}
                v_mov_b32 v{VT+1}, s{S_T1}
                v_mov_b32 v{VT+2}, 0
                s_waitcnt vmcnt(0)
                s_mov_b64 exec, 1
                buffer_store_dwordx2 v[{VT}:{VT+1}], v{VT+2}, {sr(S_WS,4)}, s{S_T0} offen sc1
                s_mov_b64 exec, -1
                s_nop 3
                """)
            hooks[opts.get("pub_at", 2)] = publish
        else:
            def poll_issue():
                a(f"""
                s_cmp_eq_u32 s{S_C}, 0
                s_cbranch_scc1 L_np{u}
                s_lshl_b32 s{S_T0}, s{S_P}, 7
                s_lshl_b32 s{S_T1}, s{S_HP}, 3
                s_add_u32 s{S_T0}, s{S_T0}, s{S_T1}
                s_add_u32 s{S_T0}, s{S_T0}, s{S_C}
                s_lshl_b32 s{S_T0}, s{S_T0}, 7
                s_lshl_b32 s{S_T1}, s{S_WID}, 3
                s_add_u32 s{S_T0}, s{S_T0}, s{S_T1}
                s_add_u32 s{S_KA}, s{S_T0}, {WS_FKV - 128 - 32}
                v_mov_b32 v{VT+2}, 0
                buffer_load_dwordx2 v[{VT}:{VT+1}], v{VT+2}, {sr(S_WS,4)}, s{S_KA} offen sc1
                L_np{u}:
                """)
            def poll_check():
                a(f"""
                s_cmp_eq_u32 s{S_C}, 0
                s_cbranch_scc1 L_nq{u}
                s_xor_b32 s{S_T1}, s{S_NON}, {TAGX}
                s_mov_b32 s{S_CNT}, 0x40000
                L_poll{u}:
                s_waitcnt vmcnt(0)
                v_readfirstlane_b32 s{S_T2}, v{VT}
                v_readfirstlane_b32 s{S_T3}, v{VT+1}
                s_cmp_eq_u32 s{S_T2}, s{S_NON}
                s_cselect_b32 s{S_T2}, 1, 0
                s_cmp_eq_u32 s{S_T3}, s{S_T1}
                s_cselect_b32 s{S_T2}, s{S_T2}, 0
                s_cmp_lg_u32 s{S_T2}, 0
                s_cbranch_scc1 L_got{u}
                s_sub_u32 s{S_CNT}, s{S_CNT}, 1
                s_cmp_eq_u32 s{S_CNT}, 0
                s_cbranch_scc1 L_got{u}
                s_sleep 2
                buffer_load_dwordx2 v[{VT}:{VT+1}], v{VT+2}, {sr(S_WS,4)}, s{S_KA} offen sc1
                s_branch L_poll{u}
                L_got{u}:
                s_add_u32 s{S_T0}, s{S_KVB}, {((u-2)*16384 - 32768) & 0xffffffff}
                s_lshl_b32 s{S_T1}, s{S_HH}, 15
                s_add_u32 s{S_T1}, s{S_T1}, {R_PREV + (u-2)*16384}
                """)
                for j in range(4):
                    a(f"s_add_u32 m0, s{S_T1}, {4096*j}")
                    a(f"s_add_u32 s{S_T2}, s{S_T0}, {4096*j}")
                    for k in range(4):
                        a(f"buffer_load_dwordx4 v{VL}, {sr(S_WS,4)}, s{S_T2} offen offset:{1024*k} sc1 lds")
                a(f"L_nq{u}:")
            hooks[opts.get("poll_at", 4)] = poll_issue
            hooks[opts.get("chk_at", 6)] = poll_check
        ft = {"A", "B"}
        run_tasks(t1, hooks, ft)
        assert not a.q
        a("s_waitcnt vmcnt(0)")
        a("s_barrier")
        for st in range(6): wo_dma(st)
        a(f"s_cmp_eq_u32 s{S_C}, 0")
        a(f"s_cbranch_scc1 L_fin")
        a(f"v_add_u32 v{VK}, {R_PREV}, v{VK}")
        a(f"v_add_u32 v{VV}, {R_PREV}, v{VV}")
        t2 = [("A", qa*4096, BF)] + [("A", t*4096, None) for t in range(qa+1, 8)] + \
             [("B", qb*4096, BF)] + [("B", t*4096, None) for t in range(qb+1, 8)]
        run_tasks(t2, {}, ft)
        if u < 3: a("s_branch L_fin")
    a("L_fin:")
    VO = 4
    a(f"""
    s_lshr_b32 s{S_QB}, s{S_WID}, 1            ; u
    s_mov_b32 s{S_T2}, {f32bits(2.0**-60)}
    s_mov_b32 s{S_T3}, {f32bits(2.0**60)}
    v_and_b32 v{VO}, 15, v0
    v_lshrrev_b32 v{VO+1}, 5, v0
    v_lshl_add_u32 v{VO}, v{VO+1}, 4, v{VO}
    v_lshlrev_b32 v{VO}, 4, v{VO}
    v_bfe_u32 v{VO+1}, v0, 4, 1
    v_lshl_add_u32 v{VO}, v{VO+1}, 15, v{VO}
    s_lshl_b32 s{S_T0}, s{S_P}, 22
    s_lshl_b32 s{S_T1}, s{S_C}, 19             ; 8 tb * 2 * 32768
    s_add_u32 s{S_T0}, s{S_T0}, s{S_T1}
    s_lshl_b32 s{S_T1}, s{S_HP}, 11
    s_add_u32 s{S_T0}, s{S_T0}, s{S_T1}
    s_lshl_b32 s{S_T1}, s{S_HH}, 10
    s_add_u32 s{S_T0}, s{S_T0}, s{S_T1}
    s_add_u32 s{S_KB}, s{S_T0}, {WS_O}
    s_nop 7
    """)
    for U, O, L, Q in (("A", OA, LA, QA), ("B", OB, LB, QB)):
        if U == "B":
            a(f"s_sub_u32 s{S_QB}, 7, s{S_QB}")
        a(f"""
        v_cmp_le_f32 s[{S_M0}:{S_M0+1}], s{S_T2}, v{L}
        v_cmp_ge_f32 s[{S_M1}:{S_M1+1}], s{S_T3}, v{L}
        s_nop 1
        s_and_b64 s[{S_M0}:{S_M0+1}], s[{S_M0}:{S_M0+1}], s[{S_M1}:{S_M1+1}]
        s_cmp_eq_u64 s[{S_M0}:{S_M0+1}], -1
        s_cbranch_scc0 L_slow{U}
        L_back{U}:
        v_rcp_f32 v{L+1}, v{L}
        s_lshl_b32 s{S_T0}, s{S_QB}, 16
        s_add_u32 s{S_T0}, s{S_T0}, s{S_KB}
        """)
        for r in range(16):
            a(f"v_mul_f32 v{O+r}, v{O+r}, v{L+1}")
        for j in range(8):
            a(f"v_cvt_pk_bf16_f32 v{O+j}, v{O+2*j}, v{O+2*j+1}")
        a(f"buffer_store_dwordx4 {vr(O,4)}, v{VO}, {sr(S_WS,4)}, s{S_T0} offen sc1")
        a(f"buffer_store_dwordx4 {vr(O+4,4)}, v{VO}, {sr(S_WS,4)}, s{S_T0} offen offset:512 sc1")
    stamp(4)
    VR = 8
    WFR = 16
    AC = 64
    OFR = 128
    def ac(nb, tb): return AC + (nb*2 + tb)*4
    a(f"""
    s_lshr_b32 s{S_TH}, s{S_WID}, 2            ; kh
    s_and_b32 s{S_QB}, s{S_WID}, 3             ; tb4
    v_bfe_u32 v12, v0, 2, 2                    ; r'
    v_bfe_u32 v13, v0, 4, 1                    ; g&1
    v_lshl_add_u32 v12, v13, 2, v12            ; r
    v_lshlrev_b32 v{VR}, 7, v12
    v_bfe_u32 v13, v12, 1, 2                   ; swz
    v_lshl_add_u32 v{VR}, v13, 5, v{VR}
    v_and_b32 v13, 3, v0
    v_lshl_add_u32 v{VR}, v13, 3, v{VR}
    v_lshrrev_b32 v13, 5, v0                   ; g>>1
    v_lshl_add_u32 v{VR}, v13, 12, v{VR}
    s_lshl_b32 s{S_T0}, s{S_TH}, 13
    v_add_u32 v{VR}, s{S_T0}, v{VR}
    v_xor_b32 v{VR+1}, 32, v{VR}
    v_xor_b32 v{VR+2}, 64, v{VR}
    v_xor_b32 v{VR+3}, 0x60, v{VR}
    s_lshl_b32 s{S_T0}, s{S_P}, 7
    s_lshl_b32 s{S_T1}, s{S_OC}, 4
    s_add_u32 s{S_T0}, s{S_T0}, s{S_T1}
    s_lshl_b32 s{S_T1}, s{S_OHF}, 3
    s_add_u32 s{S_T0}, s{S_T0}, s{S_T1}
    s_lshl_b32 s{S_T1}, s{S_QB}, 1
    s_add_u32 s{S_T0}, s{S_T0}, s{S_T1}
    s_lshl_b32 s{S_T0}, s{S_T0}, 15
    s_lshl_b32 s{S_T1}, s{S_TH}, 14
    s_add_u32 s{S_T0}, s{S_T0}, s{S_T1}
    s_add_u32 s{S_KA}, s{S_T0}, {WS_O}
    v_add_u32 v14, 0x8000, v{VL}
    v_mov_b32 v2, v{VW}
    v_mov_b32 v3, v{VW+1}
    ; flags
    s_lshl_b32 s{S_T0}, s{S_P}, 3
    s_add_u32 s{S_T1}, s{S_T0}, s{S_C}
    s_lshl_b32 s{S_T1}, s{S_T1}, 7
    s_lshl_b32 s{S_T2}, s{S_HP}, 3
    s_add_u32 s{S_T1}, s{S_T1}, s{S_T2}
    s_add_u32 s{S_T1}, s{S_T1}, {WS_FO}
    s_add_u32 s{S_T0}, s{S_T0}, s{S_OC}
    s_lshl_b32 s{S_T0}, s{S_T0}, 7
    s_add_u32 s{S_KB}, s{S_T0}, {WS_FO}
    s_xor_b32 s{S_T3}, s{S_NON}, {TAGX}
    v_mov_b32 v4, s{S_NON}
    v_mov_b32 v5, s{S_T3}
    v_and_b32 v6, 15, v0
    v_lshlrev_b32 v6, 3, v6
    v_mov_b32 v7, 0
    s_waitcnt vmcnt(0)
    s_barrier
    s_cmp_lg_u32 s{S_WID}, 0
    s_cbranch_scc1 L_nopoll
    s_mov_b64 exec, 1
    buffer_store_dwordx2 v[4:5], v7, {sr(S_WS,4)}, s{S_T1} offen sc1
    s_mov_b64 exec, -1
    s_mov_b32 s{S_CNT}, 0x40000
    L_opoll:
    buffer_load_dwordx2 v[12:13], v6, {sr(S_WS,4)}, s{S_KB} offen sc1
    s_waitcnt vmcnt(0)
    v_cmp_eq_u32 s[{S_M0}:{S_M0+1}], v12, v4
    v_cmp_eq_u32 s[{S_M1}:{S_M1+1}], v13, v5
    s_nop 1
    s_and_b64 s[{S_M0}:{S_M0+1}], s[{S_M0}:{S_M0+1}], s[{S_M1}:{S_M1+1}]
    s_cmp_eq_u64 s[{S_M0}:{S_M0+1}], -1
    s_cbranch_scc1 L_nopoll
    s_sub_u32 s{S_CNT}, s{S_CNT}, 1
    s_cmp_eq_u32 s{S_CNT}, 0
    s_cbranch_scc1 L_nopoll
    s_sleep 1
    s_branch L_opoll
    L_nopoll:
    """)
    for st in range(6, 10): wo_dma(st)
    a("s_barrier")
    stamp(5)
    for i in range(16):
        if i % 4 == 0 and i:
            a(f"s_add_u32 s{S_KA}, s{S_KA}, 4096")
        a(f"buffer_load_dwordx4 {vr(OFR+8*i,4)}, v{VL}, {sr(S_WS,4)}, s{S_KA} offen offset:{(i%4)*1024} sc1")
        a(f"buffer_load_dwordx4 {vr(OFR+8*i+4,4)}, v14, {sr(S_WS,4)}, s{S_KA} offen offset:{(i%4)*1024} sc1")
    vq = ["d6", "d6", "d7", "d7", "d8", "d8", "d9", "d9"] + [f"o{i}" for i in range(16) for _ in range(2)]
    def wait_vm(*tags):
        nonlocal vq
        idx = [i for i, t in enumerate(vq) if t in tags]
        if not idx: return
        last = max(idx); n = len(vq) - 1 - last
        a(f"s_waitcnt vmcnt({n})")
        vq = vq[last+1:]
    cur_base = [0]
    def rdWo(step, nb):
        slot = WO_SLOT[step % 10]
        base = slot & ~0xffff
        assert base == cur_base[0], (step, nb)
        ch, q = divmod(nb, 4)
        for h in range(2):
            a.lds(f"ds_read_b64_tr_b16 {vr(WFR+4*nb+2*h,2)}, v{VR+q} offset:{(slot & 0xffff) + ch*1024 + h*2048}", f"w{nb}")
    def rebase(step):
        base = WO_SLOT[step % 10] & ~0xffff
        if base != cur_base[0]:
            d = (base - cur_base[0]) & 0xffffffff
            for q in range(4):
                a(f"v_add_u32 v{VR+q}, {d:#x}, v{VR+q}")
            cur_base[0] = base
    for nb in range(8): rdWo(0, nb)
    for st in range(16):
        if st in (3, 6, 9, 12):
            need = {3: ["d6"], 6: ["d7", "d8", "d9"], 9: ["d10", "d11", "d12"], 12: ["d13", "d14", "d15"]}[st]
            wait_vm(*need)
            a("s_barrier")
            if st in (3, 6):
                for s2 in range(st + 7, st + 10):
                    wo_dma(s2); vq += [f"d{s2}", f"d{s2}"]
        wait_vm(f"o{st}")
        if st < 15: rebase(st + 1)
        for nb in range(8):
            a.wait_lds(f"w{nb}")
            for tb in range(2):
                d = vr(ac(nb, tb), 4)
                c = d if st else "0"
                a(f"v_mfma_f32_16x16x32_bf16 {d}, {vr(WFR+4*nb,4)}, {vr(OFR+8*st+4*tb,4)}, {c}")
            if st < 15: rdWo(st + 1, nb)
    assert not a.q and not vq, (a.q, vq)
    a(f"""
    s_barrier
    s_lshl_b32 s{S_T0}, s{S_WID}, 13
    v_add_u32 v4, s{S_T0}, v{VL}
    s_xor_b32 s{S_T1}, s{S_T0}, 0x8000
    v_add_u32 v5, s{S_T1}, v{VL}
    v_and_b32 v6, 15, v0
    v_lshlrev_b32 v6, 12, v6
    v_bfe_u32 v7, v0, 4, 1
    v_lshl_add_u32 v6, v7, 5, v6
    v_lshrrev_b32 v7, 5, v0
    v_lshl_add_u32 v6, v7, 4, v6
    s_lshl_b32 s{S_T0}, s{S_OC}, 8
    s_lshl_b32 s{S_T1}, s{S_OHF}, 7
    s_add_u32 s{S_T0}, s{S_T0}, s{S_T1}
    s_lshl_b32 s{S_T1}, s{S_QB}, 5
    s_add_u32 s{S_T0}, s{S_T0}, s{S_T1}
    s_lshl_b32 s{S_T0}, s{S_T0}, 12
    s_lshl_b32 s{S_T1}, s{S_P}, 11
    s_add_u32 s{S_T0}, s{S_T0}, s{S_T1}
    s_lshl_b32 s{S_T1}, s{S_OJ}, 8
    s_add_u32 s{S_T0}, s{S_T0}, s{S_T1}
    s_lshl_b32 s{S_T1}, s{S_TH}, 7
    s_add_u32 s{S_KA}, s{S_T0}, s{S_T1}
    s_add_u32 s{S_KB}, s{S_KA}, 0x10000
    s_cmp_eq_u32 s{S_TH}, 0
    s_cbranch_scc1 L_red0
    """)
    for kh in (1, 0):
        if kh == 0: a("L_red0:")
        keep = AC + kh * 32; send = AC + (1 - kh) * 32
        for i in range(8):
            a(f"ds_write_b128 v4, {vr(send+4*i,4)} offset:{1024*i}")
        a("s_waitcnt lgkmcnt(0)")
        a("s_barrier")
        for i in range(8):
            a(f"ds_read_b128 {vr(16+4*i,4)}, v5 offset:{1024*i}")
        for i in range(8):
            a(f"s_waitcnt lgkmcnt({7-i})")
            for r in range(4):
                a(f"v_add_f32 v{keep+4*i+r}, v{keep+4*i+r}, v{16+4*i+r}")
        for tb in range(2):
            for pr in range(2):
                ra = keep + ((2*pr)*2 + tb)*4; rb_ = keep + ((2*pr+1)*2 + tb)*4
                t = 16 + (tb*2 + pr)*4
                a(f"v_cvt_pk_bf16_f32 v{t}, v{ra}, v{ra+1}")
                a(f"v_cvt_pk_bf16_f32 v{t+1}, v{ra+2}, v{ra+3}")
                a(f"v_cvt_pk_bf16_f32 v{t+2}, v{rb_}, v{rb_+1}")
                a(f"v_cvt_pk_bf16_f32 v{t+3}, v{rb_+2}, v{rb_+3}")
        a("s_nop 1")
        for k in range(4):
            t = 16 + 4*k
            a(f"v_permlane16_swap_b32 v{t}, v{t+2}")
            a(f"v_permlane16_swap_b32 v{t+1}, v{t+3}")
        a("s_nop 1")
        for tb in range(2):
            for pr in range(2):
                t = 16 + (tb*2 + pr)*4
                a(f"buffer_store_dwordx4 {vr(t,4)}, v6, {sr(S_OUT,4)}, s{S_KB if tb else S_KA} offen offset:{64*pr}")
        if kh == 1: a("s_branch L_done")
    a("L_done:")
    if stamps:
        a(f"""
        s_waitcnt vmcnt(0)
        s_memrealtime s[{S_T2}:{S_T3}]
        s_waitcnt lgkmcnt(0)
        s_lshl_b32 s{S_T0}, s2, 3
        s_add_u32 s{S_T0}, s{S_T0}, s{S_WID}
        s_lshl_b32 s{S_T0}, s{S_T0}, 5
        s_add_u32 s{S_T0}, s{S_T0}, {WS_STAMP}
        v_mov_b32 v8, s{S_ST}
        v_mov_b32 v9, s{S_ST+2}
        v_mov_b32 v10, s{S_ST+4}
        v_mov_b32 v11, s{S_ST+6}
        v_mov_b32 v12, s{S_ST+8}
        v_mov_b32 v13, s{S_ST+10}
        v_mov_b32 v14, s{S_T2}
        v_mov_b32 v15, 0
        v_mov_b32 v7, 0
        s_mov_b64 exec, 1
        buffer_store_dwordx4 v[8:11], v7, {sr(S_WS,4)}, s{S_T0} offen
        buffer_store_dwordx4 v[12:15], v7, {sr(S_WS,4)}, s{S_T0} offen offset:16
        s_mov_b64 exec, -1
        """)
    a(f"""
    s_cmp_lg_u32 s{S_WID}, 0
    s_cbranch_scc1 L_end
    v_mov_b32 v4, 1
    v_mov_b32 v7, 0
    s_mov_b64 exec, 1
    buffer_atomic_add v4, v7, {sr(S_DBG,4)}, 0 offen sc0
    s_waitcnt vmcnt(0)
    v_readfirstlane_b32 s{S_T0}, v4
    s_cmp_lg_u32 s{S_T0}, 255
    s_cbranch_scc1 L_end
    v_mov_b32 v4, s{S_NON}
    s_mov_b32 s{S_T0}, {WS_FLAG}
    buffer_store_dword v4, v7, {sr(S_WS,4)}, s{S_T0} offen sc1
    L_end:
    s_endpgm
    """)
    for U, O, L, Q in (("A", OA, LA, QA), ("B", OB, LB, QB)):
        S = SS[0]; P = PP[0]; M = SS[1]; NB = SS[1] + 1
        a(f"""
        L_slow{U}:
        s_lshl_b32 s{S_T1}, s{S_HH}, 15
        v_lshlrev_b32 v{VT+1}, 4, v0
        v_and_b32 v{VT+2}, 0x33, v0
        v_bfe_u32 v{VT+3}, v0, 2, 1
        v_lshl_or_b32 v{VT+2}, v{VT+3}, 3, v{VT+2}
        v_bfe_u32 v{VT+3}, v0, 3, 1
        v_lshl_or_b32 v{VT+2}, v{VT+3}, 2, v{VT+2}
        v_lshlrev_b32 v{VT+2}, 4, v{VT+2}
        v_mov_b32 v{M}, 0xff800000
        s_mov_b32 s{S_DA}, 0
        L_sp{U}:
        s_mov_b32 s{S_DB}, 0
        s_cmp_eq_u32 s{S_C}, 0
        s_cbranch_scc0 L_st{U}
        s_sub_u32 s{S_DB}, 8, s{S_QB}
        L_st{U}:
        s_add_u32 s{S_T0}, s{S_DB}, s{S_QB}
        s_lshl_b32 s{S_T0}, s{S_T0}, 12
        s_add_u32 s{S_T0}, s{S_T0}, s{S_KVB}
        s_sub_u32 s{S_T0}, s{S_T0}, 0x8000
        buffer_load_dwordx4 {vr(KF,4)}, v{VT+2}, {sr(S_WS,4)}, s{S_T0} offen sc1
        buffer_load_dwordx4 {vr(KF+4,4)}, v{VT+2}, {sr(S_WS,4)}, s{S_T0} offen offset:1024 sc1
        buffer_load_dwordx4 {vr(VF,4)}, v{VT+1}, {sr(S_WS,4)}, s{S_T0} offen offset:2048 sc1
        buffer_load_dwordx4 {vr(VF+4,4)}, v{VT+1}, {sr(S_WS,4)}, s{S_T0} offen offset:3072 sc1
        s_waitcnt vmcnt(0)
        s_cmp_eq_u32 s{S_DB}, 0
        s_cbranch_scc1 L_sf{U}
        s_cmp_eq_u32 s{S_DB}, 8
        s_cbranch_scc1 L_sd{U}
        v_mfma_f32_32x32x16_bf16 {vr(S,16)}, {vr(KF,4)}, {vr(Q,4)}, 0
        s_branch L_sj{U}
        L_sf{U}:
        v_mfma_f32_32x32x16_bf16 {vr(S,16)}, {vr(KF,4)}, {vr(Q,4)}, {vr(BF,16)}
        s_branch L_sj{U}
        L_sd{U}:
        v_mfma_f32_32x32x16_bf16 {vr(S,16)}, {vr(KF,4)}, {vr(Q,4)}, {vr(BD,16)}
        L_sj{U}:
        v_mfma_f32_32x32x16_bf16 {vr(S,16)}, {vr(KF+4,4)}, {vr(Q+4,4)}, {vr(S,16)}
        s_nop 7
        s_nop 7
        s_cmp_eq_u32 s{S_DA}, 0
        s_cbranch_scc0 L_s2{U}
        """)
        for r in range(16):
            a(f"v_max_f32 v{M}, v{M}, v{S+r}")
        a(f"s_branch L_sn{U}")
        a(f"L_s2{U}:")
        for r in range(16):
            a(f"v_sub_f32 v{S+r}, v{S+r}, v{M}")
        for r in range(16):
            a(f"v_exp_f32 v{S+r}, v{S+r}")
        a("s_nop 0")
        for j in range(8):
            a(f"v_cvt_pk_bf16_f32 v{P+j}, v{S+2*j}, v{S+2*j+1}")
        a("s_nop 1")
        for f in range(2):
            a(f"v_mfma_f32_32x32x16_bf16 {vr(O,16)}, {vr(VF+4*f,4)}, {vr(P+4*f,4)}, {vr(O,16)}")
        for f in range(2):
            a(f"v_mfma_f32_16x16x32_bf16 {vr(L,4)}, {vr(ON,4)}, {vr(P+4*f,4)}, {vr(L,4)}")
        a(f"""
        s_nop 7
        s_nop 7
        L_sn{U}:
        s_add_u32 s{S_DB}, s{S_DB}, 1
        s_cmp_le_u32 s{S_DB}, 8
        s_cbranch_scc1 L_st{U}
        s_cmp_eq_u32 s{S_DA}, 0
        s_cbranch_scc0 L_sx{U}
        v_mov_b32 v{NB}, v{M}
        s_nop 1
        v_permlane32_swap_b32 v{NB}, v{M}
        s_nop 1
        v_max_f32 v{M}, v{M}, v{NB}
        """)
        for r in range(16): a(f"v_mov_b32 v{O+r}, 0")
        for r in range(4): a(f"v_mov_b32 v{L+r}, 0")
        a(f"""
        s_mov_b32 s{S_DA}, 1
        s_branch L_sp{U}
        L_sx{U}:
        s_branch L_back{U}
        """)
    hdr = open("concat_heads__sliding_block__sliding_block__prompt.s.ref").read().split("; Override launch")[0]
    head = hdr + f"""; @launch grid=(256,1,1) block=(512,1,1) lds={LDS_BYTES}
.amdgcn_target "amdgcn-amd-amdhsa--gfx950"
.text
.globl {name}
.p2align 8
.type {name},@function
{name}:
"""
    tail = f"""
.section .rodata,"a"
.p2align 6
.amdhsa_kernel {name}
  .amdhsa_next_free_vgpr 256
  .amdhsa_next_free_sgpr 102
  .amdhsa_accum_offset 256
  .amdhsa_group_segment_fixed_size 0
  .amdhsa_kernarg_size 72
  .amdhsa_user_sgpr_count 2
  .amdhsa_user_sgpr_kernarg_segment_ptr 1
  .amdhsa_system_sgpr_workgroup_id_x 1
.end_amdhsa_kernel
"""
    return head + a.text() + tail

if __name__ == "__main__":
    stamps = "--stamps" in sys.argv
    opts = {}
    for x in sys.argv[2:]:
        if "=" in x:
            k, v = x.split("="); opts[k] = int(v)
    open(sys.argv[1], "w").write(gen(stamps, opts=opts))
```

```python
import sys, struct

class Asm:
    def __init__(self):
        self.l = []
        self.q = []
    def __call__(self, s):
        for x in s.strip("\n").split("\n"):
            x = x.strip()
            if not x: continue
            self.l.append(x if x.endswith(":") else "    " + x)
    def text(self):
        return "\n".join(self.l) + "\n"
    def lds(self, s, tag):
        self(s); self.q.append(tag)
    def wait_lds(self, *tags):
        idx = [i for i, t in enumerate(self.q) if t in tags]
        if not idx: return
        last = max(idx)
        n = len(self.q) - 1 - last
        assert n <= 15, n
        self(f"s_waitcnt lgkmcnt({n})")
        self.q = self.q[last+1:]
    def wait_lds_all(self):
        self("s_waitcnt lgkmcnt(0)"); self.q = []

def vr(a, n): return f"v[{a}:{a+n-1}]"
def sr(a, n): return f"s[{a}:{a+n-1}]"
def f32bits(x): return struct.unpack("<I", struct.pack("<f", x))[0]

WS_KV = 0
WS_O = 16 << 20
WS_FLAG = 24 << 20
WS_FKV = WS_FLAG + 4096
WS_FO = WS_FLAG + 65536
WS_STAMP = 25 << 20
WS_BYTES = 26 << 20
TAGX = 0x5bd1e995

A_SLOT = 32768; B_BASE = 3 * A_SLOT; B_SLOT = 12288
LDS_BYTES = 160 * 1024
R_OWN = 0; R_PREV = 65536; R_Q = 131072
WO_SLOT = [0, 16384, 32768, 49152, 131072, 147456, 65536, 81920, 98304, 114688]

S_X = 36; S_W = 40; S_WS = 44; S_WO = 48; S_OUT = 52; S_DBG = 56
S_P = 60; S_C = 61; S_HP = 62; S_WID = 63
S_T0 = 64; S_T1 = 65; S_T2 = 66; S_T3 = 67
S_ASL = 68; S_BSL = 69; S_KA = 70; S_KB = 71; S_CNT = 72
S_TH = 73; S_HH = 74; S_DA = 75; S_DB = 76
S_NON = 77
S_KVB = 78
S_OC = 79; S_OHF = 80; S_OJ = 81
S_LA = 82; S_LB = 83
S_M0 = 84; S_M1 = 86
S_QB = 88
S_ST = 90

QSCALE = 0.17677669529663687 * 1.4426950408889634

def gen(stamps=False, name="concat_heads__sliding_block__sliding_block__prompt_kernel", opts=None):
    opts = opts or {}
    a = Asm()
    def stamp(i):
        if stamps:
            a(f"s_memrealtime s[{S_ST+2*i}:{S_ST+2*i+1}]")
    a(f"""
    s_cmp_ge_u32 s2, 256
    s_cbranch_scc1 L_end
    s_load_dwordx16 s[16:31], s[0:1], 0
    s_load_dwordx2 s[32:33], s[0:1], 64
    """)
    stamp(0)
    a(f"""
    v_lshrrev_b32 v1, 6, v0
    v_and_b32 v0, 63, v0
    s_and_b32 s{S_T0}, s2, 7
    v_readfirstlane_b32 s{S_WID}, v1
    s_lshr_b32 s{S_T1}, s2, 3
    s_lshr_b32 s{S_P}, s{S_T0}, 2
    s_and_b32 s{S_T2}, s{S_T0}, 3              ; hq
    s_lshr_b32 s{S_C}, s{S_T1}, 2              ; chunk
    s_and_b32 s{S_T3}, s{S_T1}, 3
    s_lshl_b32 s{S_HP}, s{S_T2}, 2
    s_add_u32 s{S_HP}, s{S_HP}, s{S_T3}
    s_lshr_b32 s{S_OC}, s{S_T1}, 4
    s_lshl_b32 s{S_T3}, s{S_T2}, 1
    s_add_u32 s{S_OC}, s{S_OC}, s{S_T3}
    s_bfe_u32 s{S_OHF}, s{S_T1}, 0x10003
    s_and_b32 s{S_OJ}, s{S_T1}, 7
    s_and_b32 s{S_HH}, s{S_WID}, 1
    s_waitcnt lgkmcnt(0)
    s_cmp_eq_u32 s{S_P}, 0
    s_cselect_b32 s{S_X}, s16, s22
    s_cselect_b32 s{S_X+1}, s17, s23
    s_cselect_b32 s{S_W}, s18, s24
    s_cselect_b32 s{S_W+1}, s19, s25
    s_cselect_b32 s{S_WO}, s20, s26
    s_cselect_b32 s{S_WO+1}, s21, s27
    s_lshl_b32 s{S_T0}, s{S_C}, 19
    s_add_u32 s{S_X}, s{S_X}, s{S_T0}
    s_addc_u32 s{S_X+1}, s{S_X+1}, 0
    s_mov_b32 s{S_X+2}, 0x80000
    s_mov_b32 s{S_X+3}, 0x20000
    s_mov_b32 s{S_W+2}, 0x600000
    s_mov_b32 s{S_W+3}, 0x20000
    s_cmp_ge_u32 s{S_WID}, 4
    s_cbranch_scc1 L_loader
    """)
    def common_setup():
        a(f"""
        s_add_u32 s{S_T0}, s32, {WS_FLAG}
        s_addc_u32 s{S_T1}, s33, 0
        s_load_dword s{S_NON}, s[{S_T0}:{S_T1}], 0
        s_mov_b32 s{S_WS}, s32
        s_mov_b32 s{S_WS+1}, s33
        s_mov_b32 s{S_WS+2}, {WS_BYTES}
        s_mov_b32 s{S_WS+3}, 0x20000
        s_mov_b32 s{S_WO+2}, 0x200000
        s_mov_b32 s{S_WO+3}, 0x20000
        s_mov_b32 s{S_OUT}, s28
        s_mov_b32 s{S_OUT+1}, s29
        s_mov_b32 s{S_OUT+2}, 0x800000
        s_mov_b32 s{S_OUT+3}, 0x20000
        s_mov_b32 s{S_DBG}, s30
        s_mov_b32 s{S_DBG+1}, s31
        s_mov_b32 s{S_DBG+2}, 256
        s_mov_b32 s{S_DBG+3}, 0x20000
        s_lshl_b32 s{S_T2}, s{S_P}, 5
        s_lshl_b32 s{S_T3}, s{S_HP}, 1
        s_add_u32 s{S_T2}, s{S_T2}, s{S_T3}
        s_add_u32 s{S_T2}, s{S_T2}, s{S_HH}        ; p*32+head
        s_lshl_b32 s{S_T2}, s{S_T2}, 6
        s_lshl_b32 s{S_T3}, s{S_C}, 3
        s_add_u32 s{S_T2}, s{S_T2}, s{S_T3}
        s_lshl_b32 s{S_KVB}, s{S_T2}, 12
        s_waitcnt lgkmcnt(0)
        s_add_u32 s{S_NON}, s{S_NON}, 1
        """)
    VA = 1; VB = 3; VT = 5
    XF = 8; WF = 40; ACC = 64
    def acc(rb, nb): return ACC + (rb * 6 + nb) * 4
    def xf(rb): return XF + 4 * rb
    def wf(nb): return WF + 4 * nb
    a(f"""
    s_lshr_b32 s{S_TH}, s{S_WID}, 1
    v_and_b32 v{VT}, 15, v0              ; row
    v_lshrrev_b32 v{VT+1}, 4, v0         ; g
    v_bfe_u32 v{VT+2}, v0, 1, 3          ; f(row)
    v_xor_b32 v{VT+2}, v{VT+2}, v{VT+1}
    v_lshlrev_b32 v{VT+2}, 4, v{VT+2}
    v_lshl_add_u32 v{VT+2}, v{VT}, 7, v{VT+2}
    s_lshl_b32 s{S_T0}, s{S_TH}, 14
    v_add_u32 v{VA}, s{S_T0}, v{VT+2}
    v_xor_b32 v{VA+1}, 64, v{VA}
    v_bfe_u32 v{VT}, v0, 2, 2            ; r'
    v_lshlrev_b32 v{VB}, 7, v{VT}
    v_and_b32 v{VT}, 3, v0
    v_lshl_add_u32 v{VB}, v{VT}, 3, v{VB}
    v_mul_u32_u24 v{VT}, 3072, v{VT+1}
    v_add_u32 v{VB}, v{VB}, v{VT}
    v_bfe_u32 v{VT}, v0, 3, 2
    s_lshl_b32 s{S_T0}, s{S_HH}, 1
    v_xor_b32 v{VT}, s{S_T0}, v{VT}
    v_lshl_add_u32 v{VB}, v{VT}, 5, v{VB}
    v_add_u32 v{VB}, {B_BASE}, v{VB}
    v_xor_b32 v{VB+1}, 32, v{VB}
    """)
    common_setup()
    for r in range(ACC, 256):
        a(f"v_mov_b32 v{r}, 0")
    a(f"""
    s_mov_b32 s{S_ASL}, 0
    s_mov_b32 s{S_BSL}, 0
    s_mov_b32 s{S_CNT}, 16
    s_barrier
    """)
    stamp(1)
    if stamps: a("s_waitcnt lgkmcnt(0)")
    def rdX(rb, kk):
        a.lds(f"ds_read_b128 {vr(xf(rb),4)}, v{VA+kk} offset:{2048*rb}", f"x{rb}")
    def rdW(nb, half):
        seg, nbi = divmod(nb, 2)
        a.lds(f"ds_read_b64_tr_b16 {vr(wf(nb)+2*half,2)}, v{VB+nbi} offset:{seg*1024+half*512}", f"w{nb}")
    def mf(rb, nb):
        d = vr(acc(rb, nb), 4)
        if nb < 4:
            a(f"v_mfma_f32_16x16x32_bf16 {d}, {vr(wf(nb),4)}, {vr(xf(rb),4)}, {d}")
        else:
            a(f"v_mfma_f32_16x16x32_bf16 {d}, {vr(xf(rb),4)}, {vr(wf(nb),4)}, {d}")
    for nb in range(3):
        rdW(nb, 0); rdW(nb, 1)
    for rb in range(8): rdX(rb, 0)
    q0 = list(a.q)
    a("L_cloop:")
    for kk in range(2):
        pend = [(nb, h) for nb in (3, 4, 5) for h in (0, 1)]
        for rb in range(8):
            a.wait_lds("w0", "w1", "w2", f"x{rb}") if rb == 0 else a.wait_lds(f"x{rb}")
            for nb in range(3):
                mf(rb, nb)
                if pend and rb < 3: rdW(*pend.pop(0))
            if rb == 3:
                a(f"""
                s_add_u32 s{S_T0}, s{S_BSL}, {B_SLOT}
                s_cmp_eq_u32 s{S_T0}, {5*B_SLOT}
                s_cselect_b32 s{S_T0}, 0, s{S_T0}
                s_sub_u32 s{S_DB}, s{S_T0}, s{S_BSL}
                s_mov_b32 s{S_BSL}, s{S_T0}
                """)
            if rb == 4:
                a(f"v_add_u32 v{VB}, s{S_DB}, v{VB}")
                a(f"v_add_u32 v{VB+1}, s{S_DB}, v{VB+1}")
            if rb == 5 and kk == 1:
                a(f"""
                s_add_u32 s{S_T0}, s{S_ASL}, {A_SLOT}
                s_cmp_eq_u32 s{S_T0}, {3*A_SLOT}
                s_cselect_b32 s{S_T0}, 0, s{S_T0}
                s_sub_u32 s{S_DA}, s{S_T0}, s{S_ASL}
                s_mov_b32 s{S_ASL}, s{S_T0}
                """)
            if rb == 6 and kk == 1:
                a(f"v_add_u32 v{VA}, s{S_DA}, v{VA}")
                a(f"v_add_u32 v{VA+1}, s{S_DA}, v{VA+1}")
        a.wait_lds_all()
        a("s_barrier")
        pend = [(nb, h) for nb in (0, 1, 2) for h in (0, 1)]
        for rb in range(8):
            for nb in range(3, 6):
                mf(rb, nb)
                if rb == 0:
                    rdW(*pend.pop(0)); rdW(*pend.pop(0))
            rdX(rb, kk ^ 1)
            if rb == 6 and kk == 1:
                a(f"s_sub_u32 s{S_CNT}, s{S_CNT}, 1")
                a(f"s_cmp_lg_u32 s{S_CNT}, 0")
        assert a.q == q0, (a.q, q0)
    a("s_cbranch_scc1 L_cloop")
    a.wait_lds_all()
    stamp(2)
    VL = 1
    VG = 2
    VD = 3
    a(f"""
    v_lshlrev_b32 v{VL}, 4, v0
    s_lshl_b32 s{S_T0}, s{S_TH}, 14            ; 4 tb * 4096
    s_add_u32 s{S_T1}, s{S_KVB}, s{S_T0}
    v_add_u32 v{VG}, s{S_T1}, v{VL}
    s_lshl_b32 s{S_T1}, s{S_HH}, 15
    s_add_u32 s{S_T1}, s{S_T1}, s{S_T0}
    v_add_u32 v{VD}, s{S_T1}, v{VL}
    s_mov_b32 s{S_T2}, {f32bits(QSCALE)}
    s_nop 7
    """)
    def pack(ra, rb_, scale=False):
        if scale:
            for i in range(4):
                a(f"v_mul_f32 v{ra+i}, s{S_T2}, v{ra+i}")
                a(f"v_mul_f32 v{rb_+i}, s{S_T2}, v{rb_+i}")
        a(f"v_cvt_pk_bf16_f32 v{ra}, v{ra}, v{ra+1}")
        a(f"v_cvt_pk_bf16_f32 v{ra+1}, v{ra+2}, v{ra+3}")
        a(f"v_cvt_pk_bf16_f32 v{ra+2}, v{rb_}, v{rb_+1}")
        a(f"v_cvt_pk_bf16_f32 v{ra+3}, v{rb_+2}, v{rb_+3}")
    def swap(ra):
        a(f"v_permlane16_swap_b32 v{ra}, v{ra+2}")
        a(f"v_permlane16_swap_b32 v{ra+1}, v{ra+3}")
    frs = []
    for tb in range(4):
        frs.append((acc(2*tb, 2), acc(2*tb+1, 2), tb, 0))
        frs.append((acc(2*tb, 3), acc(2*tb+1, 3), tb, 1))
        frs.append((acc(2*tb, 4), acc(2*tb, 5), tb, 2))
        frs.append((acc(2*tb+1, 4), acc(2*tb+1, 5), tb, 3))
    prev = None
    def emit_store(fr):
        ra, _, tb, sl = fr
        a(f"s_movk_i32 s{S_T3}, {tb*4096}")
        a(f"buffer_store_dwordx4 {vr(ra,4)}, v{VG}, {sr(S_WS,4)}, s{S_T3} offen offset:{sl*1024} sc1")
        a(f"ds_write_b128 v{VD}, {vr(ra,4)} offset:{tb*4096+sl*1024}")
    for i, fr in enumerate(frs):
        pack(fr[0], fr[1])
        if prev is not None:
            swap(prev[0])
        if i >= 2:
            emit_store(frs[i-2])
        prev = fr
    qfr = [(acc(2*tb, f), acc(2*tb+1, f), tb, f) for tb in range(4) for f in range(2)]
    a(f"""
    s_lshl_b32 s{S_T1}, s{S_HH}, 14
    s_lshl_b32 s{S_T0}, s{S_TH}, 13
    s_add_u32 s{S_T1}, s{S_T1}, s{S_T0}
    s_add_u32 s{S_T1}, s{S_T1}, {R_Q}
    """)
    pack(qfr[0][0], qfr[0][1], True)
    swap(frs[15][0])
    emit_store(frs[14])
    pack(qfr[1][0], qfr[1][1], True)
    emit_store(frs[15])
    a(f"v_add_u32 v{VD}, s{S_T1}, v{VL}")
    swap(qfr[0][0])
    for i in range(1, 8):
        if i + 1 < 8: pack(qfr[i+1][0], qfr[i+1][1], True)
        else: a("s_nop 1")
        swap(qfr[i][0])
        r, _, tb, f = qfr[i-1]
        a(f"ds_write_b128 v{VD}, {vr(r,4)} offset:{tb*2048+f*1024}")
    r, _, tb, f = qfr[7]
    a("s_nop 0")
    a(f"ds_write_b128 v{VD}, {vr(r,4)} offset:{tb*2048+f*1024}")
    a("s_branch L_attn")
    a("L_loader:")
    VOA = 2; VOB = 6
    a(f"""
    s_sub_u32 s{S_T3}, s{S_WID}, 4           ; w
    v_lshrrev_b32 v10, 3, v0                 ; r
    v_and_b32 v11, 7, v0                     ; c
    v_lshrrev_b32 v12, 1, v10
    v_xor_b32 v13, v11, v12
    v_xor_b32 v14, 4, v13
    s_lshl_b32 s{S_T0}, s{S_T3}, 16
    v_lshlrev_b32 v15, 11, v10
    v_add_u32 v15, s{S_T0}, v15
    v_lshl_add_u32 v{VOA}, v13, 4, v15
    v_lshl_add_u32 v{VOA+1}, v14, 4, v15
    v_add_u32 v{VOA+1}, {16384-1024}, v{VOA+1}
    v_add_u32 v{VOA+2}, {2*(16384-1024)}, v{VOA}
    v_add_u32 v{VOA+3}, {2*(16384-1024)}, v{VOA+1}
    s_lshl_b32 s{S_LA}, s{S_T3}, 12
    """)
    def ldA(m0expr, soff):
        a(m0expr); a("s_nop 0")
        for i in range(4):
            a(f"buffer_load_dwordx4 v{VOA+i}, {sr(S_X,4)}, {soff} offen offset:{1024*i} lds")
    def ldB(m0expr, soff):
        a(m0expr); a("s_nop 0")
        for i in range(3):
            a(f"buffer_load_dwordx4 v{VOB+i}, {sr(S_W,4)}, {soff} offen offset:{1024*i} lds")
    def pA(blk, hf):
        a(f"s_mov_b32 s{S_KA}, {hf*128*2048 + blk*128}")
        ldA(f"s_add_u32 m0, s{S_LA}, {blk*A_SLOT + hf*16384}", f"s{S_KA}")
    def pB(u):
        a(f"s_mov_b32 s{S_KB}, {u*32*6144}")
        ldB(f"s_add_u32 m0, s{S_LB}, {u*B_SLOT}", f"s{S_KB}")
    pA(0, 0)
    a(f"""
    v_and_b32 v12, 1, v12                    ; (r>>1)&1
    s_and_b32 s{S_T0}, s{S_T3}, 1
    s_lshl_b32 s{S_T0}, s{S_T0}, 1
    v_or_b32 v12, s{S_T0}, v12               ; swz
    v_lshlrev_b32 v12, 1, v12
    v_xor_b32 v13, v11, v12                  ; c ^ 2*swz
    s_mul_i32 s{S_T0}, s{S_T3}, {8*6144}
    s_lshl_b32 s{S_T1}, s{S_HP}, 7
    s_add_u32 s{S_T0}, s{S_T0}, s{S_T1}
    v_mul_u32_u24 v15, 6144, v10
    v_add_u32 v15, s{S_T0}, v15
    v_lshl_add_u32 v{VOB}, v13, 4, v15
    v_add_u32 v{VOB+1}, {2048-1024}, v{VOB}
    v_add_u32 v{VOB+2}, {2*(2048-1024)}, v{VOB}
    s_mul_i32 s{S_LB}, s{S_T3}, 3072
    s_add_u32 s{S_LB}, s{S_LB}, {B_BASE}
    """)
    pA(0, 1); pB(0); pB(1); pA(1, 0); pA(1, 1); pB(2); pB(3)
    common_setup()
    a(f"""
    s_mov_b32 s{S_ASL}, {2*A_SLOT}
    s_mov_b32 s{S_BSL}, {4*B_SLOT}
    s_mov_b32 s{S_KA}, {2*128}
    s_mov_b32 s{S_KB}, {4*32*6144}
    s_mov_b32 s{S_CNT}, 14
    s_waitcnt vmcnt(17)
    s_barrier
    L_lloop:
    s_add_u32 s{S_T0}, s{S_LA}, s{S_ASL}
    """)
    ldA(f"s_mov_b32 m0, s{S_T0}", f"s{S_KA}")
    ldB(f"s_add_u32 m0, s{S_LB}, s{S_BSL}", f"s{S_KB}")
    a(f"""
    s_add_u32 s{S_KB}, s{S_KB}, {32*6144}
    s_add_u32 s{S_BSL}, s{S_BSL}, {B_SLOT}
    s_cmp_eq_u32 s{S_BSL}, {5*B_SLOT}
    s_cselect_b32 s{S_BSL}, 0, s{S_BSL}
    s_add_u32 s{S_T1}, s{S_KA}, {128*2048}
    s_waitcnt vmcnt(21)
    s_barrier
    """)
    ldA(f"s_add_u32 m0, s{S_T0}, 16384", f"s{S_T1}")
    ldB(f"s_add_u32 m0, s{S_LB}, s{S_BSL}", f"s{S_KB}")
    a(f"""
    s_add_u32 s{S_KB}, s{S_KB}, {32*6144}
    s_add_u32 s{S_BSL}, s{S_BSL}, {B_SLOT}
    s_cmp_eq_u32 s{S_BSL}, {5*B_SLOT}
    s_cselect_b32 s{S_BSL}, 0, s{S_BSL}
    s_add_u32 s{S_KA}, s{S_KA}, 128
    s_add_u32 s{S_ASL}, s{S_ASL}, {A_SLOT}
    s_cmp_eq_u32 s{S_ASL}, {3*A_SLOT}
    s_cselect_b32 s{S_ASL}, 0, s{S_ASL}
    s_sub_u32 s{S_CNT}, s{S_CNT}, 1
    s_cmp_lg_u32 s{S_CNT}, 0
    s_waitcnt vmcnt(17)
    s_barrier
    s_cbranch_scc1 L_lloop
    s_waitcnt vmcnt(14)
    s_barrier
    s_waitcnt vmcnt(3)
    s_barrier
    s_waitcnt vmcnt(0)
    s_barrier
    s_barrier
    """)
    VL = 1; VK = 2; VV = 3; VT = 4
    QA = 8; QB = 16; OA = 24; OB = 40; LA = 56; LB = 60
    BD = 64; BF = 80; ON = 96; SS = [100, 116]; PP = [132, 140]; KF = 148; VF = 156
    VW = 164
    a("L_attn:")
    a(f"""
    v_lshlrev_b32 v{VL}, 4, v0
    v_and_b32 v{VT}, 0x33, v0
    v_bfe_u32 v{VT+1}, v0, 2, 1
    v_lshl_or_b32 v{VT}, v{VT+1}, 3, v{VT}
    v_bfe_u32 v{VT+1}, v0, 3, 1
    v_lshl_or_b32 v{VT}, v{VT+1}, 2, v{VT}
    s_lshl_b32 s{S_T0}, s{S_HH}, 15
    v_lshlrev_b32 v{VK}, 4, v{VT}
    v_add_u32 v{VK}, s{S_T0}, v{VK}
    v_add_u32 v{VV}, s{S_T0}, v{VL}
    v_and_b32 v{VT}, 31, v0
    v_lshrrev_b32 v{VT+1}, 5, v0
    v_lshlrev_b32 v{VT+1}, 3, v{VT+1}
    v_sub_u32 v{VT}, v{VT}, v{VT+1}           ; q - 8h
    s_mov_b32 s{S_T1}, 0xff800000
    """)
    for r in range(16):
        f, u_, e = r >> 3, (r >> 2) & 1, r & 3
        kc = 16*f + 4*u_ + e
        a(f"v_subrev_u32 v{BD+r}, {kc}, v{VT}")
        a(f"v_ashrrev_i32 v{BD+r}, 31, v{BD+r}")
        a(f"v_and_b32 v{BD+r}, s{S_T1}, v{BD+r}")
        a(f"v_xor_b32 v{BF+r}, s{S_T1}, v{BD+r}")
    a(f"""
    v_lshrrev_b32 v{VT}, 2, v0
    v_lshrrev_b32 v{VT+1}, 4, v0
    v_xor_b32 v{VT}, v{VT}, v{VT+1}
    v_and_b32 v{VT}, 1, v{VT}
    v_subrev_u32 v{VT}, 1, v{VT}              ; 0 -> -1 (match), 1 -> 0
    v_and_b32 v{ON}, 0x3f803f80, v{VT}
    v_mov_b32 v{ON+1}, v{ON}
    v_mov_b32 v{ON+2}, v{ON}
    v_mov_b32 v{ON+3}, v{ON}
    v_lshrrev_b32 v{VT}, 3, v0                ; r
    v_and_b32 v{VT+1}, 7, v0                  ; c
    v_bfe_u32 v{VT+2}, v0, 4, 2               ; (r>>1)&3
    v_lshlrev_b32 v{VT+2}, 1, v{VT+2}
    v_xor_b32 v{VT+1}, v{VT+1}, v{VT+2}
    s_lshr_b32 s{S_T0}, s{S_WID}, 2
    s_lshl_b32 s{S_T0}, s{S_T0}, 20           ; 512 rows*2048
    s_and_b32 s{S_T1}, s{S_WID}, 3
    s_lshl_b32 s{S_T1}, s{S_T1}, 14           ; 8 rows * 2048
    s_add_u32 s{S_T0}, s{S_T0}, s{S_T1}
    s_lshl_b32 s{S_T1}, s{S_OJ}, 8
    s_add_u32 s{S_T0}, s{S_T0}, s{S_T1}
    v_lshlrev_b32 v{VT}, 11, v{VT}
    v_add_u32 v{VT}, s{S_T0}, v{VT}
    v_lshl_add_u32 v{VW}, v{VT+1}, 4, v{VT}
    v_add_u32 v{VW+1}, 128, v{VW}
    s_lshl_b32 s{S_LA}, s{S_WID}, 11
    s_lshr_b32 s{S_T0}, s{S_WID}, 1
    s_waitcnt lgkmcnt(0)
    s_barrier
    """)
    stamp(3)
    a(f"""
    s_cmp_eq_u32 s{S_T0}, 1
    s_cbranch_scc1 L_u1
    s_cmp_eq_u32 s{S_T0}, 2
    s_cbranch_scc1 L_u2
    s_cmp_eq_u32 s{S_T0}, 3
    s_cbranch_scc1 L_u3
    """)
    def wo_dma(step):
        VW = 164 if step < 6 else 2
        a(f"s_add_u32 m0, s{S_LA}, {WO_SLOT[step % 10]}")
        a(f"s_mov_b32 s{S_T3}, {step*32*2048}")
        a(f"buffer_load_dwordx4 v{VW}, {sr(S_WO,4)}, s{S_T3} offen lds")
        a(f"s_add_u32 m0, s{S_LA}, {WO_SLOT[step % 10] + 1024}")
        a("s_nop 0")
        a(f"buffer_load_dwordx4 v{VW+1}, {sr(S_WO,4)}, s{S_T3} offen lds")
    def run_tasks(tasks, hooks, first_touch):
        n = len(tasks)
        def rdK(i):
            for f in range(2):
                a.lds(f"ds_read_b128 {vr(KF+4*f,4)}, v{VK} offset:{tasks[i][1]+1024*f}", f"k{f}")
        def rdV(i):
            for f in range(2):
                a.lds(f"ds_read_b128 {vr(VF+4*f,4)}, v{VV} offset:{tasks[i][1]+2048+1024*f}", f"v{f}")
        def qk(i, f):
            u, _, bias = tasks[i]
            q = QA if u == "A" else QB
            s = vr(SS[i % 2], 16)
            c = s if f else (vr(bias, 16) if bias is not None else "0")
            a.wait_lds(f"k{f}")
            a(f"v_mfma_f32_32x32x16_bf16 {s}, {vr(KF+4*f,4)}, {vr(q+4*f,4)}, {c}")
        def pv(i, f):
            u = tasks[i][0]
            o = vr(OA if u == "A" else OB, 16)
            c = o
            if u in first_touch and f == 0:
                c = "0"
            a.wait_lds(f"v{f}")
            a(f"v_mfma_f32_32x32x16_bf16 {o}, {vr(VF+4*f,4)}, {vr(PP[i%2]+4*f,4)}, {c}")
        def sm(i, f):
            u = tasks[i][0]
            l = vr(LA if u == "A" else LB, 4)
            c = l
            if u in first_touch and f == 0:
                c = "0"; first_touch.discard(u)
            a(f"v_mfma_f32_16x16x32_bf16 {l}, {vr(ON,4)}, {vr(PP[i%2]+4*f,4)}, {c}")
        rdK(0)
        qk(0, 0); qk(0, 1)
        if n > 1: rdK(1)
        for i in range(n + 1):
            if i in hooks: hooks[i]()
            s = SS[i % 2]; p = PP[i % 2]
            ex = [f"v_exp_f32 v{s+r}, v{s+r}" for r in range(16)] if i < n else []
            cv = [f"v_cvt_pk_bf16_f32 v{p+j}, v{s+2*j}, v{s+2*j+1}" for j in range(8)] if i < n else []
            def E(k):
                for _ in range(k):
                    if ex: a(ex.pop(0))
            def C(k):
                for _ in range(k):
                    if cv: a(cv.pop(0))
            if i + 1 < n: qk(i+1, 0)
            if i == 0: a("s_nop 7"); a("s_nop 3")
            if i == n: a("s_nop 1")
            E(3)
            if i >= 1: pv(i-1, 0)
            E(3)
            if i + 1 < n:
                qk(i+1, 1)
                if i + 2 < n: rdK(i+2)
            E(3)
            if i >= 1: pv(i-1, 1)
            if i < n: rdV(i)
            E(3); C(2)
            if i >= 1: sm(i-1, 0)
            E(2); C(3)
            if i >= 1: sm(i-1, 1)
            E(2); C(2)
            if i < n: a("s_nop 0")
            C(1)
    for u in range(4):
        if u: a(f"L_u{u}:")
        qa, qb = u, 7 - u
        a(f"s_lshl_b32 s{S_T1}, s{S_HH}, 14")
        a(f"v_add_u32 v{VT}, s{S_T1}, v{VL}")
        a(f"v_add_u32 v{VT}, {R_Q}, v{VT}")
        for f in range(2):
            a.lds(f"ds_read_b128 {vr(QA+4*f,4)}, v{VT} offset:{qa*2048+f*1024}", "q")
            a.lds(f"ds_read_b128 {vr(QB+4*f,4)}, v{VT} offset:{qb*2048+f*1024}", "q")
        a.wait_lds("q")
        t1 = [("B", R_OWN + t*4096, None) for t in range(qb)] + [("B", R_OWN + qb*4096, BD)] + \
             [("A", R_OWN + t*4096, None) for t in range(qa)] + [("A", R_OWN + qa*4096, BD)]
        hooks = {}
        if u < 2:
            def publish():
                a(f"""
                s_lshl_b32 s{S_T0}, s{S_P}, 7
                s_lshl_b32 s{S_T1}, s{S_HP}, 3
                s_add_u32 s{S_T0}, s{S_T0}, s{S_T1}
                s_add_u32 s{S_T0}, s{S_T0}, s{S_C}
                s_lshl_b32 s{S_T0}, s{S_T0}, 7
                s_lshl_b32 s{S_T1}, s{S_WID}, 3
                s_add_u32 s{S_T0}, s{S_T0}, s{S_T1}
                s_add_u32 s{S_T0}, s{S_T0}, {WS_FKV}
                s_xor_b32 s{S_T1}, s{S_NON}, {TAGX}
                v_mov_b32 v{VT}, s{S_NON}
                v_mov_b32 v{VT+1}, s{S_T1}
                v_mov_b32 v{VT+2}, 0
                s_waitcnt vmcnt(0)
                s_mov_b64 exec, 1
                buffer_store_dwordx2 v[{VT}:{VT+1}], v{VT+2}, {sr(S_WS,4)}, s{S_T0} offen sc1
                s_mov_b64 exec, -1
                s_nop 3
                """)
            hooks[opts.get("pub_at", 2)] = publish
        else:
            def poll_issue():
                a(f"""
                s_cmp_eq_u32 s{S_C}, 0
                s_cbranch_scc1 L_np{u}
                s_lshl_b32 s{S_T0}, s{S_P}, 7
                s_lshl_b32 s{S_T1}, s{S_HP}, 3
                s_add_u32 s{S_T0}, s{S_T0}, s{S_T1}
                s_add_u32 s{S_T0}, s{S_T0}, s{S_C}
                s_lshl_b32 s{S_T0}, s{S_T0}, 7
                s_lshl_b32 s{S_T1}, s{S_WID}, 3
                s_add_u32 s{S_T0}, s{S_T0}, s{S_T1}
                s_add_u32 s{S_KA}, s{S_T0}, {WS_FKV - 128 - 32}
                v_mov_b32 v{VT+2}, 0
                buffer_load_dwordx2 v[{VT}:{VT+1}], v{VT+2}, {sr(S_WS,4)}, s{S_KA} offen sc1
                L_np{u}:
                """)
            def poll_check():
                a(f"""
                s_cmp_eq_u32 s{S_C}, 0
                s_cbranch_scc1 L_nq{u}
                s_xor_b32 s{S_T1}, s{S_NON}, {TAGX}
                s_mov_b32 s{S_CNT}, 0x40000
                L_poll{u}:
                s_waitcnt vmcnt(0)
                v_readfirstlane_b32 s{S_T2}, v{VT}
                v_readfirstlane_b32 s{S_T3}, v{VT+1}
                s_cmp_eq_u32 s{S_T2}, s{S_NON}
                s_cselect_b32 s{S_T2}, 1, 0
                s_cmp_eq_u32 s{S_T3}, s{S_T1}
                s_cselect_b32 s{S_T2}, s{S_T2}, 0
                s_cmp_lg_u32 s{S_T2}, 0
                s_cbranch_scc1 L_got{u}
                s_sub_u32 s{S_CNT}, s{S_CNT}, 1
                s_cmp_eq_u32 s{S_CNT}, 0
                s_cbranch_scc1 L_got{u}
                s_sleep 2
                buffer_load_dwordx2 v[{VT}:{VT+1}], v{VT+2}, {sr(S_WS,4)}, s{S_KA} offen sc1
                s_branch L_poll{u}
                L_got{u}:
                s_add_u32 s{S_T0}, s{S_KVB}, {((u-2)*16384 - 32768) & 0xffffffff}
                s_lshl_b32 s{S_T1}, s{S_HH}, 15
                s_add_u32 s{S_T1}, s{S_T1}, {R_PREV + (u-2)*16384}
                """)
                for j in range(4):
                    a(f"s_add_u32 m0, s{S_T1}, {4096*j}")
                    a(f"s_add_u32 s{S_T2}, s{S_T0}, {4096*j}")
                    for k in range(4):
                        a(f"buffer_load_dwordx4 v{VL}, {sr(S_WS,4)}, s{S_T2} offen offset:{1024*k} sc1 lds")
                a(f"L_nq{u}:")
            hooks[opts.get("poll_at", 4)] = poll_issue
            hooks[opts.get("chk_at", 6)] = poll_check
        ft = {"A", "B"}
        run_tasks(t1, hooks, ft)
        assert not a.q
        a("s_waitcnt vmcnt(0)")
        a("s_barrier")
        for st in range(6): wo_dma(st)
        a(f"s_cmp_eq_u32 s{S_C}, 0")
        a(f"s_cbranch_scc1 L_fin")
        a(f"v_add_u32 v{VK}, {R_PREV}, v{VK}")
        a(f"v_add_u32 v{VV}, {R_PREV}, v{VV}")
        t2 = [("A", qa*4096, BF)] + [("A", t*4096, None) for t in range(qa+1, 8)] + \
             [("B", qb*4096, BF)] + [("B", t*4096, None) for t in range(qb+1, 8)]
        run_tasks(t2, {}, ft)
        if u < 3: a("s_branch L_fin")
    a("L_fin:")
    VO = 4
    a(f"""
    s_lshr_b32 s{S_QB}, s{S_WID}, 1            ; u
    s_mov_b32 s{S_T2}, {f32bits(2.0**-60)}
    s_mov_b32 s{S_T3}, {f32bits(2.0**60)}
    v_and_b32 v{VO}, 15, v0
    v_lshrrev_b32 v{VO+1}, 5, v0
    v_lshl_add_u32 v{VO}, v{VO+1}, 4, v{VO}
    v_lshlrev_b32 v{VO}, 4, v{VO}
    v_bfe_u32 v{VO+1}, v0, 4, 1
    v_lshl_add_u32 v{VO}, v{VO+1}, 15, v{VO}
    s_lshl_b32 s{S_T0}, s{S_P}, 22
    s_lshl_b32 s{S_T1}, s{S_C}, 19             ; 8 tb * 2 * 32768
    s_add_u32 s{S_T0}, s{S_T0}, s{S_T1}
    s_lshl_b32 s{S_T1}, s{S_HP}, 11
    s_add_u32 s{S_T0}, s{S_T0}, s{S_T1}
    s_lshl_b32 s{S_T1}, s{S_HH}, 10
    s_add_u32 s{S_T0}, s{S_T0}, s{S_T1}
    s_add_u32 s{S_KB}, s{S_T0}, {WS_O}
    s_nop 7
    """)
    for U, O, L, Q in (("A", OA, LA, QA), ("B", OB, LB, QB)):
        if U == "B":
            a(f"s_sub_u32 s{S_QB}, 7, s{S_QB}")
        a(f"""
        v_cmp_le_f32 s[{S_M0}:{S_M0+1}], s{S_T2}, v{L}
        v_cmp_ge_f32 s[{S_M1}:{S_M1+1}], s{S_T3}, v{L}
        s_nop 1
        s_and_b64 s[{S_M0}:{S_M0+1}], s[{S_M0}:{S_M0+1}], s[{S_M1}:{S_M1+1}]
        s_cmp_eq_u64 s[{S_M0}:{S_M0+1}], -1
        s_cbranch_scc0 L_slow{U}
        L_back{U}:
        v_rcp_f32 v{L+1}, v{L}
        s_lshl_b32 s{S_T0}, s{S_QB}, 16
        s_add_u32 s{S_T0}, s{S_T0}, s{S_KB}
        """)
        for r in range(16):
            a(f"v_mul_f32 v{O+r}, v{O+r}, v{L+1}")
        for j in range(8):
            a(f"v_cvt_pk_bf16_f32 v{O+j}, v{O+2*j}, v{O+2*j+1}")
        a(f"buffer_store_dwordx4 {vr(O,4)}, v{VO}, {sr(S_WS,4)}, s{S_T0} offen sc1")
        a(f"buffer_store_dwordx4 {vr(O+4,4)}, v{VO}, {sr(S_WS,4)}, s{S_T0} offen offset:512 sc1")
    stamp(4)
    VR = 8
    WFR = 16
    AC = 64
    OFR = 128
    def ac(nb, tb): return AC + (nb*2 + tb)*4
    a(f"""
    s_lshr_b32 s{S_TH}, s{S_WID}, 2            ; kh
    s_and_b32 s{S_QB}, s{S_WID}, 3             ; tb4
    v_bfe_u32 v12, v0, 2, 2                    ; r'
    v_bfe_u32 v13, v0, 4, 1                    ; g&1
    v_lshl_add_u32 v12, v13, 2, v12            ; r
    v_lshlrev_b32 v{VR}, 7, v12
    v_bfe_u32 v13, v12, 1, 2                   ; swz
    v_lshl_add_u32 v{VR}, v13, 5, v{VR}
    v_and_b32 v13, 3, v0
    v_lshl_add_u32 v{VR}, v13, 3, v{VR}
    v_lshrrev_b32 v13, 5, v0                   ; g>>1
    v_lshl_add_u32 v{VR}, v13, 12, v{VR}
    s_lshl_b32 s{S_T0}, s{S_TH}, 13
    v_add_u32 v{VR}, s{S_T0}, v{VR}
    v_xor_b32 v{VR+1}, 32, v{VR}
    v_xor_b32 v{VR+2}, 64, v{VR}
    v_xor_b32 v{VR+3}, 0x60, v{VR}
    s_lshl_b32 s{S_T0}, s{S_P}, 7
    s_lshl_b32 s{S_T1}, s{S_OC}, 4
    s_add_u32 s{S_T0}, s{S_T0}, s{S_T1}
    s_lshl_b32 s{S_T1}, s{S_OHF}, 3
    s_add_u32 s{S_T0}, s{S_T0}, s{S_T1}
    s_lshl_b32 s{S_T1}, s{S_QB}, 1
    s_add_u32 s{S_T0}, s{S_T0}, s{S_T1}
    s_lshl_b32 s{S_T0}, s{S_T0}, 15
    s_lshl_b32 s{S_T1}, s{S_TH}, 14
    s_add_u32 s{S_T0}, s{S_T0}, s{S_T1}
    s_add_u32 s{S_KA}, s{S_T0}, {WS_O}
    v_add_u32 v14, 0x8000, v{VL}
    v_mov_b32 v2, v{VW}
    v_mov_b32 v3, v{VW+1}
    ; flags
    s_lshl_b32 s{S_T0}, s{S_P}, 3
    s_add_u32 s{S_T1}, s{S_T0}, s{S_C}
    s_lshl_b32 s{S_T1}, s{S_T1}, 7
    s_lshl_b32 s{S_T2}, s{S_HP}, 3
    s_add_u32 s{S_T1}, s{S_T1}, s{S_T2}
    s_add_u32 s{S_T1}, s{S_T1}, {WS_FO}
    s_add_u32 s{S_T0}, s{S_T0}, s{S_OC}
    s_lshl_b32 s{S_T0}, s{S_T0}, 7
    s_add_u32 s{S_KB}, s{S_T0}, {WS_FO}
    s_xor_b32 s{S_T3}, s{S_NON}, {TAGX}
    v_mov_b32 v4, s{S_NON}
    v_mov_b32 v5, s{S_T3}
    v_and_b32 v6, 15, v0
    v_lshlrev_b32 v6, 3, v6
    v_mov_b32 v7, 0
    s_waitcnt vmcnt(0)
    s_barrier
    s_cmp_lg_u32 s{S_WID}, 0
    s_cbranch_scc1 L_nopoll
    s_mov_b64 exec, 1
    buffer_store_dwordx2 v[4:5], v7, {sr(S_WS,4)}, s{S_T1} offen sc1
    s_mov_b64 exec, -1
    s_mov_b32 s{S_CNT}, 0x40000
    L_opoll:
    buffer_load_dwordx2 v[12:13], v6, {sr(S_WS,4)}, s{S_KB} offen sc1
    s_waitcnt vmcnt(0)
    v_cmp_eq_u32 s[{S_M0}:{S_M0+1}], v12, v4
    v_cmp_eq_u32 s[{S_M1}:{S_M1+1}], v13, v5
    s_nop 1
    s_and_b64 s[{S_M0}:{S_M0+1}], s[{S_M0}:{S_M0+1}], s[{S_M1}:{S_M1+1}]
    s_cmp_eq_u64 s[{S_M0}:{S_M0+1}], -1
    s_cbranch_scc1 L_nopoll
    s_sub_u32 s{S_CNT}, s{S_CNT}, 1
    s_cmp_eq_u32 s{S_CNT}, 0
    s_cbranch_scc1 L_nopoll
    s_sleep 1
    s_branch L_opoll
    L_nopoll:
    """)
    for st in range(6, 10): wo_dma(st)
    a("s_barrier")
    stamp(5)
    for i in range(16):
        if i % 4 == 0 and i:
            a(f"s_add_u32 s{S_KA}, s{S_KA}, 4096")
        a(f"buffer_load_dwordx4 {vr(OFR+8*i,4)}, v{VL}, {sr(S_WS,4)}, s{S_KA} offen offset:{(i%4)*1024} sc1")
        a(f"buffer_load_dwordx4 {vr(OFR+8*i+4,4)}, v14, {sr(S_WS,4)}, s{S_KA} offen offset:{(i%4)*1024} sc1")
    vq = ["d6", "d6", "d7", "d7", "d8", "d8", "d9", "d9"] + [f"o{i}" for i in range(16) for _ in range(2)]
    def wait_vm(*tags):
        nonlocal vq
        idx = [i for i, t in enumerate(vq) if t in tags]
        if not idx: return
        last = max(idx); n = len(vq) - 1 - last
        a(f"s_waitcnt vmcnt({n})")
        vq = vq[last+1:]
    cur_base = [0]
    def rdWo(step, nb):
        slot = WO_SLOT[step % 10]
        base = slot & ~0xffff
        assert base == cur_base[0], (step, nb)
        ch, q = divmod(nb, 4)
        for h in range(2):
            a.lds(f"ds_read_b64_tr_b16 {vr(WFR+4*nb+2*h,2)}, v{VR+q} offset:{(slot & 0xffff) + ch*1024 + h*2048}", f"w{nb}")
    def rebase(step):
        base = WO_SLOT[step % 10] & ~0xffff
        if base != cur_base[0]:
            d = (base - cur_base[0]) & 0xffffffff
            for q in range(4):
                a(f"v_add_u32 v{VR+q}, {d:#x}, v{VR+q}")
            cur_base[0] = base
    for nb in range(8): rdWo(0, nb)
    for st in range(16):
        if st in (3, 6, 9, 12):
            need = {3: ["d6"], 6: ["d7", "d8", "d9"], 9: ["d10", "d11", "d12"], 12: ["d13", "d14", "d15"]}[st]
            wait_vm(*need)
            a("s_barrier")
            if st in (3, 6):
                for s2 in range(st + 7, st + 10):
                    wo_dma(s2); vq += [f"d{s2}", f"d{s2}"]
        wait_vm(f"o{st}")
        if st < 15: rebase(st + 1)
        for nb in range(8):
            a.wait_lds(f"w{nb}")
            for tb in range(2):
                d = vr(ac(nb, tb), 4)
                c = d if st else "0"
                a(f"v_mfma_f32_16x16x32_bf16 {d}, {vr(WFR+4*nb,4)}, {vr(OFR+8*st+4*tb,4)}, {c}")
            if st < 15: rdWo(st + 1, nb)
    assert not a.q and not vq, (a.q, vq)
    a(f"""
    s_barrier
    s_lshl_b32 s{S_T0}, s{S_WID}, 13
    v_add_u32 v4, s{S_T0}, v{VL}
    s_xor_b32 s{S_T1}, s{S_T0}, 0x8000
    v_add_u32 v5, s{S_T1}, v{VL}
    v_and_b32 v6, 15, v0
    v_lshlrev_b32 v6, 12, v6
    v_bfe_u32 v7, v0, 4, 1
    v_lshl_add_u32 v6, v7, 5, v6
    v_lshrrev_b32 v7, 5, v0
    v_lshl_add_u32 v6, v7, 4, v6
    s_lshl_b32 s{S_T0}, s{S_OC}, 8
    s_lshl_b32 s{S_T1}, s{S_OHF}, 7
    s_add_u32 s{S_T0}, s{S_T0}, s{S_T1}
    s_lshl_b32 s{S_T1}, s{S_QB}, 5
    s_add_u32 s{S_T0}, s{S_T0}, s{S_T1}
    s_lshl_b32 s{S_T0}, s{S_T0}, 12
    s_lshl_b32 s{S_T1}, s{S_P}, 11
    s_add_u32 s{S_T0}, s{S_T0}, s{S_T1}
    s_lshl_b32 s{S_T1}, s{S_OJ}, 8
    s_add_u32 s{S_T0}, s{S_T0}, s{S_T1}
    s_lshl_b32 s{S_T1}, s{S_TH}, 7
    s_add_u32 s{S_KA}, s{S_T0}, s{S_T1}
    s_add_u32 s{S_KB}, s{S_KA}, 0x10000
    s_cmp_eq_u32 s{S_TH}, 0
    s_cbranch_scc1 L_red0
    """)
    for kh in (1, 0):
        if kh == 0: a("L_red0:")
        keep = AC + kh * 32; send = AC + (1 - kh) * 32
        for i in range(8):
            a(f"ds_write_b128 v4, {vr(send+4*i,4)} offset:{1024*i}")
        a("s_waitcnt lgkmcnt(0)")
        a("s_barrier")
        for i in range(8):
            a(f"ds_read_b128 {vr(16+4*i,4)}, v5 offset:{1024*i}")
        for i in range(8):
            a(f"s_waitcnt lgkmcnt({7-i})")
            for r in range(4):
                a(f"v_add_f32 v{keep+4*i+r}, v{keep+4*i+r}, v{16+4*i+r}")
        for tb in range(2):
            for pr in range(2):
                ra = keep + ((2*pr)*2 + tb)*4; rb_ = keep + ((2*pr+1)*2 + tb)*4
                t = 16 + (tb*2 + pr)*4
                a(f"v_cvt_pk_bf16_f32 v{t}, v{ra}, v{ra+1}")
                a(f"v_cvt_pk_bf16_f32 v{t+1}, v{ra+2}, v{ra+3}")
                a(f"v_cvt_pk_bf16_f32 v{t+2}, v{rb_}, v{rb_+1}")
                a(f"v_cvt_pk_bf16_f32 v{t+3}, v{rb_+2}, v{rb_+3}")
        a("s_nop 1")
        for k in range(4):
            t = 16 + 4*k
            a(f"v_permlane16_swap_b32 v{t}, v{t+2}")
            a(f"v_permlane16_swap_b32 v{t+1}, v{t+3}")
        a("s_nop 1")
        for tb in range(2):
            for pr in range(2):
                t = 16 + (tb*2 + pr)*4
                a(f"buffer_store_dwordx4 {vr(t,4)}, v6, {sr(S_OUT,4)}, s{S_KB if tb else S_KA} offen offset:{64*pr}")
        if kh == 1: a("s_branch L_done")
    a("L_done:")
    if stamps:
        a(f"""
        s_waitcnt vmcnt(0)
        s_memrealtime s[{S_T2}:{S_T3}]
        s_waitcnt lgkmcnt(0)
        s_lshl_b32 s{S_T0}, s2, 3
        s_add_u32 s{S_T0}, s{S_T0}, s{S_WID}
        s_lshl_b32 s{S_T0}, s{S_T0}, 5
        s_add_u32 s{S_T0}, s{S_T0}, {WS_STAMP}
        v_mov_b32 v8, s{S_ST}
        v_mov_b32 v9, s{S_ST+2}
        v_mov_b32 v10, s{S_ST+4}
        v_mov_b32 v11, s{S_ST+6}
        v_mov_b32 v12, s{S_ST+8}
        v_mov_b32 v13, s{S_ST+10}
        v_mov_b32 v14, s{S_T2}
        v_mov_b32 v15, 0
        v_mov_b32 v7, 0
        s_mov_b64 exec, 1
        buffer_store_dwordx4 v[8:11], v7, {sr(S_WS,4)}, s{S_T0} offen
        buffer_store_dwordx4 v[12:15], v7, {sr(S_WS,4)}, s{S_T0} offen offset:16
        v_not_b32 v15, v8
        s_cmp_ge_u32 s{S_WID}, 4
        s_cbranch_scc1 L_nost
        buffer_atomic_umax v15, v7, {sr(S_DBG,4)}, 0 offen offset:4
        buffer_atomic_umax v8, v7, {sr(S_DBG,4)}, 0 offen offset:8
        buffer_atomic_umax v9, v7, {sr(S_DBG,4)}, 0 offen offset:12
        buffer_atomic_umax v10, v7, {sr(S_DBG,4)}, 0 offen offset:16
        buffer_atomic_umax v11, v7, {sr(S_DBG,4)}, 0 offen offset:20
        buffer_atomic_umax v12, v7, {sr(S_DBG,4)}, 0 offen offset:24
        buffer_atomic_umax v13, v7, {sr(S_DBG,4)}, 0 offen offset:28
        buffer_atomic_umax v14, v7, {sr(S_DBG,4)}, 0 offen offset:32
        L_nost:
        s_mov_b64 exec, -1
        """)
    a(f"""
    s_cmp_lg_u32 s{S_WID}, 0
    s_cbranch_scc1 L_end
    v_mov_b32 v4, 1
    v_mov_b32 v7, 0
    s_mov_b64 exec, 1
    buffer_atomic_add v4, v7, {sr(S_DBG,4)}, 0 offen sc0
    s_waitcnt vmcnt(0)
    v_readfirstlane_b32 s{S_T0}, v4
    s_cmp_lg_u32 s{S_T0}, 255
    s_cbranch_scc1 L_end
    v_mov_b32 v4, s{S_NON}
    s_mov_b32 s{S_T0}, {WS_FLAG}
    buffer_store_dword v4, v7, {sr(S_WS,4)}, s{S_T0} offen sc1
    L_end:
    s_endpgm
    """)
    for U, O, L, Q in (("A", OA, LA, QA), ("B", OB, LB, QB)):
        S = SS[0]; P = PP[0]; M = SS[1]; NB = SS[1] + 1
        a(f"""
        L_slow{U}:
        s_lshl_b32 s{S_T1}, s{S_HH}, 15
        v_lshlrev_b32 v{VT+1}, 4, v0
        v_and_b32 v{VT+2}, 0x33, v0
        v_bfe_u32 v{VT+3}, v0, 2, 1
        v_lshl_or_b32 v{VT+2}, v{VT+3}, 3, v{VT+2}
        v_bfe_u32 v{VT+3}, v0, 3, 1
        v_lshl_or_b32 v{VT+2}, v{VT+3}, 2, v{VT+2}
        v_lshlrev_b32 v{VT+2}, 4, v{VT+2}
        v_mov_b32 v{M}, 0xff800000
        s_mov_b32 s{S_DA}, 0
        L_sp{U}:
        s_mov_b32 s{S_DB}, 0
        s_cmp_eq_u32 s{S_C}, 0
        s_cbranch_scc0 L_st{U}
        s_sub_u32 s{S_DB}, 8, s{S_QB}
        L_st{U}:
        s_add_u32 s{S_T0}, s{S_DB}, s{S_QB}
        s_lshl_b32 s{S_T0}, s{S_T0}, 12
        s_add_u32 s{S_T0}, s{S_T0}, s{S_KVB}
        s_sub_u32 s{S_T0}, s{S_T0}, 0x8000
        buffer_load_dwordx4 {vr(KF,4)}, v{VT+2}, {sr(S_WS,4)}, s{S_T0} offen sc1
        buffer_load_dwordx4 {vr(KF+4,4)}, v{VT+2}, {sr(S_WS,4)}, s{S_T0} offen offset:1024 sc1
        buffer_load_dwordx4 {vr(VF,4)}, v{VT+1}, {sr(S_WS,4)}, s{S_T0} offen offset:2048 sc1
        buffer_load_dwordx4 {vr(VF+4,4)}, v{VT+1}, {sr(S_WS,4)}, s{S_T0} offen offset:3072 sc1
        s_waitcnt vmcnt(0)
        s_cmp_eq_u32 s{S_DB}, 0
        s_cbranch_scc1 L_sf{U}
        s_cmp_eq_u32 s{S_DB}, 8
        s_cbranch_scc1 L_sd{U}
        v_mfma_f32_32x32x16_bf16 {vr(S,16)}, {vr(KF,4)}, {vr(Q,4)}, 0
        s_branch L_sj{U}
        L_sf{U}:
        v_mfma_f32_32x32x16_bf16 {vr(S,16)}, {vr(KF,4)}, {vr(Q,4)}, {vr(BF,16)}
        s_branch L_sj{U}
        L_sd{U}:
        v_mfma_f32_32x32x16_bf16 {vr(S,16)}, {vr(KF,4)}, {vr(Q,4)}, {vr(BD,16)}
        L_sj{U}:
        v_mfma_f32_32x32x16_bf16 {vr(S,16)}, {vr(KF+4,4)}, {vr(Q+4,4)}, {vr(S,16)}
        s_nop 7
        s_nop 7
        s_cmp_eq_u32 s{S_DA}, 0
        s_cbranch_scc0 L_s2{U}
        """)
        for r in range(16):
            a(f"v_max_f32 v{M}, v{M}, v{S+r}")
        a(f"s_branch L_sn{U}")
        a(f"L_s2{U}:")
        for r in range(16):
            a(f"v_sub_f32 v{S+r}, v{S+r}, v{M}")
        for r in range(16):
            a(f"v_exp_f32 v{S+r}, v{S+r}")
        a("s_nop 0")
        for j in range(8):
            a(f"v_cvt_pk_bf16_f32 v{P+j}, v{S+2*j}, v{S+2*j+1}")
        a("s_nop 1")
        for f in range(2):
            a(f"v_mfma_f32_32x32x16_bf16 {vr(O,16)}, {vr(VF+4*f,4)}, {vr(P+4*f,4)}, {vr(O,16)}")
        for f in range(2):
            a(f"v_mfma_f32_16x16x32_bf16 {vr(L,4)}, {vr(ON,4)}, {vr(P+4*f,4)}, {vr(L,4)}")
        a(f"""
        s_nop 7
        s_nop 7
        L_sn{U}:
        s_add_u32 s{S_DB}, s{S_DB}, 1
        s_cmp_le_u32 s{S_DB}, 8
        s_cbranch_scc1 L_st{U}
        s_cmp_eq_u32 s{S_DA}, 0
        s_cbranch_scc0 L_sx{U}
        v_mov_b32 v{NB}, v{M}
        s_nop 1
        v_permlane32_swap_b32 v{NB}, v{M}
        s_nop 1
        v_max_f32 v{M}, v{M}, v{NB}
        """)
        for r in range(16): a(f"v_mov_b32 v{O+r}, 0")
        for r in range(4): a(f"v_mov_b32 v{L+r}, 0")
        a(f"""
        s_mov_b32 s{S_DA}, 1
        s_branch L_sp{U}
        L_sx{U}:
        s_branch L_back{U}
        """)
    hdr = open("concat_heads__sliding_block__sliding_block__prompt.s.ref").read().split("; Override launch")[0]
    head = hdr + f"""; @launch grid=(256,1,1) block=(512,1,1) lds={LDS_BYTES}
.amdgcn_target "amdgcn-amd-amdhsa--gfx950"
.text
.globl {name}
.p2align 8
.type {name},@function
{name}:
"""
    tail = f"""
.section .rodata,"a"
.p2align 6
.amdhsa_kernel {name}
  .amdhsa_next_free_vgpr 256
  .amdhsa_next_free_sgpr 102
  .amdhsa_accum_offset 256
  .amdhsa_group_segment_fixed_size 0
  .amdhsa_kernarg_size 72
  .amdhsa_user_sgpr_count 2
  .amdhsa_user_sgpr_kernarg_segment_ptr 1
  .amdhsa_system_sgpr_workgroup_id_x 1
.end_amdhsa_kernel
"""
    return head + a.text() + tail

if __name__ == "__main__":
    stamps = "--stamps" in sys.argv
    opts = {}
    for x in sys.argv[2:]:
        if "=" in x:
            k, v = x.split("="); opts[k] = int(v)
    open(sys.argv[1], "w").write(gen(stamps, opts=opts))
```

```python
import sys, struct

class Asm:
    def __init__(self):
        self.l = []
        self.q = []
        self.vq = []
    def __call__(self, s):
        for x in s.strip("\n").split("\n"):
            x = x.strip()
            if not x: continue
            self.l.append(x if x.endswith(":") else "    " + x)
    def text(self):
        return "\n".join(self.l) + "\n"
    def lds(self, s, tag):
        self(s); self.q.append(tag)
    def wait_lds(self, *tags):
        idx = [i for i, t in enumerate(self.q) if t in tags]
        if not idx: return
        last = max(idx); n = min(len(self.q) - 1 - last, 15)
        self(f"s_waitcnt lgkmcnt({n})")
        self.q = self.q[len(self.q)-n:] if n else []
    def wait_lds_all(self):
        self("s_waitcnt lgkmcnt(0)"); self.q = []
    def vm(self, s, tag):
        self(s); self.vq.append(tag)
    def wait_vm(self, *tags):
        idx = [i for i, t in enumerate(self.vq) if t in tags]
        if not idx: return
        last = max(idx); n = len(self.vq) - 1 - last
        assert n <= 63, n
        self(f"s_waitcnt vmcnt({n})")
        self.vq = self.vq[last+1:]
    def wait_vm_all(self):
        self("s_waitcnt vmcnt(0)"); self.vq = []

def vr(a, n): return f"v[{a}:{a+n-1}]"
def sr(a, n): return f"s[{a}:{a+n-1}]"
def f32bits(x): return struct.unpack("<I", struct.pack("<f", x))[0]
def L(s): return [x.strip() for x in s.strip().split("\n") if x.strip()]

WS_KV = 0
WS_O = 16 << 20
WS_FLAG = 24 << 20
WS_FKV = WS_FLAG + 4096
WS_FO = WS_FLAG + 65536
WS_STAMP = 25 << 20
WS_BYTES = 26 << 20
TAGX = 0x5bd1e995

A_SLOT = 32768; B_BASE = 3 * A_SLOT; B_SLOT = 12288
LDS_BYTES = 160 * 1024
R_V = 0; R_PREV = 32768; R_K = 98304; R_Q = 131072; R_RED = 65536
def wo_slot(st): return [R_V, R_K, R_Q, R_PREV][st // 4] + (st % 4) * 8192

S_X = 36; S_W = 40; S_WS = 44; S_WO = 48; S_OUT = 52; S_DBG = 56
S_P = 60; S_C = 61; S_HP = 62; S_WID = 63
S_T0 = 64; S_T1 = 65; S_T2 = 66; S_T3 = 67
S_ASL = 68; S_BSL = 69; S_KA = 70; S_KB = 71; S_CNT = 72
S_TH = 73; S_HH = 74; S_DA = 75; S_DB = 76
S_NON = 77; S_KVB = 78; S_OC = 79; S_OJ = 80; S_TAG = 81
S_LA = 82; S_LB = 83
S_M0 = 84; S_M1 = 86
S_QB = 88; S_OB = 89
S_RET = 90; S_CODE = 92
S_FO = 96; S_U0 = 97; S_U1 = 98; S_U2 = 99
S_LO = 34; S_HI = 35

QSCALE = 0.17677669529663687 * 1.4426950408889634
CODE_LINES = 512

def gen(stamps=False, name="concat_heads__sliding_block__sliding_block__prompt_kernel", opts=None):
    opts = opts or {}
    a = Asm()
    SN = ["start", "bar0", "main", "kv", "qend", "pub", "barA", "p1end", "barC", "p2end", "got", "barE", "mm1", "mm", "end", "ofl"]
    def stamp(i):
        if isinstance(i, str): i = SN.index(i)
        else: i = SN.index({0: "start", 1: "bar0", 2: "kv", 3: "barA", 4: "p1end", 5: "barC", 7: "p2end", 9: "barE", 10: "mm", 11: "end"}.get(i, "none")) if i not in (6, 8) else None
        if i is None: return
        if stamps:
            a(f"s_memtime s[100:101]" if opts.get("cyc") else f"s_memrealtime s[100:101]")
            a(f"s_waitcnt lgkmcnt(0)")
            a(f"s_mov_b32 s{4+i}, s100")
            a.q = []
    a(f"""
    s_cmp_ge_u32 s2, 256
    s_cbranch_scc1 L_end
    s_load_dwordx16 s[16:31], s[0:1], 0
    s_load_dwordx2 s[32:33], s[0:1], 64
    """)
    stamp(0)
    a(f"""
    v_lshrrev_b32 v1, 6, v0
    v_and_b32 v0, 63, v0
    s_and_b32 s{S_T0}, s2, 7
    v_readfirstlane_b32 s{S_WID}, v1
    s_lshr_b32 s{S_T1}, s2, 3
    s_lshr_b32 s{S_P}, s{S_T0}, 2
    s_and_b32 s{S_T2}, s{S_T0}, 3              ; hq
    s_lshr_b32 s{S_C}, s{S_T1}, 2              ; chunk
    s_and_b32 s{S_T3}, s{S_T1}, 3
    s_lshl_b32 s{S_HP}, s{S_T2}, 2
    s_add_u32 s{S_HP}, s{S_HP}, s{S_T3}
    s_lshr_b32 s{S_OC}, s{S_T1}, 4
    s_lshl_b32 s{S_T3}, s{S_T2}, 1
    s_add_u32 s{S_OC}, s{S_OC}, s{S_T3}
    s_and_b32 s{S_OJ}, s{S_T1}, 15
    s_and_b32 s{S_HH}, s{S_WID}, 1
    s_waitcnt lgkmcnt(0)
    s_cmp_eq_u32 s{S_P}, 0
    s_cselect_b32 s{S_X}, s16, s22
    s_cselect_b32 s{S_X+1}, s17, s23
    s_cselect_b32 s{S_W}, s18, s24
    s_cselect_b32 s{S_W+1}, s19, s25
    s_cselect_b32 s{S_WO}, s20, s26
    s_cselect_b32 s{S_WO+1}, s21, s27
    s_lshl_b32 s{S_T0}, s{S_C}, 19
    s_add_u32 s{S_X}, s{S_X}, s{S_T0}
    s_addc_u32 s{S_X+1}, s{S_X+1}, 0
    s_mov_b32 s{S_X+2}, 0x80000
    s_mov_b32 s{S_X+3}, 0x20000
    s_mov_b32 s{S_W+2}, 0x600000
    s_mov_b32 s{S_W+3}, 0x20000
    s_cmp_ge_u32 s{S_WID}, 4
    s_cbranch_scc1 L_loader
    """)
    def common_setup():
        a(f"""
        s_add_u32 s{S_T0}, s32, {WS_FLAG}
        s_addc_u32 s{S_T1}, s33, 0
        s_load_dword s{S_NON}, s[{S_T0}:{S_T1}], 0
        s_mov_b32 s{S_WS}, s32
        s_mov_b32 s{S_WS+1}, s33
        s_mov_b32 s{S_WS+2}, {WS_BYTES}
        s_mov_b32 s{S_WS+3}, 0x20000
        s_mov_b32 s{S_WO+2}, 0x200000
        s_mov_b32 s{S_WO+3}, 0x20000
        s_mov_b32 s{S_OUT}, s28
        s_mov_b32 s{S_OUT+1}, s29
        s_mov_b32 s{S_OUT+2}, 0x800000
        s_mov_b32 s{S_OUT+3}, 0x20000
        s_mov_b32 s{S_DBG}, s30
        s_mov_b32 s{S_DBG+1}, s31
        s_mov_b32 s{S_DBG+2}, 256
        s_mov_b32 s{S_DBG+3}, 0x20000
        s_lshl_b32 s{S_T3}, s{S_HP}, 1
        s_add_u32 s{S_T3}, s{S_T3}, s{S_HH}        ; head
        s_lshl_b32 s{S_T2}, s{S_P}, 5
        s_add_u32 s{S_T2}, s{S_T2}, s{S_T3}        ; p*32+head
        s_lshl_b32 s{S_T2}, s{S_T2}, 6
        s_lshl_b32 s{S_KVB}, s{S_C}, 3
        s_add_u32 s{S_T2}, s{S_T2}, s{S_KVB}
        s_lshl_b32 s{S_KVB}, s{S_T2}, 12
        s_lshl_b32 s{S_T2}, s{S_P}, 3
        s_add_u32 s{S_T2}, s{S_T2}, s{S_C}         ; p*8+c
        s_lshl_b32 s{S_OB}, s{S_T2}, 19
        s_lshl_b32 s{S_FO}, s{S_T3}, 10
        s_add_u32 s{S_OB}, s{S_OB}, s{S_FO}
        s_add_u32 s{S_OB}, s{S_OB}, {WS_O}
        s_lshl_b32 s{S_FO}, s{S_T2}, 11
        s_lshl_b32 s{S_T3}, s{S_T3}, 3
        s_add_u32 s{S_FO}, s{S_FO}, s{S_T3}
        s_add_u32 s{S_FO}, s{S_FO}, {WS_FO}
        s_mov_b32 s{S_LO}, {f32bits(2.0**-60)}
        s_mov_b32 s{S_HI}, {f32bits(2.0**60)}
        s_waitcnt lgkmcnt(0)
        s_add_u32 s{S_NON}, s{S_NON}, 1
        s_xor_b32 s{S_TAG}, s{S_NON}, {TAGX}
        """)
    BD = 88; BF = 136; ON = 184; VW = 188; VO = 189; VK = 190; VV = 191; CT = 192
    QA = 8; QB = 16; OA = 24; OB = 40; LA = 56; LB = 60; KF = 80; VF = 104; SS = [224, 240]; PP = [128, 152]
    VLS = 194
    def attn_consts0(vl):
        return L(f"""
        v_and_b32 v{CT}, 0x33, v0
        v_bfe_u32 v{CT+1}, v0, 2, 1
        v_lshl_or_b32 v{CT}, v{CT+1}, 3, v{CT}
        v_bfe_u32 v{CT+1}, v0, 3, 1
        v_lshl_or_b32 v{CT}, v{CT+1}, 2, v{CT}
        s_lshl_b32 s{S_T0}, s{S_HH}, 14
        v_lshlrev_b32 v{VK}, 4, v{CT}
        v_add_u32 v{VV}, s{S_T0}, v{vl}
        s_add_u32 s{S_T0}, s{S_T0}, {R_K}
        v_add_u32 v{VK}, s{S_T0}, v{VK}
        v_lshrrev_b32 v{CT}, 2, v0
        v_lshrrev_b32 v{CT+1}, 4, v0
        v_xor_b32 v{CT}, v{CT}, v{CT+1}
        v_and_b32 v{CT}, 1, v{CT}
        v_subrev_u32 v{CT}, 1, v{CT}
        v_and_b32 v{ON}, 0x3f803f80, v{CT}
        v_mov_b32 v{ON+1}, v{ON}
        v_mov_b32 v{ON+2}, v{ON}
        v_mov_b32 v{ON+3}, v{ON}
        """)
    def attn_consts1():
        c = L(f"""
        v_and_b32 v{CT}, 31, v0
        v_lshrrev_b32 v{BD}, 5, v0
        v_lshlrev_b32 v{BD}, 3, v{BD}
        v_sub_u32 v{CT}, v{CT}, v{BD}
        s_mov_b32 s{S_T1}, 0xff800000
        """)
        for r in range(16):
            f, u_, e = r >> 3, (r >> 2) & 1, r & 3
            kc = 16*f + 4*u_ + e
            c += [f"v_subrev_u32 v{BD+r}, {kc}, v{CT}", f"v_ashrrev_i32 v{BD+r}, 31, v{BD+r}", f"v_and_b32 v{BD+r}, s{S_T1}, v{BD+r}"]
        return c
    def attn_consts2():
        c = [f"s_mov_b32 s{S_T1}, 0xff800000"]
        c += [f"v_xor_b32 v{BF+r}, s{S_T1}, v{BD+r}" for r in range(16)]
        c += L(f"""
        v_lshrrev_b32 v{CT}, 3, v0
        v_and_b32 v{VW}, 7, v0
        v_bfe_u32 v{VO}, v0, 4, 2
        v_lshlrev_b32 v{VO}, 1, v{VO}
        v_xor_b32 v{VW}, v{VW}, v{VO}
        s_lshr_b32 s{S_T0}, s{S_WID}, 2
        s_lshl_b32 s{S_T0}, s{S_T0}, 20
        s_and_b32 s{S_T1}, s{S_WID}, 3
        s_lshl_b32 s{S_T1}, s{S_T1}, 14
        s_add_u32 s{S_T0}, s{S_T0}, s{S_T1}
        s_lshl_b32 s{S_T1}, s{S_OJ}, 7
        s_add_u32 s{S_T0}, s{S_T0}, s{S_T1}
        v_lshlrev_b32 v{CT}, 11, v{CT}
        v_add_u32 v{CT}, s{S_T0}, v{CT}
        v_lshl_add_u32 v{VW}, v{VW}, 4, v{CT}
        s_lshl_b32 s{S_LA}, s{S_WID}, 10
        v_and_b32 v{VO}, 15, v0
        v_lshrrev_b32 v{CT}, 5, v0
        v_lshl_add_u32 v{VO}, v{CT}, 4, v{VO}
        v_lshlrev_b32 v{VO}, 4, v{VO}
        v_bfe_u32 v{CT}, v0, 4, 1
        v_lshl_add_u32 v{VO}, v{CT}, 15, v{VO}
        """)
        return c
    D = opts.get("D", 3); MB = 16 - D
    KVS = B_BASE; QS = B_BASE + 32768; A4 = KVS
    qorder = [15, 14, 13] + list(range(12, MB - 1, -1))
    qorder = qorder[:D]
    aslot_q = {}
    for i, b in enumerate(qorder):
        aslot_q[b] = (b % 3) * A_SLOT if b >= 13 else [A4, 0, 2 * A_SLOT, A_SLOT][(i - 3) % 4]
    nst = 32 + D
    items = []
    for u in range(32):
        b, kk = divmod(u, 2)
        if kk == 0:
            for hf in range(2): items.append(dict(need=u, kind="A", blk=b, hf=hf, lds=(b % 3)*A_SLOT + hf*16384, size=16384,
                                                  free=(u + 2) if b < 13 or b not in qorder else 32 + qorder.index(b) + 2))
        if u <= 2*MB: items.append(dict(need=u, kind="B", u=u, lds=B_BASE + (u % 5)*B_SLOT, size=B_SLOT, free=u + 1))
        else: items.append(dict(need=u, kind="KV", u=u, lds=None, size=8192, free=u + 1))
    for i, b in enumerate(qorder):
        if b < 13:
            for hf in range(2): items.append(dict(need=32 + i, kind="A", blk=b, hf=hf, lds=aslot_q[b] + hf*16384, size=16384, free=32 + i + 2))
        for kk in range(2): items.append(dict(need=32 + i, kind="Q", u=2*b + kk, qi=(i, kk), lds=None, size=4096, free=32 + i + 2))
    def after_of(n, lo, size):
        r = -1
        for pv_ in items[:n]:
            if pv_["lds"] < lo + size and lo < pv_["lds"] + pv_["size"]: r = max(r, pv_["free"])
        return r
    for n, it in enumerate(items):
        if it["lds"] is None:
            lo_lim = B_BASE if it["kind"] == "KV" else QS
            cands = range(lo_lim, LDS_BYTES - it["size"] + 1, 4096)
            it["lds"] = min(cands, key=lambda lo: (max(after_of(n, lo, it["size"]), it["need"] - 5), lo))
        it["after"] = after_of(n, it["lds"], it["size"])
        assert it["after"] < it["need"], it
        it["n"] = {"A": 4, "B": 3, "KV": 2, "Q": 1}[it["kind"]]
    def kvslot(u): return [it["lds"] for it in items if it["kind"] == "KV" and it["u"] == u][0]
    def qslot(i, kk): return [it["lds"] for it in items if it["kind"] == "Q" and it["qi"] == (i, kk)][0]
    VA = 1; VB = 3; VT = 5
    XF = 8; WF = 40; ACC = 64
    SEG = [1, 1, 2, 2, 0, 0]
    def acc(rb, col): return ACC + (rb * 6 + col) * 4
    def xf(rb): return XF + 4 * rb
    def wf(sl): return WF + 4 * sl
    a(f"""
    s_lshr_b32 s{S_TH}, s{S_WID}, 1
    v_and_b32 v{VT}, 15, v0
    v_lshrrev_b32 v{VT+1}, 4, v0
    v_bfe_u32 v{VT+2}, v0, 1, 3
    v_xor_b32 v{VT+2}, v{VT+2}, v{VT+1}
    v_lshlrev_b32 v{VT+2}, 4, v{VT+2}
    v_lshl_add_u32 v{VT+2}, v{VT}, 7, v{VT+2}
    s_lshl_b32 s{S_T0}, s{S_TH}, 14
    v_add_u32 v{VA}, s{S_T0}, v{VT+2}
    v_xor_b32 v{VA+1}, 64, v{VA}
    v_bfe_u32 v{VT}, v0, 2, 2
    v_lshlrev_b32 v{VB}, 7, v{VT}
    v_and_b32 v{VT}, 3, v0
    v_lshl_add_u32 v{VB}, v{VT}, 3, v{VB}
    v_mul_u32_u24 v{VT}, 3072, v{VT+1}
    v_add_u32 v{VB}, v{VB}, v{VT}
    v_bfe_u32 v{VT}, v0, 3, 2
    s_lshl_b32 s{S_T0}, s{S_HH}, 1
    v_xor_b32 v{VT}, s{S_T0}, v{VT}
    v_lshl_add_u32 v{VB}, v{VT}, 5, v{VB}
    v_add_u32 v{VB}, {B_BASE}, v{VB}
    v_xor_b32 v{VB+1}, 32, v{VB}
    """)
    LOOK = opts.get("look", 4)
    a(f"""
    s_and_b32 s{S_T0}, s{S_HP}, 3
    s_lshl_b32 s{S_T0}, s{S_T0}, 6
    s_lshl_b32 s{S_T1}, s{S_WID}, 4
    s_add_u32 s{S_T0}, s{S_T0}, s{S_T1}
    s_lshl_b32 s{S_T0}, s{S_T0}, 11
    v_lshlrev_b32 v5, 11, v0
    v_add_u32 v5, s{S_T0}, v5
    v_mov_b32 v11, 0x7f000000
    v_cmp_lt_u32 vcc, 15, v0
    v_and_b32 v9, 1, v0
    v_lshrrev_b32 v10, 1, v0
    v_cndmask_b32 v5, v5, v11, vcc
    s_lshl_b32 s{S_T0}, s{S_C}, 3
    s_lshl_b32 s{S_T1}, s{S_WID}, 1
    s_add_u32 s{S_T0}, s{S_T0}, s{S_T1}
    v_add_u32 v6, s{S_T0}, v9
    v_mul_u32_u24 v6, 6144, v6
    v_lshl_add_u32 v6, v10, 11, v6
    s_lshl_b32 s{S_T0}, s{S_HP}, 7
    v_add_u32 v6, s{S_T0}, v6
    v_cmp_lt_u32 vcc, 5, v0
    s_movk_i32 s{S_KA}, {128*LOOK}
    s_mov_b32 s{S_KB}, {64*6144*LOOK}
    v_cndmask_b32 v6, v6, v11, vcc
    s_getpc_b64 s[{S_CODE}:{S_CODE+1}]
    s_mov_b32 s{S_CODE+2}, CODE_END_BYTES
    s_mov_b32 s{S_CODE+3}, 0x20000
    s_lshr_b32 s{S_T0}, s2, 3
    s_and_b32 s{S_T0}, s{S_T0}, 7
    s_lshl_b32 s{S_T0}, s{S_T0}, 2
    s_add_u32 s{S_T0}, s{S_T0}, s{S_WID}
    s_mul_i32 s{S_T0}, s{S_T0}, {CODE_LINES // 32 * 128}
    v_lshlrev_b32 v12, 7, v0
    v_add_u32 v12, s{S_T0}, v12
    v_cmp_lt_u32 vcc, 15, v0
    s_nop 1
    v_cndmask_b32 v12, v12, v11, vcc
    """)
    a(f"""
    s_and_b32 s{S_T0}, s{S_OC}, 1
    s_lshl_b32 s{S_T0}, s{S_T0}, 9
    s_mul_i32 s{S_T1}, s{S_WID}, 10
    s_add_u32 s{S_T0}, s{S_T0}, s{S_T1}
    s_lshl_b32 s{S_T0}, s{S_T0}, 11
    s_lshl_b32 s{S_T1}, s{S_OJ}, 7
    s_add_u32 s{S_QB}, s{S_T0}, s{S_T1}
    v_cmp_lt_u32 vcc, 9, v0
    v_lshlrev_b32 v0, 11, v0
    s_nop 0
    v_cndmask_b32 v0, v0, v11, vcc
    """)
    a("L_pcref:")
    common_setup()
    for r in range(ACC, 256):
        a(f"v_mov_b32 v{r}, 0")
    a(f"""
    s_mov_b32 s{S_ASL}, 0
    s_mov_b32 s{S_BSL}, 0
    s_mov_b32 s{S_CNT}, {MB}
    s_barrier
    """)
    stamp(1)
    VTOUCH = opts.get("vtouch", 0)
    for b in range(3, LOOK if VTOUCH else 0):
        a(f"s_mov_b32 s{S_T0}, {64*6144*b}")
        a(f"buffer_load_dword v7, v6, {sr(S_W,4)}, s{S_T0} offen")
        a(f"buffer_load_dword v7, v5, {sr(S_X,4)}, 0 offen offset:{128*b}")
    if opts.get("codetouch", 1):
        a(f"buffer_load_dword v7, v12, {sr(S_CODE,4)}, 0 offen")
    def rdX(rb, va, off=0):
        a.lds(f"ds_read_b128 {vr(xf(rb),4)}, v{va} offset:{2048*rb+off}", f"x{rb}")
    def rdW(sl, col, half, off=0):
        a.lds(f"ds_read_b64_tr_b16 {vr(wf(sl)+2*half,2)}, v{VB+(col&1)} offset:{off+SEG[col]*1024+half*512}", f"w{sl}")
    def mf(rb, col, sl):
        d = vr(acc(rb, col), 4)
        if col in (2, 3):
            a(f"v_mfma_f32_16x16x32_bf16 {d}, {vr(xf(rb),4)}, {vr(wf(sl),4)}, {d}")
        else:
            a(f"v_mfma_f32_16x16x32_bf16 {d}, {vr(wf(sl),4)}, {vr(xf(rb),4)}, {d}")
    for c in range(3):
        rdW(c, c, 0); rdW(c, c, 1)
    for rb in range(8): rdX(rb, VA)
    q0 = list(a.q)
    a("L_cloop:")
    for kk in range(2):
        pend = [(c, h) for c in (3, 4, 5) for h in (0, 1)]
        for rb in range(8):
            a.wait_lds("w0", "w1", "w2", f"x{rb}") if rb == 0 else a.wait_lds(f"x{rb}")
            for c in range(3):
                mf(rb, c, c)
                if pend and rb < 3:
                    cc, h = pend.pop(0); rdW(cc, cc, h)
            if rb == 3:
                a(f"""
                s_add_u32 s{S_T0}, s{S_BSL}, {B_SLOT}
                s_cmp_eq_u32 s{S_T0}, {5*B_SLOT}
                s_cselect_b32 s{S_T0}, 0, s{S_T0}
                s_sub_u32 s{S_DB}, s{S_T0}, s{S_BSL}
                s_mov_b32 s{S_BSL}, s{S_T0}
                """)
            if rb == 4:
                a(f"v_add_u32 v{VB}, s{S_DB}, v{VB}")
                a(f"v_add_u32 v{VB+1}, s{S_DB}, v{VB+1}")
            if rb == 5 and kk == 0 and VTOUCH:
                a(f"""
                buffer_load_dword v7, v6, {sr(S_W,4)}, s{S_KB} offen
                s_add_u32 s{S_KB}, s{S_KB}, {64*6144}
                """)
            if rb == 6 and kk == 0 and VTOUCH:
                a(f"""
                buffer_load_dword v7, v5, {sr(S_X,4)}, s{S_KA} offen
                s_add_u32 s{S_KA}, s{S_KA}, 128
                s_cmp_lt_u32 s{S_KA}, 2048
                s_cselect_b32 s{S_KA}, s{S_KA}, 0x1000000
                """)
            if rb == 3 and kk == 1 and opts.get("wotouch", 0):
                a(f"""
                buffer_load_dword v7, v0, {sr(S_WO,4)}, s{S_QB} offen
                s_add_u32 s{S_QB}, s{S_QB}, {40*2048}
                """)
            if rb == 5 and kk == 1:
                a(f"""
                s_add_u32 s{S_T0}, s{S_ASL}, {A_SLOT}
                s_cmp_eq_u32 s{S_T0}, {3*A_SLOT}
                s_cselect_b32 s{S_T0}, 0, s{S_T0}
                s_sub_u32 s{S_DA}, s{S_T0}, s{S_ASL}
                s_mov_b32 s{S_ASL}, s{S_T0}
                """)
            if rb == 6 and kk == 1:
                a(f"v_add_u32 v{VA}, s{S_DA}, v{VA}")
                a(f"v_add_u32 v{VA+1}, s{S_DA}, v{VA+1}")
        a.wait_lds_all()
        a("s_barrier")
        pend = [(c, h) for c in (0, 1, 2) for h in (0, 1)]
        for rb in range(8):
            for c in range(3, 6):
                mf(rb, c, c)
                if rb == 0:
                    for _ in range(2):
                        cc, h = pend.pop(0); rdW(cc, cc, h)
            rdX(rb, VA + (kk ^ 1))
            if rb == 6 and kk == 1:
                a(f"s_sub_u32 s{S_CNT}, s{S_CNT}, 1")
                a(f"s_cmp_lg_u32 s{S_CNT}, 0")
        assert a.q == q0, (a.q, q0)
    a("s_cbranch_scc1 L_cloop")
    qsave = list(a.q); stamp("main"); a.q = qsave
    VAH = 56; VLN = 58; VG2 = 59; VQ = 60
    u0 = 2 * MB
    a(f"""
    v_mbcnt_lo_u32_b32 v0, -1, 0
    v_mbcnt_hi_u32_b32 v0, -1, v0
    v_add_u32 v{VA}, {(-(MB % 3)*A_SLOT) & 0xffffffff:#x}, v{VA}
    v_add_u32 v{VA+1}, {(-(MB % 3)*A_SLOT) & 0xffffffff:#x}, v{VA+1}
    v_add_u32 v{VB}, {(-(u0 % 5)*B_SLOT) & 0xffffffff:#x}, v{VB}
    v_add_u32 v{VB+1}, {(-(u0 % 5)*B_SLOT) & 0xffffffff:#x}, v{VB+1}
    """)
    def rdXs(rb, slot, kk):
        if slot < 65536: rdX(rb, VA + kk, slot)
        else: rdX(rb, VAH + kk, slot - 65536)
    def rdWkv(sl, col, half, u):
        a.lds(f"ds_read_b64_tr_b16 {vr(wf(sl)+2*half,2)}, v{VB+(col&1)} offset:{kvslot(u)-B_BASE+(col>>1)*1024+half*512}", f"w{sl}")
    def rdWq(sl, j, half, i, kk):
        a.lds(f"ds_read_b64_tr_b16 {vr(wf(sl)+2*half,2)}, v{VQ+j} offset:{qslot(i,kk)-B_BASE+half*512}", f"w{sl}")
    for u in range(u0, 32):
        blk, kk = divmod(u, 2)
        pend = [(3, 0), (3, 1)] if u == u0 else [(2, 0), (2, 1), (3, 0), (3, 1)]
        for rb in range(8):
            a.wait_lds("w0", "w1", f"x{rb}") if rb == 0 else a.wait_lds(f"x{rb}")
            for c in range(2):
                mf(rb, c, c)
                if pend:
                    cc, h = pend.pop(0)
                    if u == u0: rdW(cc, cc, h, (u0 % 5) * B_SLOT)
                    else: rdWkv(cc, cc, h, u)
            if u == u0 and rb == 2:
                a(f"""
                v_add_u32 v{VAH}, 0x10000, v{VA}
                v_add_u32 v{VAH+1}, 0x10000, v{VA+1}
                v_lshrrev_b32 v{VG2}, 4, v0
                v_lshlrev_b32 v{VG2}, 10, v{VG2}
                v_sub_u32 v{VB}, v{VB}, v{VG2}
                v_sub_u32 v{VB+1}, v{VB+1}, v{VG2}
                v_sub_u32 v{VQ}, v{VB}, v{VG2}
                v_sub_u32 v{VQ+1}, v{VB+1}, v{VG2}
                v_lshlrev_b32 v{VLN}, 4, v0
                """)
            if kk == 0 and rb == 5 and blk + LOOK < 16 and VTOUCH:
                a(f"buffer_load_dword v7, v6, {sr(S_W,4)}, s{S_KB} offen")
                a(f"s_add_u32 s{S_KB}, s{S_KB}, {64*6144}")
            if kk == 0 and rb == 6 and blk + LOOK < 16 and VTOUCH:
                a(f"buffer_load_dword v7, v5, {sr(S_X,4)}, s{S_KA} offen")
                a(f"s_add_u32 s{S_KA}, s{S_KA}, 128")
        a.wait_lds_all()
        a("s_barrier")
        for rb in range(8):
            for c in (2, 3):
                mf(rb, c, c)
                if rb == 0:
                    for h in range(2):
                        if u < 31: rdWkv(c - 2, c - 2, h, u + 1)
                        else: rdWq(c - 2, c - 2, h, 0, 0)
            if u < 31: rdXs(rb, (((u + 1) // 2) % 3) * A_SLOT, (u + 1) % 2)
            else: rdXs(rb, aslot_q[qorder[0]], 0)
    qsave = list(a.q); stamp(2); a.q = qsave
    S_G = S_ASL; S_LK = S_KB
    KVSC = ["", " sc1", " nt", " sc0"][opts.get("kvsc", 1)]
    def pack(rd, ra, rb_):
        return [f"v_cvt_pk_bf16_f32 v{rd}, v{ra}, v{ra+1}", f"v_cvt_pk_bf16_f32 v{rd+1}, v{ra+2}, v{ra+3}",
                f"v_cvt_pk_bf16_f32 v{rd+2}, v{rb_}, v{rb_+1}", f"v_cvt_pk_bf16_f32 v{rd+3}, v{rb_+2}, v{rb_+3}"]
    def swap(ra):
        return [f"v_permlane16_swap_b32 v{ra}, v{ra+2}", f"v_permlane16_swap_b32 v{ra+1}, v{ra+3}"]
    frs = []
    for tb in range(4):
        frs.append((acc(2*tb, 0), acc(2*tb, 0), acc(2*tb+1, 0), tb, 0))
        frs.append((acc(2*tb, 1), acc(2*tb, 1), acc(2*tb+1, 1), tb, 1))
        frs.append((acc(2*tb, 2), acc(2*tb, 2), acc(2*tb, 3), tb, 2))
        frs.append((acc(2*tb, 3), acc(2*tb+1, 2), acc(2*tb+1, 3), tb, 3))
    side = L(f"""
    s_lshl_b32 s{S_T0}, s{S_TH}, 14
    s_add_u32 s{S_G}, s{S_KVB}, s{S_T0}
    s_lshl_b32 s{S_T1}, s{S_HH}, 14
    s_lshl_b32 s{S_T0}, s{S_TH}, 13
    s_add_u32 s{S_LK}, s{S_T1}, s{S_T0}
    s_mov_b32 s{S_M0}, {f32bits(QSCALE)}
    s_mov_b32 s{S_M0+1}, {f32bits(QSCALE)}
    v_add_u32 v{VG2}, s{S_LK}, v{VLN}
    v_add_u32 v{VG2+3}, {R_K}, v{VG2}
    """)
    for i, fr in enumerate(frs + [None]):
        if fr is not None: side += pack(fr[0], fr[1], fr[2])
        else: side += ["s_nop 1"]
        if i >= 1: side += swap(frs[i-1][0]) + [("ready", i - 1)]
    side += attn_consts0(VLN) + attn_consts1() + attn_consts2()
    ready = set()
    stores = list(range(16))
    qfr = [(acc(2*tb, 4+f), acc(2*tb+1, 4+f), tb, f) for tb in range(4) for f in range(2)]
    def emit_side(n):
        while side and n > 0:
            x = side.pop(0)
            if isinstance(x, tuple): ready.add(x[1])
            else: a(x); n -= 1
    assert D == 3
    nm = 32 * D
    NSQ = opts.get("nsq", 16)
    st_first, st_last = opts.get("st0", 8), nm - opts.get("st1", 8)
    done = 0
    kw = [i for i in range(16) if frs[i][4] < 2]; vw = [i for i in range(16) if frs[i][4] >= 2]
    def kv_store(vl):
        rd, _, _, tb, sl = frs[stores.pop(0)]
        a(f"s_add_u32 s{S_T3}, s{S_G}, {tb*4096}")
        a(f"buffer_store_dwordx4 {vr(rd,4)}, v{vl}, {sr(S_WS,4)}, s{S_T3} offen offset:{sl*1024}{KVSC}")
    def stage(lst):
        rd, _, _, tb, sl = frs[lst.pop(0)]
        a.lds(f"ds_write_b128 v{VG2 if sl >= 2 else VG2+3}, {vr(rd,4)} offset:{tb*2048+(sl&1)*1024}", "kw")
    for i, b in enumerate(qorder):
        last = (i == D - 1)
        for kk in range(2):
            cur = (0, 1) if kk == 0 else (2, 3)
            if kk == 0: pend = [(2, 0, 0), (2, 0, 1), (3, 1, 0), (3, 1, 1)]
            else: pend = [] if last else [(0, 0, 0), (0, 0, 1), (1, 1, 0), (1, 1, 1)]
            if kk == 1 and not last: a("s_barrier")
            for rb in range(8):
                a.wait_lds(f"w{cur[0]}", f"w{cur[1]}", f"x{rb}") if rb == 0 else a.wait_lds(f"x{rb}")
                for j in range(2):
                    mf(rb, 4 + j, cur[j])
                    if pend:
                        sl, jj, h = pend.pop(0)
                        rdWq(sl, jj, h, i, 1) if kk == 0 else rdWq(sl, jj, h, i + 1, 0)
                    done += 1
                    if done > 2: emit_side(2 if D > 4 else 3)
                    nst_done = 16 - len(stores)
                    if nst_done < NSQ and stores[0] in ready and done >= st_first + (st_last - st_first) * nst_done // NSQ:
                        kv_store(VLN)
                    if j == 1 and kw and kw[0] in ready: stage(kw)
                    if j == 1 and last and vw and not kw: stage(vw)
                if kk == 0: rdXs(rb, aslot_q[b], 1)
                elif not last: rdXs(rb, aslot_q[qorder[i+1]], 0)
                if last and kk == 1 and rb >= 3 and rb % 2 == 1:
                    a("s_nop 1")
                    for f in range(2):
                        ra, rb_, _, _ = qfr[(rb - 3) + f]
                        for r in (ra, ra+2, rb_, rb_+2):
                            a(f"v_pk_mul_f32 v[{r}:{r+1}], v[{r}:{r+1}], s[{S_M0}:{S_M0+1}]")
                        for x in pack(ra, ra, rb_): a(x)
                    a("s_nop 0")
                    for f in range(2):
                        for x in swap(qfr[(rb - 3) + f][0]): a(x)
    assert not side and not kw and not vw and len(stores) == 16 - NSQ, (len(side), stores, kw, vw)
    deferred = list(stores)
    a.wait_lds_all()
    stamp("qend")
    a("s_barrier")
    a(f"v_add_u32 v{VG2+1}, {R_Q}, v{VG2}")
    for f in range(2):
        ra, rb_, _, _ = qfr[6 + f]
        for r in (ra, ra+2, rb_, rb_+2):
            a(f"v_pk_mul_f32 v[{r}:{r+1}], v[{r}:{r+1}], s[{S_M0}:{S_M0+1}]")
        for x in pack(ra, ra, rb_): a(x)
    for i in range(6):
        r, _, tb, f = qfr[i]
        a(f"ds_write_b128 v{VG2+1}, {vr(r,4)} offset:{tb*2048+f*1024}")
    for f in range(2):
        for x in swap(qfr[6 + f][0]): a(x)
    a(f"v_mov_b32 v1, v{VLN}")
    for i in (6, 7):
        r, _, tb, f = qfr[i]
        a(f"ds_write_b128 v{VG2+1}, {vr(r,4)} offset:{tb*2048+f*1024}")
    a("s_setprio 1")
    a("s_branch L_attn")
    a("L_loader:")
    if stamps: a("\n".join(f"s_mov_b32 s{r}, s4" for r in [5, 6, 7, 8, 9, 14]))
    VOA = 2; VOB = 6
    a(f"""
    s_sub_u32 s{S_T3}, s{S_WID}, 4
    v_lshrrev_b32 v10, 3, v0
    v_and_b32 v11, 7, v0
    v_lshrrev_b32 v12, 1, v10
    v_xor_b32 v13, v11, v12
    v_xor_b32 v14, 4, v13
    s_lshl_b32 s{S_T0}, s{S_T3}, 16
    v_lshlrev_b32 v15, 11, v10
    v_add_u32 v15, s{S_T0}, v15
    v_lshl_add_u32 v{VOA}, v13, 4, v15
    v_lshl_add_u32 v{VOA+1}, v14, 4, v15
    v_add_u32 v{VOA+1}, {16384-1024}, v{VOA+1}
    v_add_u32 v{VOA+2}, {2*(16384-1024)}, v{VOA}
    v_add_u32 v{VOA+3}, {2*(16384-1024)}, v{VOA+1}
    s_lshl_b32 s{S_LA}, s{S_T3}, 12
    """)
    def issue(it, tag):
        k = it["kind"]
        if k == "A":
            a(f"s_mov_b32 s{S_KA}, {it['hf']*128*2048 + it['blk']*128}")
            a(f"s_add_u32 m0, s{S_LA}, {it['lds']}")
            a("s_nop 0")
            for i in range(4): a.vm(f"buffer_load_dwordx4 v{VOA+i}, {sr(S_X,4)}, s{S_KA} offen offset:{1024*i} lds", tag)
        elif k == "B":
            a(f"s_mov_b32 s{S_KB}, {it['u']*32*6144}")
            a(f"s_add_u32 m0, s{S_LB}, {it['lds']}")
            a("s_nop 0")
            for i in range(3): a.vm(f"buffer_load_dwordx4 v{VOB+i}, {sr(S_W,4)}, s{S_KB} offen offset:{1024*i} lds", tag)
        elif k == "KV":
            a(f"s_mov_b32 s{S_KB}, {it['u']*32*6144 + 1024}")
            a(f"s_add_u32 m0, s{S_ASL}, {it['lds']}")
            a("s_nop 0")
            for i in range(2): a.vm(f"buffer_load_dwordx4 v{VOB+1+i}, {sr(S_W,4)}, s{S_KB} offen offset:{1024*i} lds", tag)
        else:
            a(f"s_mov_b32 s{S_KB}, {it['u']*32*6144}")
            a(f"s_add_u32 m0, s{S_BSL}, {it['lds']}")
            a("s_nop 0")
            a.vm(f"buffer_load_dwordx4 v{VOB}, {sr(S_W,4)}, s{S_KB} offen lds", tag)
    a.vq = []
    issue(items[0], "n0")
    a(f"""
    v_and_b32 v12, 1, v12
    s_and_b32 s{S_T0}, s{S_T3}, 1
    s_lshl_b32 s{S_T0}, s{S_T0}, 1
    v_or_b32 v12, s{S_T0}, v12
    v_lshlrev_b32 v12, 1, v12
    v_xor_b32 v13, v11, v12
    s_mul_i32 s{S_T0}, s{S_T3}, {8*6144}
    s_lshl_b32 s{S_T1}, s{S_HP}, 7
    s_add_u32 s{S_T0}, s{S_T0}, s{S_T1}
    v_mul_u32_u24 v15, 6144, v10
    v_add_u32 v15, s{S_T0}, v15
    v_lshl_add_u32 v{VOB}, v13, 4, v15
    v_add_u32 v{VOB+1}, {2048-1024}, v{VOB}
    v_add_u32 v{VOB+2}, {2*(2048-1024)}, v{VOB}
    s_mul_i32 s{S_LB}, s{S_T3}, 3072
    s_lshl_b32 s{S_ASL}, s{S_T3}, 11
    s_lshl_b32 s{S_BSL}, s{S_T3}, 10
    """)
    st_sched = {}
    def ST(k, x):
        st_sched.setdefault(k, []).append(x)
        if x.startswith("s_load") and opts.get("s2", 1):
            head, off = x.rsplit(", ", 1)
            st_sched[k].append(f"{head}, {int(off) + 64}")
    TW, TX, TO = 16, 18, 20
    if opts.get("stouch", 1):
        lead = opts.get("slead", 8)
        for i in range(8):
            k = max(4*i - lead, i)
            for seg in range(3): ST(k, f"s_load_dword s22, s[{TW}:{TW+1}], {seg*2048}")
            ST(k, f"s_add_u32 s{TW}, s{TW}, {128*6144}"); ST(k, f"s_addc_u32 s{TW+1}, s{TW+1}, 0")
        for j in range(16): ST(j // 8, f"s_load_dword s22, s[{TX}:{TX+1}], {j*2048 + 3*128}")
        for j in range(16): ST(opts.get("sx11", 6) + j // 2, f"s_load_dword s22, s[{TX}:{TX+1}], {j*2048 + 11*128}")
        for j in range(16): ST(opts.get("swo", 14) + j // 2, f"s_load_dword s22, s[{TO}:{TO+1}], {(j//2)*2048 + (3 + 8*(j&1))*128}")
    def st_setup():
        a(f"""
        s_lshr_b32 s{S_T0}, s2, 3
        s_lshl_b32 s{S_T0}, s{S_T0}, 2
        s_add_u32 s{S_T0}, s{S_T0}, s{S_WID}
        s_sub_u32 s{S_T0}, s{S_T0}, 4              ; n = slot*4 + w
        s_mul_i32 s{S_T1}, s{S_T0}, 6144
        s_or_b32 s{S_T2}, s{S_HP}, 3
        s_lshl_b32 s{S_T2}, s{S_T2}, 7
        s_add_u32 s{S_T1}, s{S_T1}, s{S_T2}
        s_add_u32 s{TW}, s{S_W}, s{S_T1}
        s_addc_u32 s{TW+1}, s{S_W+1}, 0
        s_lshl_b32 s{S_T1}, s{S_T0}, 15
        s_lshl_b32 s{S_T2}, s{S_C}, 19
        s_sub_u32 s{TX}, s{S_X}, s{S_T2}
        s_subb_u32 s{TX+1}, s{S_X+1}, 0
        s_add_u32 s{TX}, s{TX}, s{S_T1}
        s_addc_u32 s{TX+1}, s{TX+1}, 0
        s_lshl_b32 s{S_T1}, s{S_T0}, 14
        s_add_u32 s{TO}, s{S_WO}, s{S_T1}
        s_addc_u32 s{TO+1}, s{S_WO+1}, 0
        """)
    pendq = items[1:]
    for k in range(-1, nst):
        budget = 24 if k < 0 else (opts.get("bud", 7) if k < 31 else 10)
        for it in list(pendq):
            if it["after"] <= k and it["need"] <= k + 6 and (budget >= it["n"] or it["need"] <= k + 2):
                pendq.remove(it); issue(it, f"n{it['need']}"); budget -= it["n"]
        if k == -1:
            common_setup(); st_setup()
        for x in st_sched.get(k, []): a(x)
        if k + 1 < nst:
            assert not any(it["need"] <= k + 1 for it in pendq), k
            a.wait_vm(*[f"n{j}" for j in range(k + 2)])
            a("s_barrier")
    assert not pendq and not a.vq, (pendq, a.vq)
    a("s_waitcnt lgkmcnt(0)")
    a("v_lshlrev_b32 v1, 4, v0")
    for x in attn_consts0(1) + attn_consts1() + attn_consts2(): a(x)
    a("s_barrier")
    VL = 1; VT = 4
    a("L_attn:")
    a(f"""
    s_lshr_b32 s{S_T0}, s{S_WID}, 1
    s_waitcnt lgkmcnt(0)
    s_barrier
    """)
    stamp(3)
    a(f"""
    s_cmp_eq_u32 s{S_T0}, 1
    s_cbranch_scc1 L_u1
    s_cmp_eq_u32 s{S_T0}, 2
    s_cbranch_scc1 L_u2
    s_cmp_eq_u32 s{S_T0}, 3
    s_cbranch_scc1 L_u3
    """)
    def wo_dma(step, vw=VW):
        a(f"s_add_u32 m0, s{S_LA}, {wo_slot(step)}")
        a(f"s_mov_b32 s{S_T3}, {step*32*2048}")
        a.vm(f"buffer_load_dwordx4 v{vw}, {sr(S_WO,4)}, s{S_T3} offen lds", f"d{step}")
    def run_tasks(tasks, hooks, first_touch):
        n = len(tasks)
        def rdK(i):
            for f in range(2):
                a.lds(f"ds_read_b128 {vr(KF+4*f,4)}, v{VK} offset:{tasks[i][1]+1024*f}", f"k{f}")
        def rdV(i):
            for f in range(2):
                a.lds(f"ds_read_b128 {vr(VF+4*f,4)}, v{VV} offset:{tasks[i][2]+1024*f}", f"v{f}")
        def qk(i, f):
            u, _, _, bias = tasks[i]
            q = QA if u == "A" else QB
            s = vr(SS[i % 2], 16)
            c = s if f else (vr(bias, 16) if bias is not None else "0")
            a.wait_lds(f"k{f}")
            a(f"v_mfma_f32_32x32x16_bf16 {s}, {vr(KF+4*f,4)}, {vr(q+4*f,4)}, {c}")
        def pv(i, f):
            u = tasks[i][0]
            o = vr(OA if u == "A" else OB, 16)
            c = "0" if (u in first_touch and f == 0) else o
            a.wait_lds(f"v{f}")
            a(f"v_mfma_f32_32x32x16_bf16 {o}, {vr(VF+4*f,4)}, {vr(PP[i%2]+4*f,4)}, {c}")
        def sm(i, f):
            u = tasks[i][0]
            l = vr(LA if u == "A" else LB, 4)
            c = l
            if u in first_touch and f == 0:
                c = "0"; first_touch.discard(u)
            a(f"v_mfma_f32_16x16x32_bf16 {l}, {vr(ON,4)}, {vr(PP[i%2]+4*f,4)}, {c}")
        rdK(0)
        qk(0, 0); qk(0, 1)
        if n > 1: rdK(1)
        for i in range(n + 1):
            for h in hooks.get(i, []): h()
            s = SS[i % 2]; p = PP[i % 2]
            ex = [f"v_exp_f32 v{s+r}, v{s+r}" for r in range(16)] if i < n else []
            cv = [f"v_cvt_pk_bf16_f32 v{p+j}, v{s+2*j}, v{s+2*j+1}" for j in range(8)] if i < n else []
            def E(k):
                for _ in range(k):
                    if ex: a(ex.pop(0))
            def C(k):
                for _ in range(k):
                    if cv: a(cv.pop(0))
            if i + 1 < n: qk(i+1, 0)
            if i == 0: a("s_nop 7"); a("s_nop 3")
            if i == n: a("s_nop 1")
            E(3)
            if i >= 1: pv(i-1, 0)
            E(3)
            if i + 1 < n:
                qk(i+1, 1)
                if i + 2 < n: rdK(i+2)
            E(3)
            if i >= 1: pv(i-1, 1)
            if i < n: rdV(i)
            E(3); C(2)
            if i >= 1: sm(i-1, 0)
            E(4); C(1)
            if i >= 1: sm(i-1, 1)
            C(5)
    uid = [0]
    def finalize(U, qb_expr):
        O, Ls = (OA, LA) if U == "A" else (OB, LB)
        uid[0] += 1
        a(f"""
        {qb_expr}
        s_nop 3
        v_cmp_le_f32 s[{S_M0}:{S_M0+1}], s{S_LO}, v{Ls}
        v_cmp_ge_f32 s[{S_M1}:{S_M1+1}], s{S_HI}, v{Ls}
        s_lshl_b32 s{S_T0}, s{S_QB}, 16
        s_add_u32 s{S_T0}, s{S_T0}, s{S_OB}
        s_and_b64 s[{S_M0}:{S_M0+1}], s[{S_M0}:{S_M0+1}], s[{S_M1}:{S_M1+1}]
        s_cmp_eq_u64 s[{S_M0}:{S_M0+1}], -1
        s_cbranch_scc1 L_ok{uid[0]}
        s_call_b64 s[{S_RET}:{S_RET+1}], L_slow{U}
        L_ok{uid[0]}:
        v_rcp_f32 v{Ls+1}, v{Ls}
        s_nop 0
        """)
        for r in range(16): a(f"v_mul_f32 v{O+r}, v{O+r}, v{Ls+1}")
        for j in range(8): a(f"v_cvt_pk_bf16_f32 v{O+j}, v{O+2*j}, v{O+2*j+1}")
        a.vm(f"buffer_store_dwordx4 {vr(O,4)}, v{VO}, {sr(S_WS,4)}, s{S_T0} offen sc1", "o" + U)
        a.vm(f"buffer_store_dwordx4 {vr(O+4,4)}, v{VO}, {sr(S_WS,4)}, s{S_T0} offen offset:512 sc1", "o" + U)
    def o_flag(U, qb_expr):
        a(f"""
        {qb_expr}
        s_lshl_b32 s{S_T0}, s{S_QB}, 8
        s_add_u32 s{S_T0}, s{S_T0}, s{S_FO}
        v_mov_b32 v{VT}, s{S_NON}
        v_mov_b32 v{VT+1}, s{S_TAG}
        v_mov_b32 v{VT+2}, 0
        """)
        a.wait_vm("o" + U)
        a("s_mov_b64 exec, 1")
        a.vm(f"buffer_store_dwordx2 v[{VT}:{VT+1}], v{VT+2}, {sr(S_WS,4)}, s{S_T0} offen sc1", "fl")
        a("s_mov_b64 exec, -1")
        a("s_nop 3")
        if U == "B":
            qs = list(a.q); stamp("ofl"); a.q = qs
    for u in range(4):
        if u: a(f"L_u{u}:")
        qa, qb = u, 7 - u
        a(f"s_lshl_b32 s{S_T1}, s{S_HH}, 14")
        a(f"s_add_u32 s{S_T1}, s{S_T1}, {R_Q}")
        a(f"v_add_u32 v{VT}, s{S_T1}, v{VL}")
        for f in range(2):
            a.lds(f"ds_read_b128 {vr(QB+4*f,4)}, v{VT} offset:{qb*2048+f*1024}", "q")
        for f in range(2):
            a.lds(f"ds_read_b128 {vr(QA+4*f,4)}, v{VT} offset:{qa*2048+f*1024}", "qa")
        a.wait_lds("q")
        t1 = [("B", t*2048, t*2048, None) for t in range(qb)] + [("B", qb*2048, qb*2048, BD)] + \
             [("A", t*2048, t*2048, None) for t in range(qa)] + [("A", qa*2048, qa*2048, BD)]
        hooks = {}
        def H(i, f): hooks.setdefault(i, []).append(f)
        if u < 2:
            def publish():
                a(f"""
                s_lshl_b32 s{S_T0}, s{S_P}, 7
                s_lshl_b32 s{S_T1}, s{S_HP}, 3
                s_add_u32 s{S_T0}, s{S_T0}, s{S_T1}
                s_add_u32 s{S_T0}, s{S_T0}, s{S_C}
                s_lshl_b32 s{S_T0}, s{S_T0}, 7
                s_lshl_b32 s{S_T1}, s{S_WID}, 3
                s_add_u32 s{S_T0}, s{S_T0}, s{S_T1}
                s_add_u32 s{S_T0}, s{S_T0}, {WS_FKV}
                v_mov_b32 v{VT}, s{S_NON}
                v_mov_b32 v{VT+1}, s{S_TAG}
                v_mov_b32 v{VT+2}, 0
                s_sub_u32 s{S_KA}, s{S_T0}, 128
                s_waitcnt vmcnt(0)
                s_mov_b64 exec, 1
                buffer_store_dwordx2 v[{VT}:{VT+1}], v{VT+2}, {sr(S_WS,4)}, s{S_T0} offen sc1
                s_mov_b64 exec, -1
                s_nop 3
                """)
                qs = list(a.q); stamp("pub"); a.q = qs
            def poll_issue():
                a(f"""
                s_cmp_eq_u32 s{S_C}, 0
                s_cbranch_scc1 L_np{u}
                buffer_load_dwordx2 v[2:3], v{VT+2}, {sr(S_WS,4)}, s{S_KA} offen sc1
                L_np{u}:
                """)
            def kv_dma(j):
                def f():
                    a(f"""
                    s_cmp_eq_u32 s{S_C}, 0
                    s_cbranch_scc1 L_nd{u}_{j}
                    s_add_u32 m0, s{S_DB}, {4096*j}
                    s_add_u32 s{S_T2}, s{S_DA}, {4096*j}
                    """)
                    for k in range(4):
                        a(f"buffer_load_dwordx4 v{VL}, {sr(S_WS,4)}, s{S_T2} offen offset:{1024*k} sc1 lds")
                    a(f"L_nd{u}_{j}:")
                return f
            def poll_check():
                a(f"""
                s_cmp_eq_u32 s{S_C}, 0
                s_cbranch_scc1 L_got{u}
                s_mov_b32 s{S_CNT}, 0x40000
                L_poll{u}:
                s_waitcnt vmcnt(0)
                v_readfirstlane_b32 s{S_T2}, v2
                v_readfirstlane_b32 s{S_T3}, v3
                s_cmp_eq_u32 s{S_T2}, s{S_NON}
                s_cselect_b32 s{S_T2}, 1, 0
                s_cmp_eq_u32 s{S_T3}, s{S_TAG}
                s_cselect_b32 s{S_T2}, s{S_T2}, 0
                s_cmp_lg_u32 s{S_T2}, 0
                s_cbranch_scc1 L_got{u}
                s_sub_u32 s{S_CNT}, s{S_CNT}, 1
                s_cmp_eq_u32 s{S_CNT}, 0
                s_cbranch_scc1 L_got{u}
                s_sleep 1
                buffer_load_dwordx2 v[2:3], v{VT+2}, {sr(S_WS,4)}, s{S_KA} offen sc1
                s_branch L_poll{u}
                L_got{u}:
                s_add_u32 s{S_DA}, s{S_KVB}, {(u*16384 - 32768) & 0xffffffff}
                s_lshl_b32 s{S_DB}, s{S_HH}, 15
                s_add_u32 s{S_DB}, s{S_DB}, {R_PREV + u*16384}
                """)
                qs = list(a.q); stamp("got"); a.q = qs
            stores[:] = list(deferred)
            nd = len(deferred); spt = opts.get("spt", 2)
            for j in range(nd): H(j // spt, lambda: kv_store(VL))
            pub = opts.get("pub_at", (nd + spt - 1) // spt + 1)
            ck = opts.get("chk_at", 4)
            H(pub, publish)
            H(opts.get("poll_at", pub + 1), poll_issue)
            H(ck, poll_check)
            rest = [0, 1, 2, 3]
            for t in range(ck, 10):
                k = max(1, -(-len(rest) // (10 - t))) if rest else 0
                for j in rest[:k]: H(t, kv_dma(j))
                rest = rest[k:]
            assert not rest
        H(qb, lambda: a.wait_lds("qa"))
        ft = {"A", "B"}
        run_tasks(t1, hooks, ft)
        assert not a.q
        if u < 2: a("s_setprio 0")
        a(f"""
        s_lshl_b32 s{S_T0}, s{S_HH}, 14
        s_add_u32 s{S_T1}, s{S_T0}, {(R_PREV - R_K) & 0xffffffff:#x}
        s_add_u32 s{S_T0}, s{S_T0}, {R_PREV + 2048}
        v_add_u32 v{VK}, s{S_T1}, v{VK}
        v_add_u32 v{VV}, s{S_T0}, v{VV}
        """)
        stamp(4)
        a("s_waitcnt vmcnt(0)")
        a("s_barrier")
        stamp(5)
        a(f"s_cmp_eq_u32 s{S_C}, 0")
        a(f"s_cbranch_scc1 L_c0")
        stamp(6)
        t2 = [("B", qb*4096, qb*4096, BF)] + [("B", t*4096, t*4096, None) for t in range(qb+1, 8)] + \
             [("A", qa*4096, qa*4096, BF)] + [("A", t*4096, t*4096, None) for t in range(qa+1, 8)]
        nB = 8 - qb
        hooks = {}
        a.vq = []
        H(nB + 1, lambda: finalize("B", f"s_mov_b32 s{S_QB}, {qb}"))
        H(min(nB + 1 + opts.get("ofl", 3), 9), lambda: o_flag("B", f"s_mov_b32 s{S_QB}, {qb}"))
        sts = list(range(12))
        for t in range(0, 9):
            k = -(-len(sts) // (9 - t))
            for st in sts[:k]: H(t, (lambda s_: (lambda: wo_dma(s_)))(st))
            sts = sts[k:]
        run_tasks(t2, hooks, ft)
        stamp(7)
        a("s_nop 7"); a("s_nop 3")
        finalize("A", f"s_mov_b32 s{S_QB}, {qa}")
        a("s_branch L_p3")
    a("L_c0:")
    stamp(6)
    a.vq = []
    for st in range(12): wo_dma(st)
    finalize("B", f"s_lshr_b32 s{S_QB}, s{S_WID}, 1\ns_sub_u32 s{S_QB}, 7, s{S_QB}")
    o_flag("B", f"s_lshr_b32 s{S_QB}, s{S_WID}, 1\ns_sub_u32 s{S_QB}, 7, s{S_QB}")
    stamp(7)
    finalize("A", f"s_lshr_b32 s{S_QB}, s{S_WID}, 1")
    a("L_p3:")
    stamp(8)
    VR = 8; VPL = 12; VOUT = 13; VL2 = 14; VRD = 15
    WFR = 16; TMP = 48; AC = 64; OFR = 128
    OSC = " sc1"
    OAH = opts.get("oahead", 6)
    a.vq = ["oA", "oA"]
    a(f"""
    s_lshr_b32 s{S_TH}, s{S_WID}, 2            ; kh
    s_and_b32 s{S_DB}, s{S_WID}, 3             ; tb4
    s_lshl_b32 s{S_T0}, s{S_P}, 3
    s_add_u32 s{S_T0}, s{S_T0}, s{S_OC}
    s_lshl_b32 s{S_T1}, s{S_T0}, 3
    s_add_u32 s{S_T1}, s{S_T1}, s{S_DB}
    s_lshl_b32 s{S_KB}, s{S_T1}, 8
    s_lshl_b32 s{S_T2}, s{S_TH}, 7
    s_add_u32 s{S_KB}, s{S_KB}, s{S_T2}
    s_add_u32 s{S_KB}, s{S_KB}, {WS_FO}
    v_and_b32 v{VPL}, 15, v0
    v_lshlrev_b32 v{VPL}, 3, v{VPL}
    """)
    a.vm(f"buffer_load_dwordx2 v[2:3], v{VPL}, {sr(S_WS,4)}, s{S_KB} offen offset:1024 sc1", "pl")
    a(f"""
    s_lshl_b32 s{S_KA}, s{S_T1}, 16
    s_lshl_b32 s{S_T2}, s{S_TH}, 14
    s_add_u32 s{S_KA}, s{S_KA}, s{S_T2}
    s_add_u32 s{S_KA}, s{S_KA}, {WS_O + 4*65536}
    v_add_u32 v{VL2}, 0x8000, v{VL}
    v_bfe_u32 v5, v0, 2, 2
    v_bfe_u32 v6, v0, 4, 1
    v_lshl_add_u32 v5, v6, 2, v5
    v_lshlrev_b32 v{VR}, 7, v5
    v_bfe_u32 v6, v5, 1, 2
    v_lshl_add_u32 v{VR}, v6, 5, v{VR}
    v_and_b32 v6, 3, v0
    v_lshl_add_u32 v{VR}, v6, 3, v{VR}
    v_lshrrev_b32 v6, 5, v0
    v_lshl_add_u32 v{VR}, v6, 11, v{VR}
    s_lshl_b32 s{S_T0}, s{S_TH}, 12
    v_add_u32 v{VR}, s{S_T0}, v{VR}
    v_xor_b32 v{VR+1}, 32, v{VR}
    v_xor_b32 v{VR+2}, 64, v{VR}
    v_xor_b32 v{VR+3}, 0x60, v{VR}
    v_mov_b32 v7, v{VW}
    """)
    o_flag("A", f"s_lshr_b32 s{S_QB}, s{S_WID}, 1")
    def poll(tag, off):
        a.wait_vm("pl")
        a(f"""
        s_mov_b32 s{S_CNT}, 0x40000
        L_op{tag}:
        v_cmp_eq_u32 s[{S_M0}:{S_M0+1}], s{S_NON}, v2
        v_cmp_eq_u32 s[{S_M1}:{S_M1+1}], s{S_TAG}, v3
        s_nop 1
        s_and_b64 s[{S_M0}:{S_M0+1}], s[{S_M0}:{S_M0+1}], s[{S_M1}:{S_M1+1}]
        s_cmp_eq_u64 s[{S_M0}:{S_M0+1}], -1
        s_cbranch_scc1 L_og{tag}
        s_sub_u32 s{S_CNT}, s{S_CNT}, 1
        s_cmp_eq_u32 s{S_CNT}, 0
        s_cbranch_scc1 L_og{tag}
        s_sleep 1
        buffer_load_dwordx2 v[2:3], v{VPL}, {sr(S_WS,4)}, s{S_KB} offen offset:{off} sc1
        s_waitcnt vmcnt(0)
        s_branch L_op{tag}
        L_og{tag}:
        """)
    def o_load(g):
        i = g % 16
        if g == 16: a(f"s_sub_u32 s{S_KA}, s{S_KA}, {4*65536 + 3*4096}")
        elif i % 4 == 0 and i: a(f"s_add_u32 s{S_KA}, s{S_KA}, 4096")
        r = OFR + 8 * (g % 8)
        a.vm(f"buffer_load_dwordx4 {vr(r,4)}, v{VL}, {sr(S_WS,4)}, s{S_KA} offen offset:{(i%4)*1024}{OSC}", f"o{g}")
        a.vm(f"buffer_load_dwordx4 {vr(r+4,4)}, v{VL2}, {sr(S_WS,4)}, s{S_KA} offen offset:{(i%4)*1024}{OSC}", f"o{g}")
    poll("1", 1024)
    for g in range(OAH): o_load(g)
    a("s_barrier")
    stamp(9)
    for st in range(12, 16): wo_dma(st, 7)
    a(f"""
    v_and_b32 v{VOUT}, 15, v0
    v_lshlrev_b32 v{VOUT}, 12, v{VOUT}
    v_bfe_u32 v6, v0, 4, 1
    v_lshl_add_u32 v{VOUT}, v6, 5, v{VOUT}
    v_lshrrev_b32 v6, 5, v0
    v_lshl_add_u32 v{VOUT}, v6, 4, v{VOUT}
    s_lshl_b32 s{S_T0}, s{S_OC}, 8
    s_lshl_b32 s{S_T1}, s{S_DB}, 5
    s_add_u32 s{S_T0}, s{S_T0}, s{S_T1}
    s_lshl_b32 s{S_T0}, s{S_T0}, 12
    s_lshl_b32 s{S_T1}, s{S_P}, 11
    s_add_u32 s{S_T0}, s{S_T0}, s{S_T1}
    s_lshl_b32 s{S_T1}, s{S_OJ}, 7
    s_add_u32 s{S_T0}, s{S_T0}, s{S_T1}
    s_lshl_b32 s{S_T1}, s{S_TH}, 6
    s_add_u32 s{S_DA}, s{S_T0}, s{S_T1}
    s_lshl_b32 s{S_T0}, s{S_WID}, 12
    s_add_u32 s{S_T0}, s{S_T0}, {R_RED}
    v_add_u32 v{VRD}, s{S_T0}, v{VL}
    s_xor_b32 s{S_T0}, s{S_T0}, 0x4000
    v_add_u32 v4, s{S_T0}, v{VL}
    s_cmp_eq_u32 s{S_TH}, 0
    s_cselect_b64 s[{S_CODE}:{S_CODE+1}], -1, 0
    """)
    cur_base = [0]
    def rdWo(g, nb):
        slot = wo_slot(g % 16)
        assert slot & ~0xffff == cur_base[0], (g, nb)
        w = WFR + 16 * (g % 2) + 4 * nb
        for h in range(2):
            a.lds(f"ds_read_b64_tr_b16 {vr(w+2*h,2)}, v{VR+nb} offset:{(slot & 0xffff) + h*1024}", f"w{g%2}_{nb}")
    def rebase(g):
        base = wo_slot(g % 16) & ~0xffff
        if base != cur_base[0]:
            d = (base - cur_base[0]) & 0xffffffff
            for q in range(4): a(f"v_add_u32 v{VR+q}, {d:#x}, v{VR+q}")
            cur_base[0] = base
    def ac(sl, nb, tb): return AC + 32*sl + (nb*2 + tb)*4
    KEEP = f"s[{S_CODE}:{S_CODE+1}]"
    def red_send(sl):
        lo, hi = ac(sl, 0, 0), ac(sl, 2, 0)
        o = []
        for r in range(16):
            o.append(f"v_cndmask_b32 v{TMP+r}, v{lo+r}, v{hi+r}, {KEEP}")
        for r in range(16):
            o.append(f"v_cndmask_b32 v{lo+r}, v{hi+r}, v{lo+r}, {KEEP}")
        for i in range(4):
            o.append(("lds", f"ds_write_b128 v{VRD}, {vr(TMP+4*i,4)} offset:{1024*i}", "rw"))
        return o
    def red_recv(sl):
        lo = ac(sl, 0, 0)
        o = [("lds", f"ds_read_b128 {vr(TMP+4*i,4)}, v4 offset:{1024*i}", f"rr{i}") for i in range(4)]
        for i in range(4):
            o.append(("wait", f"rr{i}"))
            for r in range(4): o.append(f"v_add_f32 v{lo+4*i+r}, v{lo+4*i+r}, v{TMP+4*i+r}")
        for tb in range(2):
            ra, rb_, t = lo + 4*tb, lo + 8 + 4*tb, TMP + 4*tb
            o += [f"v_cvt_pk_bf16_f32 v{t}, v{ra}, v{ra+1}", f"v_cvt_pk_bf16_f32 v{t+1}, v{ra+2}, v{ra+3}",
                  f"v_cvt_pk_bf16_f32 v{t+2}, v{rb_}, v{rb_+1}", f"v_cvt_pk_bf16_f32 v{t+3}, v{rb_+2}, v{rb_+3}"]
        o += [f"s_add_u32 s{S_T0}, s{S_DA}, {(1-sl)*128*4096}", f"s_add_u32 s{S_T1}, s{S_T0}, 0x10000"]
        for tb in range(2): o += swap(TMP + 4*tb)
        o.append("s_nop 0")
        for tb in range(2):
            o.append(("vm", f"buffer_store_dwordx4 {vr(TMP+4*tb,4)}, v{VOUT}, {sr(S_OUT,4)}, s{S_T1 if tb else S_T0} offen", "st"))
        return o
    def emit(x):
        if isinstance(x, str): a(x)
        elif x[0] == "lds": a.lds(x[1], x[2])
        elif x[0] == "vm": a.vm(x[1], x[2])
        else: a.wait_lds(x[1])
    for nb in range(4): rdWo(0, nb)
    side = []
    for g in range(32):
        sl, st = divmod(g, 16)
        if g == 10:
            a.wait_vm("d15"); a("s_barrier")
        if g == opts.get("p2issue", 5):
            a.vm(f"buffer_load_dwordx2 v[2:3], v{VPL}, {sr(S_WS,4)}, s{S_KB} offen sc1", "pl")
        if g + OAH == 16: poll("0", 0)
        if g == 16:
            qsave = list(a.q); stamp("mm1"); a.q = qsave
        if g == 17: side = red_send(0)
        if g == 20:
            assert not side
            a.wait_lds("rw"); a("s_barrier"); side = red_recv(0)
        if g == 27:
            assert not side
            a("s_barrier")
        a.wait_vm(f"o{g}")
        if g < 31: rebase(g + 1)
        for nb in range(4):
            a.wait_lds(f"w{g%2}_{nb}")
            for tb in range(2):
                d = vr(ac(sl, nb, tb), 4)
                a(f"v_mfma_f32_16x16x32_bf16 {d}, {vr(WFR+16*(g%2)+4*nb,4)}, {vr(OFR+8*(g%8)+4*tb,4)}, {d if st else '0'}")
                for _ in range(2):
                    if side: emit(side.pop(0))
            if g < 31: rdWo(g + 1, nb)
            if nb == 1 and g + OAH < 32: o_load(g + OAH)
    stamp(10)
    a("s_nop 7")
    for x in red_send(1): emit(x)
    a.wait_lds_all()
    a("s_barrier")
    for x in red_recv(1): emit(x)
    if stamps:
        a("s_waitcnt vmcnt(0)")
        stamp(11)
        a(f"""
        s_lshl_b32 s{S_T0}, s2, 3
        s_add_u32 s{S_T0}, s{S_T0}, s{S_WID}
        s_lshl_b32 s{S_T0}, s{S_T0}, 6
        s_add_u32 s{S_T0}, s{S_T0}, {WS_STAMP}
        v_mov_b32 v7, 0
        """)
        for i in range(16): a(f"v_mov_b32 v{8+i}, s{4+i}")
        a(f"""
        s_mov_b64 exec, 1
        buffer_store_dwordx4 v[8:11], v7, {sr(S_WS,4)}, s{S_T0} offen
        buffer_store_dwordx4 v[12:15], v7, {sr(S_WS,4)}, s{S_T0} offen offset:16
        buffer_store_dwordx4 v[16:19], v7, {sr(S_WS,4)}, s{S_T0} offen offset:32
        buffer_store_dwordx4 v[20:23], v7, {sr(S_WS,4)}, s{S_T0} offen offset:48
        s_mov_b64 exec, -1
        """)
    a(f"""
    s_cmp_lg_u32 s{S_WID}, 0
    s_cbranch_scc1 L_end
    v_mov_b32 v4, 1
    v_mov_b32 v7, 0
    s_mov_b64 exec, 1
    buffer_atomic_add v4, v7, {sr(S_DBG,4)}, 0 offen sc0
    s_waitcnt vmcnt(0)
    v_readfirstlane_b32 s{S_T0}, v4
    s_cmp_lg_u32 s{S_T0}, 255
    s_cbranch_scc1 L_end
    v_mov_b32 v4, s{S_NON}
    s_mov_b32 s{S_T0}, {WS_FLAG}
    buffer_store_dword v4, v7, {sr(S_WS,4)}, s{S_T0} offen sc1
    L_end:
    s_endpgm
    """)
    for U, O, Ls, Q in (("A", OA, LA, QA), ("B", OB, LB, QB)):
        S = 64; P = 112; K2 = 120; V2 = 160; M = 168; NB = 169; AK = 170; AT = 171
        a(f"""
        L_slow{U}:
        v_and_b32 v{AK}, 0x33, v0
        v_bfe_u32 v{AT}, v0, 2, 1
        v_lshl_or_b32 v{AK}, v{AT}, 3, v{AK}
        v_bfe_u32 v{AT}, v0, 3, 1
        v_lshl_or_b32 v{AK}, v{AT}, 2, v{AK}
        v_lshlrev_b32 v{AK}, 4, v{AK}
        v_mov_b32 v{M}, 0xff800000
        s_mov_b32 s{S_U0}, 0
        L_sp{U}:
        s_mov_b32 s{S_U1}, 0
        s_cmp_eq_u32 s{S_C}, 0
        s_cbranch_scc0 L_st{U}
        s_sub_u32 s{S_U1}, 8, s{S_QB}
        L_st{U}:
        s_add_u32 s{S_U2}, s{S_U1}, s{S_QB}
        s_lshl_b32 s{S_U2}, s{S_U2}, 12
        s_add_u32 s{S_U2}, s{S_U2}, s{S_KVB}
        s_sub_u32 s{S_U2}, s{S_U2}, 0x8000
        buffer_load_dwordx4 {vr(K2,4)}, v{AK}, {sr(S_WS,4)}, s{S_U2} offen sc1
        buffer_load_dwordx4 {vr(K2+4,4)}, v{AK}, {sr(S_WS,4)}, s{S_U2} offen offset:1024 sc1
        buffer_load_dwordx4 {vr(V2,4)}, v{VL}, {sr(S_WS,4)}, s{S_U2} offen offset:2048 sc1
        buffer_load_dwordx4 {vr(V2+4,4)}, v{VL}, {sr(S_WS,4)}, s{S_U2} offen offset:3072 sc1
        s_waitcnt vmcnt(0)
        s_cmp_eq_u32 s{S_U1}, 0
        s_cbranch_scc1 L_sf{U}
        s_cmp_eq_u32 s{S_U1}, 8
        s_cbranch_scc1 L_sd{U}
        v_mfma_f32_32x32x16_bf16 {vr(S,16)}, {vr(K2,4)}, {vr(Q,4)}, 0
        s_branch L_sj{U}
        L_sf{U}:
        v_mfma_f32_32x32x16_bf16 {vr(S,16)}, {vr(K2,4)}, {vr(Q,4)}, {vr(BF,16)}
        s_branch L_sj{U}
        L_sd{U}:
        v_mfma_f32_32x32x16_bf16 {vr(S,16)}, {vr(K2,4)}, {vr(Q,4)}, {vr(BD,16)}
        L_sj{U}:
        v_mfma_f32_32x32x16_bf16 {vr(S,16)}, {vr(K2+4,4)}, {vr(Q+4,4)}, {vr(S,16)}
        s_nop 7
        s_nop 7
        s_cmp_eq_u32 s{S_U0}, 0
        s_cbranch_scc0 L_s2{U}
        """)
        for r in range(16): a(f"v_max_f32 v{M}, v{M}, v{S+r}")
        a(f"s_branch L_sn{U}")
        a(f"L_s2{U}:")
        for r in range(16): a(f"v_sub_f32 v{S+r}, v{S+r}, v{M}")
        for r in range(16): a(f"v_exp_f32 v{S+r}, v{S+r}")
        a("s_nop 0")
        for j in range(8): a(f"v_cvt_pk_bf16_f32 v{P+j}, v{S+2*j}, v{S+2*j+1}")
        a("s_nop 1")
        for f in range(2):
            a(f"v_mfma_f32_32x32x16_bf16 {vr(O,16)}, {vr(V2+4*f,4)}, {vr(P+4*f,4)}, {vr(O,16)}")
        for f in range(2):
            a(f"v_mfma_f32_16x16x32_bf16 {vr(Ls,4)}, {vr(ON,4)}, {vr(P+4*f,4)}, {vr(Ls,4)}")
        a(f"""
        s_nop 7
        s_nop 7
        L_sn{U}:
        s_add_u32 s{S_U1}, s{S_U1}, 1
        s_cmp_le_u32 s{S_U1}, 8
        s_cbranch_scc1 L_st{U}
        s_cmp_eq_u32 s{S_U0}, 0
        s_cbranch_scc0 L_sx{U}
        v_mov_b32 v{NB}, v{M}
        s_nop 1
        v_permlane32_swap_b32 v{NB}, v{M}
        s_nop 1
        v_max_f32 v{M}, v{M}, v{NB}
        """)
        for r in range(16): a(f"v_mov_b32 v{O+r}, 0")
        for r in range(4): a(f"v_mov_b32 v{Ls+r}, 0")
        a(f"""
        s_mov_b32 s{S_U0}, 1
        s_branch L_sp{U}
        L_sx{U}:
        s_setpc_b64 s[{S_RET}:{S_RET+1}]
        """)
    a("L_codeend:")
    hdr = open("concat_heads__sliding_block__sliding_block__prompt.s.ref").read().split("; Override launch")[0]
    head = hdr + f"""; @launch grid=(256,1,1) block=(512,1,1) lds={LDS_BYTES}
.amdgcn_target "amdgcn-amd-amdhsa--gfx950"
.text
.globl {name}
.p2align 8
.type {name},@function
{name}:
"""
    tail = f"""
.section .rodata,"a"
.p2align 6
.amdhsa_kernel {name}
  .amdhsa_next_free_vgpr 256
  .amdhsa_next_free_sgpr 102
  .amdhsa_accum_offset 256
  .amdhsa_group_segment_fixed_size 0
  .amdhsa_kernarg_size 72
  .amdhsa_user_sgpr_count 2
  .amdhsa_user_sgpr_kernarg_segment_ptr 1
  .amdhsa_system_sgpr_workgroup_id_x 1
.end_amdhsa_kernel
"""
    return head + a.text().replace("CODE_END_BYTES", "(L_codeend - L_pcref)") + tail

if __name__ == "__main__":
    stamps = "--stamps" in sys.argv
    opts = {}
    for x in sys.argv[2:]:
        if "=" in x:
            k, v = x.split("="); opts[k] = int(v)
    open(sys.argv[1], "w").write(gen(stamps, opts=opts))
```

```python
import sys, struct

class Asm:
    def __init__(self):
        self.l = []
        self.q = []
        self.vq = []
    def __call__(self, s):
        for x in s.strip("\n").split("\n"):
            x = x.strip()
            if not x: continue
            self.l.append(x if x.endswith(":") else "    " + x)
    def text(self):
        return "\n".join(self.l) + "\n"
    def lds(self, s, tag):
        self(s); self.q.append(tag)
    def wait_lds(self, *tags):
        idx = [i for i, t in enumerate(self.q) if t in tags]
        if not idx: return
        last = max(idx); n = min(len(self.q) - 1 - last, 15)
        self(f"s_waitcnt lgkmcnt({n})")
        self.q = self.q[len(self.q)-n:] if n else []
    def wait_lds_all(self):
        self("s_waitcnt lgkmcnt(0)"); self.q = []
    def vm(self, s, tag):
        self(s); self.vq.append(tag)
    def wait_vm(self, *tags):
        idx = [i for i, t in enumerate(self.vq) if t in tags]
        if not idx: return
        last = max(idx); n = len(self.vq) - 1 - last
        assert n <= 63, n
        self(f"s_waitcnt vmcnt({n})")
        self.vq = self.vq[last+1:]
    def wait_vm_all(self):
        self("s_waitcnt vmcnt(0)"); self.vq = []

def vr(a, n): return f"v[{a}:{a+n-1}]"
def sr(a, n): return f"s[{a}:{a+n-1}]"
def f32bits(x): return struct.unpack("<I", struct.pack("<f", x))[0]
def L(s): return [x.strip() for x in s.strip().split("\n") if x.strip()]

WS_KV = 0
WS_O = 16 << 20
WS_FLAG = 24 << 20
WS_FKV = WS_FLAG + 4096
WS_FO = WS_FLAG + 65536
WS_STAMP = 25 << 20
WS_BYTES = 26 << 20
TAGX = 0x5bd1e995

A_SLOT = 32768; B_BASE = 3 * A_SLOT; B_SLOT = 12288
LDS_BYTES = 160 * 1024
R_V = 0; R_PREV = 32768; R_K = 98304; R_Q = 131072; R_RED = 65536
def wo_slot(st): return [R_V, R_K, R_Q, R_PREV][st // 4] + (st % 4) * 8192

S_X = 36; S_W = 40; S_WS = 44; S_WO = 48; S_OUT = 52; S_DBG = 56
S_P = 60; S_C = 61; S_HP = 62; S_WID = 63
S_T0 = 64; S_T1 = 65; S_T2 = 66; S_T3 = 67
S_ASL = 68; S_BSL = 69; S_KA = 70; S_KB = 71; S_CNT = 72
S_TH = 73; S_HH = 74; S_DA = 75; S_DB = 76
S_NON = 77; S_KVB = 78; S_OC = 79; S_OJ = 80; S_TAG = 81
S_LA = 82; S_LB = 83
S_M0 = 84; S_M1 = 86
S_QB = 88; S_OB = 89
S_RET = 90; S_CODE = 92
S_FO = 96; S_U0 = 97; S_U1 = 98; S_U2 = 99
S_LO = 34; S_HI = 35

QSCALE = 0.17677669529663687 * 1.4426950408889634
CODE_LINES = 512

def gen(stamps=False, name="concat_heads__sliding_block__sliding_block__prompt_kernel", opts=None):
    opts = opts or {}
    a = Asm()
    SN = ["start", "bar0", "main", "kv", "qend", "pub", "barA", "p1end", "barC", "p2end", "got", "barE", "mm1", "mm", "end", "ofl"]
    def stamp(i):
        if isinstance(i, str): i = SN.index(i)
        else: i = SN.index({0: "start", 1: "bar0", 2: "kv", 3: "barA", 4: "p1end", 5: "barC", 7: "p2end", 9: "barE", 10: "mm", 11: "end"}.get(i, "none")) if i not in (6, 8) else None
        if i is None: return
        if stamps:
            a(f"s_memtime s[100:101]" if opts.get("cyc") else f"s_memrealtime s[100:101]")
            a(f"s_waitcnt lgkmcnt(0)")
            a(f"s_mov_b32 s{4+i}, s100")
            a.q = []
    a(f"""
    s_cmp_ge_u32 s2, 256
    s_cbranch_scc1 L_end
    s_load_dwordx16 s[16:31], s[0:1], 0
    s_load_dwordx2 s[32:33], s[0:1], 64
    """)
    stamp(0)
    a(f"""
    v_lshrrev_b32 v1, 6, v0
    v_and_b32 v0, 63, v0
    s_and_b32 s{S_T0}, s2, 7
    v_readfirstlane_b32 s{S_WID}, v1
    s_lshr_b32 s{S_T1}, s2, 3
    s_lshr_b32 s{S_P}, s{S_T0}, 2
    s_and_b32 s{S_T2}, s{S_T0}, 3              ; hq
    s_lshr_b32 s{S_C}, s{S_T1}, 2              ; chunk
    s_and_b32 s{S_T3}, s{S_T1}, 3
    s_lshl_b32 s{S_HP}, s{S_T2}, 2
    s_add_u32 s{S_HP}, s{S_HP}, s{S_T3}
    s_lshr_b32 s{S_OC}, s{S_T1}, 4
    s_lshl_b32 s{S_T3}, s{S_T2}, 1
    s_add_u32 s{S_OC}, s{S_OC}, s{S_T3}
    s_and_b32 s{S_OJ}, s{S_T1}, 15
    s_and_b32 s{S_HH}, s{S_WID}, 1
    s_waitcnt lgkmcnt(0)
    s_cmp_eq_u32 s{S_P}, 0
    s_cselect_b32 s{S_X}, s16, s22
    s_cselect_b32 s{S_X+1}, s17, s23
    s_cselect_b32 s{S_W}, s18, s24
    s_cselect_b32 s{S_W+1}, s19, s25
    s_cselect_b32 s{S_WO}, s20, s26
    s_cselect_b32 s{S_WO+1}, s21, s27
    s_lshl_b32 s{S_T0}, s{S_C}, 19
    s_add_u32 s{S_X}, s{S_X}, s{S_T0}
    s_addc_u32 s{S_X+1}, s{S_X+1}, 0
    s_mov_b32 s{S_X+2}, 0x80000
    s_mov_b32 s{S_X+3}, 0x20000
    s_mov_b32 s{S_W+2}, 0x600000
    s_mov_b32 s{S_W+3}, 0x20000
    s_cmp_ge_u32 s{S_WID}, 4
    s_cbranch_scc1 L_loader
    """)
    def common_setup():
        a(f"""
        s_add_u32 s{S_T0}, s32, {WS_FLAG}
        s_addc_u32 s{S_T1}, s33, 0
        s_load_dword s{S_NON}, s[{S_T0}:{S_T1}], 0
        s_mov_b32 s{S_WS}, s32
        s_mov_b32 s{S_WS+1}, s33
        s_mov_b32 s{S_WS+2}, {WS_BYTES}
        s_mov_b32 s{S_WS+3}, 0x20000
        s_mov_b32 s{S_WO+2}, 0x200000
        s_mov_b32 s{S_WO+3}, 0x20000
        s_mov_b32 s{S_OUT}, s28
        s_mov_b32 s{S_OUT+1}, s29
        s_mov_b32 s{S_OUT+2}, 0x800000
        s_mov_b32 s{S_OUT+3}, 0x20000
        s_mov_b32 s{S_DBG}, s30
        s_mov_b32 s{S_DBG+1}, s31
        s_mov_b32 s{S_DBG+2}, 256
        s_mov_b32 s{S_DBG+3}, 0x20000
        s_lshl_b32 s{S_T3}, s{S_HP}, 1
        s_add_u32 s{S_T3}, s{S_T3}, s{S_HH}        ; head
        s_lshl_b32 s{S_T2}, s{S_P}, 5
        s_add_u32 s{S_T2}, s{S_T2}, s{S_T3}        ; p*32+head
        s_lshl_b32 s{S_T2}, s{S_T2}, 6
        s_lshl_b32 s{S_KVB}, s{S_C}, 3
        s_add_u32 s{S_T2}, s{S_T2}, s{S_KVB}
        s_lshl_b32 s{S_KVB}, s{S_T2}, 12
        s_lshl_b32 s{S_T2}, s{S_P}, 3
        s_add_u32 s{S_T2}, s{S_T2}, s{S_C}         ; p*8+c
        s_lshl_b32 s{S_OB}, s{S_T2}, 19
        s_lshl_b32 s{S_FO}, s{S_T3}, 10
        s_add_u32 s{S_OB}, s{S_OB}, s{S_FO}
        s_add_u32 s{S_OB}, s{S_OB}, {WS_O}
        s_lshl_b32 s{S_FO}, s{S_T2}, 11
        s_lshl_b32 s{S_T3}, s{S_T3}, 3
        s_add_u32 s{S_FO}, s{S_FO}, s{S_T3}
        s_add_u32 s{S_FO}, s{S_FO}, {WS_FO}
        s_mov_b32 s{S_LO}, {f32bits(2.0**-60)}
        s_mov_b32 s{S_HI}, {f32bits(2.0**60)}
        s_waitcnt lgkmcnt(0)
        s_add_u32 s{S_NON}, s{S_NON}, 1
        s_xor_b32 s{S_TAG}, s{S_NON}, {TAGX}
        """)
    BD = 88; BF = 136; ON = 184; VW = 188; VO = 189; VK = 190; VV = 191; CT = 192; VW2 = 195; VKP = 196; VVP = 197; VFL = 198
    QA = 8; QB = 16; OA = 24; OB = 40; LA = 56; LB = 60; KF = 80; VF = 104; SS = [224, 240]; PP = [128, 152]
    VLS = 194
    def attn_consts0(vl):
        return L(f"""
        v_and_b32 v{CT}, 0x33, v0
        v_bfe_u32 v{CT+1}, v0, 2, 1
        v_lshl_or_b32 v{CT}, v{CT+1}, 3, v{CT}
        v_bfe_u32 v{CT+1}, v0, 3, 1
        v_lshl_or_b32 v{CT}, v{CT+1}, 2, v{CT}
        s_lshl_b32 s{S_T0}, s{S_HH}, 14
        v_lshlrev_b32 v{VK}, 4, v{CT}
        v_add_u32 v{VV}, s{S_T0}, v{vl}
        s_add_u32 s{S_T0}, s{S_T0}, {R_K}
        v_add_u32 v{VK}, s{S_T0}, v{VK}
        s_lshl_b32 s{S_T0}, s{S_HH}, 14
        s_add_u32 s{S_T1}, s{S_T0}, {(R_PREV - R_K) & 0xffffffff:#x}
        v_add_u32 v{VKP}, s{S_T1}, v{VK}
        s_add_u32 s{S_T1}, s{S_T0}, {R_PREV + 2048}
        v_add_u32 v{VVP}, s{S_T1}, v{VV}
        s_add_u32 s{S_T1}, s{S_T0}, {R_Q}
        v_mov_b32 v{VFL}, s{S_T1}
        v_lshrrev_b32 v{CT}, 2, v0
        v_lshrrev_b32 v{CT+1}, 4, v0
        v_xor_b32 v{CT}, v{CT}, v{CT+1}
        v_and_b32 v{CT}, 1, v{CT}
        v_subrev_u32 v{CT}, 1, v{CT}
        v_and_b32 v{ON}, 0x3f803f80, v{CT}
        v_mov_b32 v{ON+1}, v{ON}
        v_mov_b32 v{ON+2}, v{ON}
        v_mov_b32 v{ON+3}, v{ON}
        """)
    def attn_consts1():
        c = L(f"""
        v_and_b32 v{CT}, 31, v0
        v_lshrrev_b32 v{BD}, 5, v0
        v_lshlrev_b32 v{BD}, 3, v{BD}
        v_sub_u32 v{CT}, v{CT}, v{BD}
        s_mov_b32 s{S_T1}, 0xff800000
        """)
        for r in range(16):
            f, u_, e = r >> 3, (r >> 2) & 1, r & 3
            kc = 16*f + 4*u_ + e
            c += [f"v_subrev_u32 v{BD+r}, {kc}, v{CT}", f"v_ashrrev_i32 v{BD+r}, 31, v{BD+r}", f"v_and_b32 v{BD+r}, s{S_T1}, v{BD+r}"]
        return c
    def attn_consts2():
        c = [f"s_mov_b32 s{S_T1}, 0xff800000"]
        c += [f"v_xor_b32 v{BF+r}, s{S_T1}, v{BD+r}" for r in range(16)]
        c += L(f"""
        v_lshrrev_b32 v{CT}, 3, v0
        v_and_b32 v{VW}, 7, v0
        v_bfe_u32 v{VO}, v0, 4, 2
        v_lshlrev_b32 v{VO}, 1, v{VO}
        v_xor_b32 v{VW}, v{VW}, v{VO}
        s_lshr_b32 s{S_T0}, s{S_WID}, 2
        s_lshl_b32 s{S_T0}, s{S_T0}, 20
        s_and_b32 s{S_T1}, s{S_WID}, 3
        s_lshl_b32 s{S_T1}, s{S_T1}, 14
        s_add_u32 s{S_T0}, s{S_T0}, s{S_T1}
        s_lshl_b32 s{S_T1}, s{S_OJ}, 7
        s_add_u32 s{S_T0}, s{S_T0}, s{S_T1}
        v_lshlrev_b32 v{CT}, 11, v{CT}
        v_add_u32 v{CT}, s{S_T0}, v{CT}
        v_lshl_add_u32 v{VW}, v{VW}, 4, v{CT}
        v_xor_b32 v{VW2}, 0x100000, v{VW}
        s_lshl_b32 s{S_LA}, s{S_WID}, 10
        v_and_b32 v{VO}, 15, v0
        v_lshrrev_b32 v{CT}, 5, v0
        v_lshl_add_u32 v{VO}, v{CT}, 4, v{VO}
        v_lshlrev_b32 v{VO}, 4, v{VO}
        v_bfe_u32 v{CT}, v0, 4, 1
        v_lshl_add_u32 v{VO}, v{CT}, 15, v{VO}
        """)
        return c
    D = opts.get("D", 3); MB = 16 - D
    KVS = B_BASE; QS = B_BASE + 32768; A4 = KVS
    qorder = [15, 14, 13] + list(range(12, MB - 1, -1))
    qorder = qorder[:D]
    aslot_q = {}
    for i, b in enumerate(qorder):
        aslot_q[b] = (b % 3) * A_SLOT if b >= 13 else [A4, 0, 2 * A_SLOT, A_SLOT][(i - 3) % 4]
    nst = 32 + D
    items = []
    for u in range(32):
        b, kk = divmod(u, 2)
        if kk == 0:
            for hf in range(2): items.append(dict(need=u, kind="A", blk=b, hf=hf, lds=(b % 3)*A_SLOT + hf*16384, size=16384,
                                                  free=(u + 2) if b < 13 or b not in qorder else 32 + qorder.index(b) + 2))
        if u <= 2*MB: items.append(dict(need=u, kind="B", u=u, lds=B_BASE + (u % 5)*B_SLOT, size=B_SLOT, free=u + 1))
        else: items.append(dict(need=u, kind="KV", u=u, lds=None, size=8192, free=u + 1))
    for i, b in enumerate(qorder):
        if b < 13:
            for hf in range(2): items.append(dict(need=32 + i, kind="A", blk=b, hf=hf, lds=aslot_q[b] + hf*16384, size=16384, free=32 + i + 2))
        for kk in range(2): items.append(dict(need=32 + i, kind="Q", u=2*b + kk, qi=(i, kk), lds=None, size=4096, free=32 + i + 2))
    def after_of(n, lo, size):
        r = -1
        for pv_ in items[:n]:
            if pv_["lds"] < lo + size and lo < pv_["lds"] + pv_["size"]: r = max(r, pv_["free"])
        return r
    for n, it in enumerate(items):
        if it["lds"] is None:
            lo_lim = B_BASE if it["kind"] == "KV" else QS
            cands = range(lo_lim, LDS_BYTES - 8192 - it["size"] + 1, 4096)
            it["lds"] = min(cands, key=lambda lo: (max(after_of(n, lo, it["size"]), it["need"] - 5), lo))
        it["after"] = after_of(n, it["lds"], it["size"])
        assert it["after"] < it["need"], it
        it["n"] = {"A": 4, "B": 3, "KV": 2, "Q": 1}[it["kind"]]
    def kvslot(u): return [it["lds"] for it in items if it["kind"] == "KV" and it["u"] == u][0]
    def qslot(i, kk): return [it["lds"] for it in items if it["kind"] == "Q" and it["qi"] == (i, kk)][0]
    VA = 1; VB = 3; VT = 5
    XF = 8; WF = 40; ACC = 64
    SEG = [1, 1, 2, 2, 0, 0]
    def acc(rb, col): return ACC + (rb * 6 + col) * 4
    def xf(rb): return XF + 4 * rb
    def wf(sl): return WF + 4 * sl
    a(f"""
    s_lshr_b32 s{S_TH}, s{S_WID}, 1
    v_and_b32 v{VT}, 15, v0
    v_lshrrev_b32 v{VT+1}, 4, v0
    v_bfe_u32 v{VT+2}, v0, 1, 3
    v_xor_b32 v{VT+2}, v{VT+2}, v{VT+1}
    v_lshlrev_b32 v{VT+2}, 4, v{VT+2}
    v_lshl_add_u32 v{VT+2}, v{VT}, 7, v{VT+2}
    s_lshl_b32 s{S_T0}, s{S_TH}, 14
    v_add_u32 v{VA}, s{S_T0}, v{VT+2}
    v_xor_b32 v{VA+1}, 64, v{VA}
    v_bfe_u32 v{VT}, v0, 2, 2
    v_lshlrev_b32 v{VB}, 7, v{VT}
    v_and_b32 v{VT}, 3, v0
    v_lshl_add_u32 v{VB}, v{VT}, 3, v{VB}
    v_mul_u32_u24 v{VT}, 3072, v{VT+1}
    v_add_u32 v{VB}, v{VB}, v{VT}
    v_bfe_u32 v{VT}, v0, 3, 2
    s_lshl_b32 s{S_T0}, s{S_HH}, 1
    v_xor_b32 v{VT}, s{S_T0}, v{VT}
    v_lshl_add_u32 v{VB}, v{VT}, 5, v{VB}
    v_add_u32 v{VB}, {B_BASE}, v{VB}
    v_xor_b32 v{VB+1}, 32, v{VB}
    """)
    LOOK = opts.get("look", 4)
    a(f"""
    s_and_b32 s{S_T0}, s{S_HP}, 3
    s_lshl_b32 s{S_T0}, s{S_T0}, 6
    s_lshl_b32 s{S_T1}, s{S_WID}, 4
    s_add_u32 s{S_T0}, s{S_T0}, s{S_T1}
    s_lshl_b32 s{S_T0}, s{S_T0}, 11
    v_lshlrev_b32 v5, 11, v0
    v_add_u32 v5, s{S_T0}, v5
    v_mov_b32 v11, 0x7f000000
    v_cmp_lt_u32 vcc, 15, v0
    v_and_b32 v9, 1, v0
    v_lshrrev_b32 v10, 1, v0
    v_cndmask_b32 v5, v5, v11, vcc
    s_lshl_b32 s{S_T0}, s{S_C}, 3
    s_lshl_b32 s{S_T1}, s{S_WID}, 1
    s_add_u32 s{S_T0}, s{S_T0}, s{S_T1}
    v_add_u32 v6, s{S_T0}, v9
    v_mul_u32_u24 v6, 6144, v6
    v_lshl_add_u32 v6, v10, 11, v6
    s_lshl_b32 s{S_T0}, s{S_HP}, 7
    v_add_u32 v6, s{S_T0}, v6
    v_cmp_lt_u32 vcc, 5, v0
    s_movk_i32 s{S_KA}, {128*LOOK}
    s_mov_b32 s{S_KB}, {64*6144*LOOK}
    v_cndmask_b32 v6, v6, v11, vcc
    s_getpc_b64 s[{S_CODE}:{S_CODE+1}]
    s_mov_b32 s{S_CODE+2}, CODE_END_BYTES
    s_mov_b32 s{S_CODE+3}, 0x20000
    s_lshr_b32 s{S_T0}, s2, 3
    s_and_b32 s{S_T0}, s{S_T0}, 7
    s_lshl_b32 s{S_T0}, s{S_T0}, 2
    s_add_u32 s{S_T0}, s{S_T0}, s{S_WID}
    s_mul_i32 s{S_T0}, s{S_T0}, {CODE_LINES // 32 * 128}
    v_lshlrev_b32 v12, 7, v0
    v_add_u32 v12, s{S_T0}, v12
    v_cmp_lt_u32 vcc, 15, v0
    s_nop 1
    v_cndmask_b32 v12, v12, v11, vcc
    """)
    a(f"""
    s_and_b32 s{S_T0}, s{S_OC}, 1
    s_lshl_b32 s{S_T0}, s{S_T0}, 9
    s_mul_i32 s{S_T1}, s{S_WID}, 10
    s_add_u32 s{S_T0}, s{S_T0}, s{S_T1}
    s_lshl_b32 s{S_T0}, s{S_T0}, 11
    s_lshl_b32 s{S_T1}, s{S_OJ}, 7
    s_add_u32 s{S_QB}, s{S_T0}, s{S_T1}
    v_cmp_lt_u32 vcc, 9, v0
    v_lshlrev_b32 v0, 11, v0
    s_nop 0
    v_cndmask_b32 v0, v0, v11, vcc
    """)
    a("L_pcref:")
    common_setup()
    for r in range(ACC, 256):
        a(f"v_mov_b32 v{r}, 0")
    a(f"""
    s_mov_b32 s{S_ASL}, 0
    s_mov_b32 s{S_BSL}, 0
    s_mov_b32 s{S_CNT}, {MB}
    s_barrier
    """)
    stamp(1)
    VTOUCH = opts.get("vtouch", 0)
    for b in range(3, LOOK if VTOUCH else 0):
        a(f"s_mov_b32 s{S_T0}, {64*6144*b}")
        a(f"buffer_load_dword v7, v6, {sr(S_W,4)}, s{S_T0} offen")
        a(f"buffer_load_dword v7, v5, {sr(S_X,4)}, 0 offen offset:{128*b}")
    if opts.get("codetouch", 1):
        a(f"buffer_load_dword v7, v12, {sr(S_CODE,4)}, 0 offen")
    def rdX(rb, va, off=0):
        a.lds(f"ds_read_b128 {vr(xf(rb),4)}, v{va} offset:{2048*rb+off}", f"x{rb}")
    def rdW(sl, col, half, off=0):
        a.lds(f"ds_read_b64_tr_b16 {vr(wf(sl)+2*half,2)}, v{VB+(col&1)} offset:{off+SEG[col]*1024+half*512}", f"w{sl}")
    def mf(rb, col, sl):
        d = vr(acc(rb, col), 4)
        if col in (2, 3):
            a(f"v_mfma_f32_16x16x32_bf16 {d}, {vr(xf(rb),4)}, {vr(wf(sl),4)}, {d}")
        else:
            a(f"v_mfma_f32_16x16x32_bf16 {d}, {vr(wf(sl),4)}, {vr(xf(rb),4)}, {d}")
    for c in range(3):
        rdW(c, c, 0); rdW(c, c, 1)
    for rb in range(8): rdX(rb, VA)
    q0 = list(a.q)
    a("L_cloop:")
    for kk in range(2):
        pend = [(c, h) for c in (3, 4, 5) for h in (0, 1)]
        for rb in range(8):
            a.wait_lds("w0", "w1", "w2", f"x{rb}") if rb == 0 else a.wait_lds(f"x{rb}")
            for c in range(3):
                mf(rb, c, c)
                if pend and rb < 3:
                    cc, h = pend.pop(0); rdW(cc, cc, h)
            if rb == 3:
                a(f"""
                s_add_u32 s{S_T0}, s{S_BSL}, {B_SLOT}
                s_cmp_eq_u32 s{S_T0}, {5*B_SLOT}
                s_cselect_b32 s{S_T0}, 0, s{S_T0}
                s_sub_u32 s{S_DB}, s{S_T0}, s{S_BSL}
                s_mov_b32 s{S_BSL}, s{S_T0}
                """)
            if rb == 4:
                a(f"v_add_u32 v{VB}, s{S_DB}, v{VB}")
                a(f"v_add_u32 v{VB+1}, s{S_DB}, v{VB+1}")
            if rb == 5 and kk == 0 and VTOUCH:
                a(f"""
                buffer_load_dword v7, v6, {sr(S_W,4)}, s{S_KB} offen
                s_add_u32 s{S_KB}, s{S_KB}, {64*6144}
                """)
            if rb == 6 and kk == 0 and VTOUCH:
                a(f"""
                buffer_load_dword v7, v5, {sr(S_X,4)}, s{S_KA} offen
                s_add_u32 s{S_KA}, s{S_KA}, 128
                s_cmp_lt_u32 s{S_KA}, 2048
                s_cselect_b32 s{S_KA}, s{S_KA}, 0x1000000
                """)
            if rb == 3 and kk == 1 and opts.get("wotouch", 0):
                a(f"""
                buffer_load_dword v7, v0, {sr(S_WO,4)}, s{S_QB} offen
                s_add_u32 s{S_QB}, s{S_QB}, {40*2048}
                """)
            if rb == 5 and kk == 1:
                a(f"""
                s_add_u32 s{S_T0}, s{S_ASL}, {A_SLOT}
                s_cmp_eq_u32 s{S_T0}, {3*A_SLOT}
                s_cselect_b32 s{S_T0}, 0, s{S_T0}
                s_sub_u32 s{S_DA}, s{S_T0}, s{S_ASL}
                s_mov_b32 s{S_ASL}, s{S_T0}
                """)
            if rb == 6 and kk == 1:
                a(f"v_add_u32 v{VA}, s{S_DA}, v{VA}")
                a(f"v_add_u32 v{VA+1}, s{S_DA}, v{VA+1}")
        a.wait_lds_all()
        a("s_barrier")
        pend = [(c, h) for c in (0, 1, 2) for h in (0, 1)]
        for rb in range(8):
            for c in range(3, 6):
                mf(rb, c, c)
                if rb == 0:
                    for _ in range(2):
                        cc, h = pend.pop(0); rdW(cc, cc, h)
            rdX(rb, VA + (kk ^ 1))
            if rb == 6 and kk == 1:
                a(f"s_sub_u32 s{S_CNT}, s{S_CNT}, 1")
                a(f"s_cmp_lg_u32 s{S_CNT}, 0")
        assert a.q == q0, (a.q, q0)
    a("s_cbranch_scc1 L_cloop")
    qsave = list(a.q); stamp("main"); a.q = qsave
    VAH = 56; VLN = 58; VG2 = 59; VQ = 60
    u0 = 2 * MB
    a(f"""
    v_mbcnt_lo_u32_b32 v0, -1, 0
    v_mbcnt_hi_u32_b32 v0, -1, v0
    v_add_u32 v{VA}, {(-(MB % 3)*A_SLOT) & 0xffffffff:#x}, v{VA}
    v_add_u32 v{VA+1}, {(-(MB % 3)*A_SLOT) & 0xffffffff:#x}, v{VA+1}
    v_add_u32 v{VB}, {(-(u0 % 5)*B_SLOT) & 0xffffffff:#x}, v{VB}
    v_add_u32 v{VB+1}, {(-(u0 % 5)*B_SLOT) & 0xffffffff:#x}, v{VB+1}
    """)
    def rdXs(rb, slot, kk):
        if slot < 65536: rdX(rb, VA + kk, slot)
        else: rdX(rb, VAH + kk, slot - 65536)
    def rdWkv(sl, col, half, u):
        a.lds(f"ds_read_b64_tr_b16 {vr(wf(sl)+2*half,2)}, v{VB+(col&1)} offset:{kvslot(u)-B_BASE+(col>>1)*1024+half*512}", f"w{sl}")
    def rdWq(sl, j, half, i, kk):
        a.lds(f"ds_read_b64_tr_b16 {vr(wf(sl)+2*half,2)}, v{VQ+j} offset:{qslot(i,kk)-B_BASE+half*512}", f"w{sl}")
    for u in range(u0, 32):
        blk, kk = divmod(u, 2)
        pend = [(3, 0), (3, 1)] if u == u0 else [(2, 0), (2, 1), (3, 0), (3, 1)]
        for rb in range(8):
            a.wait_lds("w0", "w1", f"x{rb}") if rb == 0 else a.wait_lds(f"x{rb}")
            for c in range(2):
                mf(rb, c, c)
                if pend:
                    cc, h = pend.pop(0)
                    if u == u0: rdW(cc, cc, h, (u0 % 5) * B_SLOT)
                    else: rdWkv(cc, cc, h, u)
            if u == u0 and rb == 2:
                a(f"""
                v_add_u32 v{VAH}, 0x10000, v{VA}
                v_add_u32 v{VAH+1}, 0x10000, v{VA+1}
                v_lshrrev_b32 v{VG2}, 4, v0
                v_lshlrev_b32 v{VG2}, 10, v{VG2}
                v_sub_u32 v{VB}, v{VB}, v{VG2}
                v_sub_u32 v{VB+1}, v{VB+1}, v{VG2}
                v_sub_u32 v{VQ}, v{VB}, v{VG2}
                v_sub_u32 v{VQ+1}, v{VB+1}, v{VG2}
                v_lshlrev_b32 v{VLN}, 4, v0
                """)
            if kk == 0 and rb == 5 and blk + LOOK < 16 and VTOUCH:
                a(f"buffer_load_dword v7, v6, {sr(S_W,4)}, s{S_KB} offen")
                a(f"s_add_u32 s{S_KB}, s{S_KB}, {64*6144}")
            if kk == 0 and rb == 6 and blk + LOOK < 16 and VTOUCH:
                a(f"buffer_load_dword v7, v5, {sr(S_X,4)}, s{S_KA} offen")
                a(f"s_add_u32 s{S_KA}, s{S_KA}, 128")
        a.wait_lds_all()
        a("s_barrier")
        for rb in range(8):
            for c in (2, 3):
                mf(rb, c, c)
                if rb == 0:
                    for h in range(2):
                        if u < 31: rdWkv(c - 2, c - 2, h, u + 1)
                        else: rdWq(c - 2, c - 2, h, 0, 0)
            if u < 31: rdXs(rb, (((u + 1) // 2) % 3) * A_SLOT, (u + 1) % 2)
            else: rdXs(rb, aslot_q[qorder[0]], 0)
    qsave = list(a.q); stamp(2); a.q = qsave
    a(f"s_cmp_eq_u32 s{S_TH}, 1")
    a(f"s_cselect_b64 vcc, -1, 0")
    S_G = S_ASL; S_LK = S_KB
    KVSC = ["", " sc1", " nt", " sc0"][opts.get("kvsc", 1)]
    def pack(rd, ra, rb_):
        return [f"v_cvt_pk_bf16_f32 v{rd}, v{ra}, v{ra+1}", f"v_cvt_pk_bf16_f32 v{rd+1}, v{ra+2}, v{ra+3}",
                f"v_cvt_pk_bf16_f32 v{rd+2}, v{rb_}, v{rb_+1}", f"v_cvt_pk_bf16_f32 v{rd+3}, v{rb_+2}, v{rb_+3}"]
    def swap(ra):
        return [f"v_permlane16_swap_b32 v{ra}, v{ra+2}", f"v_permlane16_swap_b32 v{ra+1}, v{ra+3}"]
    frs = []
    for tb in range(4):
        frs.append((acc(2*tb, 0), acc(2*tb, 0), acc(2*tb+1, 0), tb, 0))
        frs.append((acc(2*tb, 1), acc(2*tb, 1), acc(2*tb+1, 1), tb, 1))
        frs.append((acc(2*tb, 2), acc(2*tb, 2), acc(2*tb, 3), tb, 2))
        frs.append((acc(2*tb, 3), acc(2*tb+1, 2), acc(2*tb+1, 3), tb, 3))
    side = L(f"""
    s_lshl_b32 s{S_T0}, s{S_TH}, 14
    s_add_u32 s{S_G}, s{S_KVB}, s{S_T0}
    s_lshl_b32 s{S_T1}, s{S_HH}, 14
    s_lshl_b32 s{S_T0}, s{S_TH}, 13
    s_add_u32 s{S_LK}, s{S_T1}, s{S_T0}
    s_mov_b32 s{S_M0}, {f32bits(QSCALE)}
    s_mov_b32 s{S_M0+1}, {f32bits(QSCALE)}
    v_add_u32 v{VG2}, s{S_LK}, v{VLN}
    v_add_u32 v{VG2+3}, {R_K}, v{VG2}
    v_add_u32 v{VG2+4}, {LDS_BYTES - 8192}, v{VLN}
    """)
    for i, fr in enumerate(frs + [None]):
        if fr is not None: side += pack(fr[0], fr[1], fr[2])
        else: side += ["s_nop 1"]
        if i >= 1: side += swap(frs[i-1][0]) + [("ready", i - 1)]
    C_LDS = LDS_BYTES - 8192
    assert all(it["lds"] + it["size"] <= C_LDS for it in items if it["free"] > 31)
    side += attn_consts0(VLN) + attn_consts2()[17:]
    cread = [f"ds_read_b128 {vr((BD if i < 4 else BF) + 4*(i%4), 4)}, v{VG2+4} offset:{1024*i}" for i in range(8)]
    ready = set()
    stores = list(range(16))
    qfr = [(acc(2*tb, 4+f), acc(2*tb+1, 4+f), tb, f) for tb in range(4) for f in range(2)]
    def emit_side(n):
        while side and n > 0:
            x = side.pop(0)
            if isinstance(x, tuple): ready.add(x[1])
            else: a(x); n -= 1
    assert D == 3
    nm = 32 * D
    NSQ = opts.get("nsq", 6)
    st_first, st_last = opts.get("st0", 8), nm - opts.get("st1", 8)
    done = 0
    kw = [i for i in range(16) if frs[i][4] < 2]; vw = [i for i in range(16) if frs[i][4] >= 2]
    def kv_store(vl):
        rd, _, _, tb, sl = frs[stores.pop(0)]
        a(f"s_add_u32 s{S_T3}, s{S_G}, {tb*4096}")
        a(f"buffer_store_dwordx4 {vr(rd,4)}, v{vl}, {sr(S_WS,4)}, s{S_T3} offen offset:{sl*1024}{KVSC}")
    early = list(range(16))
    st_mid = opts.get("stm", 56); st_pub = opts.get("stp", 90)
    gid = [0]
    def guarded_store(i, cond):
        gid[0] += 1
        rd, _, _, tb, sl = frs[i]
        a(f"s_cbranch_vcc{cond} L_gs{gid[0]}")
        a(f"s_add_u32 s{S_T3}, s{S_G}, {tb*4096}")
        a(f"buffer_store_dwordx4 {vr(rd,4)}, v{VLN}, {sr(S_WS,4)}, s{S_T3} offen offset:{sl*1024}{KVSC}")
        a(f"L_gs{gid[0]}:")
    def publish(vt):
        a(f"""
        s_lshl_b32 s{S_T0}, s{S_P}, 7
        s_lshl_b32 s{S_T1}, s{S_HP}, 3
        s_add_u32 s{S_T0}, s{S_T0}, s{S_T1}
        s_add_u32 s{S_T0}, s{S_T0}, s{S_C}
        s_lshl_b32 s{S_T0}, s{S_T0}, 7
        s_lshl_b32 s{S_T1}, s{S_WID}, 3
        s_add_u32 s{S_T0}, s{S_T0}, s{S_T1}
        s_add_u32 s{S_T0}, s{S_T0}, {WS_FKV}
        v_mov_b32 v{vt}, s{S_NON}
        v_mov_b32 v{vt+1}, s{S_TAG}
        v_mov_b32 v{vt+2}, 0
        s_sub_u32 s{S_KA}, s{S_T0}, 128
        s_waitcnt vmcnt(0)
        s_mov_b64 exec, 1
        buffer_store_dwordx2 v[{vt}:{vt+1}], v{vt+2}, {sr(S_WS,4)}, s{S_T0} offen sc1
        s_mov_b64 exec, -1
        s_nop 3
        """)
        qs = list(a.q); stamp("pub"); a.q = qs
    def stage(lst):
        rd, _, _, tb, sl = frs[lst.pop(0)]
        a.lds(f"ds_write_b128 v{VG2 if sl >= 2 else VG2+3}, {vr(rd,4)} offset:{tb*2048+(sl&1)*1024}", "kw")
    for i, b in enumerate(qorder):
        last = (i == D - 1)
        for kk in range(2):
            cur = (0, 1) if kk == 0 else (2, 3)
            if kk == 0: pend = [(2, 0, 0), (2, 0, 1), (3, 1, 0), (3, 1, 1)]
            else: pend = [] if last else [(0, 0, 0), (0, 0, 1), (1, 1, 0), (1, 1, 1)]
            if kk == 1 and not last: a("s_barrier")
            for rb in range(8):
                a.wait_lds(f"w{cur[0]}", f"w{cur[1]}", f"x{rb}") if rb == 0 else a.wait_lds(f"x{rb}")
                for j in range(2):
                    mf(rb, 4 + j, cur[j])
                    if pend:
                        sl, jj, h = pend.pop(0)
                        rdWq(sl, jj, h, i, 1) if kk == 0 else rdWq(sl, jj, h, i + 1, 0)
                    done += 1
                    if done > 2: emit_side(opts.get('spm', 2))
                    if early and early[0] in ready and done >= st_first + (st_mid - st_first) * (16 - len(early)) // 16:
                        guarded_store(early.pop(0), "z")
                    if done == st_pub:
                        a("s_cbranch_vccz L_nopub1"); publish(4); a("L_nopub1:")
                    nst_done = 16 - len(stores)
                    if nst_done < NSQ and done >= st_mid + (st_last - st_mid) * nst_done // NSQ:
                        guarded_store(stores.pop(0), "nz")
                    if j == 1 and kw and kw[0] in ready: stage(kw)
                    if j == 1 and last and vw and not kw: stage(vw)
                    if j == 0 and last and cread and 15 in ready: a.lds(cread.pop(0), "cr")
                if kk == 0: rdXs(rb, aslot_q[b], 1)
                elif not last: rdXs(rb, aslot_q[qorder[i+1]], 0)
                if last and kk == 1 and rb >= 3 and rb % 2 == 1:
                    a("s_nop 1")
                    for f in range(2):
                        ra, rb_, _, _ = qfr[(rb - 3) + f]
                        for r in (ra, ra+2, rb_, rb_+2):
                            a(f"v_pk_mul_f32 v[{r}:{r+1}], v[{r}:{r+1}], s[{S_M0}:{S_M0+1}]")
                        for x in pack(ra, ra, rb_): a(x)
                    a("s_nop 0")
                    for f in range(2):
                        for x in swap(qfr[(rb - 3) + f][0]): a(x)
    assert not early and not cread and not side and not kw and not vw and len(stores) == 16 - NSQ, (len(side), stores, kw, vw)
    deferred = list(stores)
    a.wait_lds_all()
    stamp("qend")
    a("s_barrier")
    a(f"v_add_u32 v{VG2+1}, {R_Q}, v{VG2}")
    for f in range(2):
        ra, rb_, _, _ = qfr[6 + f]
        for r in (ra, ra+2, rb_, rb_+2):
            a(f"v_pk_mul_f32 v[{r}:{r+1}], v[{r}:{r+1}], s[{S_M0}:{S_M0+1}]")
        for x in pack(ra, ra, rb_): a(x)
    for i in range(6):
        r, _, tb, f = qfr[i]
        a(f"ds_write_b128 v{VG2+1}, {vr(r,4)} offset:{tb*2048+f*1024}")
    for f in range(2):
        for x in swap(qfr[6 + f][0]): a(x)
    a(f"v_mov_b32 v1, v{VLN}")
    for i in (6, 7):
        r, _, tb, f = qfr[i]
        a(f"ds_write_b128 v{VG2+1}, {vr(r,4)} offset:{tb*2048+f*1024}")
    a("s_setprio 1")
    a("s_branch L_attn")
    a("L_loader:")
    if stamps: a("\n".join(f"s_mov_b32 s{r}, s4" for r in [5, 6, 7, 8, 9, 14]))
    VOA = 2; VOB = 6
    a(f"""
    s_sub_u32 s{S_T3}, s{S_WID}, 4
    v_lshrrev_b32 v10, 3, v0
    v_and_b32 v11, 7, v0
    v_lshrrev_b32 v12, 1, v10
    v_xor_b32 v13, v11, v12
    v_xor_b32 v14, 4, v13
    s_lshl_b32 s{S_T0}, s{S_T3}, 16
    v_lshlrev_b32 v15, 11, v10
    v_add_u32 v15, s{S_T0}, v15
    v_lshl_add_u32 v{VOA}, v13, 4, v15
    v_lshl_add_u32 v{VOA+1}, v14, 4, v15
    v_add_u32 v{VOA+1}, {16384-1024}, v{VOA+1}
    v_add_u32 v{VOA+2}, {2*(16384-1024)}, v{VOA}
    v_add_u32 v{VOA+3}, {2*(16384-1024)}, v{VOA+1}
    s_lshl_b32 s{S_LA}, s{S_T3}, 12
    """)
    def issue(it, tag):
        k = it["kind"]
        if k == "A":
            a(f"s_mov_b32 s{S_KA}, {it['hf']*128*2048 + it['blk']*128}")
            a(f"s_add_u32 m0, s{S_LA}, {it['lds']}")
            a("s_nop 0")
            for i in range(4): a.vm(f"buffer_load_dwordx4 v{VOA+i}, {sr(S_X,4)}, s{S_KA} offen offset:{1024*i} lds", tag)
        elif k == "B":
            a(f"s_mov_b32 s{S_KB}, {it['u']*32*6144}")
            a(f"s_add_u32 m0, s{S_LB}, {it['lds']}")
            a("s_nop 0")
            for i in range(3): a.vm(f"buffer_load_dwordx4 v{VOB+i}, {sr(S_W,4)}, s{S_KB} offen offset:{1024*i} lds", tag)
        elif k == "KV":
            a(f"s_mov_b32 s{S_KB}, {it['u']*32*6144 + 1024}")
            a(f"s_add_u32 m0, s{S_ASL}, {it['lds']}")
            a("s_nop 0")
            for i in range(2): a.vm(f"buffer_load_dwordx4 v{VOB+1+i}, {sr(S_W,4)}, s{S_KB} offen offset:{1024*i} lds", tag)
        else:
            a(f"s_mov_b32 s{S_KB}, {it['u']*32*6144}")
            a(f"s_add_u32 m0, s{S_BSL}, {it['lds']}")
            a("s_nop 0")
            a.vm(f"buffer_load_dwordx4 v{VOB}, {sr(S_W,4)}, s{S_KB} offen lds", tag)
    a.vq = []
    issue(items[0], "n0")
    a(f"""
    v_and_b32 v12, 1, v12
    s_and_b32 s{S_T0}, s{S_T3}, 1
    s_lshl_b32 s{S_T0}, s{S_T0}, 1
    v_or_b32 v12, s{S_T0}, v12
    v_lshlrev_b32 v12, 1, v12
    v_xor_b32 v13, v11, v12
    s_mul_i32 s{S_T0}, s{S_T3}, {8*6144}
    s_lshl_b32 s{S_T1}, s{S_HP}, 7
    s_add_u32 s{S_T0}, s{S_T0}, s{S_T1}
    v_mul_u32_u24 v15, 6144, v10
    v_add_u32 v15, s{S_T0}, v15
    v_lshl_add_u32 v{VOB}, v13, 4, v15
    v_add_u32 v{VOB+1}, {2048-1024}, v{VOB}
    v_add_u32 v{VOB+2}, {2*(2048-1024)}, v{VOB}
    s_mul_i32 s{S_LB}, s{S_T3}, 3072
    s_lshl_b32 s{S_ASL}, s{S_T3}, 11
    s_lshl_b32 s{S_BSL}, s{S_T3}, 10
    """)
    st_sched = {}
    def ST(k, x):
        st_sched.setdefault(k, []).append(x)
        if x.startswith("s_load") and opts.get("s2", 1):
            head, off = x.rsplit(", ", 1)
            st_sched[k].append(f"{head}, {int(off) + 64}")
    TW, TX, TO, TO2 = 16, 18, 20, 24
    if opts.get("stouch", 1):
        lead = opts.get("slead", 8)
        for i in range(8):
            k = max(4*i - lead, i)
            for seg in range(3): ST(k, f"s_load_dword s22, s[{TW}:{TW+1}], {seg*2048}")
            ST(k, f"s_add_u32 s{TW}, s{TW}, {128*6144}"); ST(k, f"s_addc_u32 s{TW+1}, s{TW+1}, 0")
        for j in range(16): ST(j // 8, f"s_load_dword s22, s[{TX}:{TX+1}], {j*2048 + 3*128}")
        for j in range(16): ST(opts.get("sx11", 6) + j // 2, f"s_load_dword s22, s[{TX}:{TX+1}], {j*2048 + 11*128}")
        for j in range(16): ST(opts.get("swo", 14) + j // 2, f"s_load_dword s22, s[{TO}:{TO+1}], {(j//2)*2048 + (3 + 8*(j&1))*128}")
        woa = opts.get("woa", 16)
        if woa < 16:
            R = (16 - woa) * 32 // 128
            lst = [(kh, j, l) for kh in range(2) for j in range(R) for l in range(16) if l % 8 != 3]
            k0, k1 = opts.get("wk0", 14), opts.get("wk1", 31)
            for i, (kh, j, l) in enumerate(lst):
                ST(k0 + i * (k1 - k0) // len(lst), f"s_load_dword s22, s[{TO2}:{TO2+1}], {kh*512*2048 + j*2048 + l*128 - 0x80000}")
    def st_setup():
        a(f"""
        s_lshr_b32 s{S_T0}, s2, 3
        s_lshl_b32 s{S_T0}, s{S_T0}, 2
        s_add_u32 s{S_T0}, s{S_T0}, s{S_WID}
        s_sub_u32 s{S_T0}, s{S_T0}, 4              ; n = slot*4 + w
        s_mul_i32 s{S_T1}, s{S_T0}, 6144
        s_or_b32 s{S_T2}, s{S_HP}, 3
        s_lshl_b32 s{S_T2}, s{S_T2}, 7
        s_add_u32 s{S_T1}, s{S_T1}, s{S_T2}
        s_add_u32 s{TW}, s{S_W}, s{S_T1}
        s_addc_u32 s{TW+1}, s{S_W+1}, 0
        s_lshl_b32 s{S_T1}, s{S_T0}, 15
        s_lshl_b32 s{S_T2}, s{S_C}, 19
        s_sub_u32 s{TX}, s{S_X}, s{S_T2}
        s_subb_u32 s{TX+1}, s{S_X+1}, 0
        s_add_u32 s{TX}, s{TX}, s{S_T1}
        s_addc_u32 s{TX+1}, s{TX+1}, 0
        s_lshl_b32 s{S_T1}, s{S_T0}, 14
        s_add_u32 s{TO}, s{S_WO}, s{S_T1}
        s_addc_u32 s{TO+1}, s{S_WO+1}, 0
        s_mul_i32 s{S_T1}, s{S_T0}, {(16 - opts.get("woa", 16)) * 32 // 128 * 2048}
        s_add_u32 s{S_T1}, s{S_T1}, {32 * opts.get("woa", 16) * 2048 + 0x80000}
        s_add_u32 s{TO2}, s{S_WO}, s{S_T1}
        s_addc_u32 s{TO2+1}, s{S_WO+1}, 0
        """)
    pendq = items[1:]
    for k in range(-1, nst):
        budget = 24 if k < 0 else (opts.get("bud", 7) if k < 31 else 10)
        for it in list(pendq):
            if it["after"] <= k and it["need"] <= k + 6 and (budget >= it["n"] or it["need"] <= k + 2):
                pendq.remove(it); issue(it, f"n{it['need']}"); budget -= it["n"]
        if k == -1:
            common_setup(); st_setup()
        for x in st_sched.get(k, []): a(x)
        if k == opts.get("wvt", 99):
            a(f"""
            s_and_b32 s{S_T0}, s{S_OC}, 1
            s_lshl_b32 s{S_T0}, s{S_T0}, 2
            s_add_u32 s{S_T0}, s{S_T0}, s{S_WID}
            s_sub_u32 s{S_T0}, s{S_T0}, 4
            s_lshl_b32 s{S_T0}, s{S_T0}, 18
            s_lshl_b32 s{S_T1}, s{S_OJ}, 7
            s_add_u32 s{S_T0}, s{S_T0}, s{S_T1}
            v_lshlrev_b32 v9, 11, v0
            s_add_u32 s{S_T1}, s{S_T0}, 0x20000
            """)
            a.vm(f"buffer_load_dword v10, v9, {sr(S_WO,4)}, s{S_T0} offen", "wt")
            a.vm(f"buffer_load_dword v10, v9, {sr(S_WO,4)}, s{S_T1} offen", "wt")
        if k == 32:
            a("v_lshlrev_b32 v1, 4, v0")
            for x in attn_consts0(1) + attn_consts1() + attn_consts2(): a(x)
            a(f"v_add_u32 v{CT}, {LDS_BYTES - 8192}, v1")
            for i in range(8): a(f"ds_write_b128 v{CT}, {vr((BD if i < 4 else BF) + 4*(i%4), 4)} offset:{1024*i}")
            a("s_waitcnt lgkmcnt(0)")
        if k + 1 < nst:
            assert not any(it["need"] <= k + 1 for it in pendq), k
            a.wait_vm(*[f"n{j}" for j in range(k + 2)])
            a("s_barrier")
    assert not pendq and set(a.vq) <= {"wt"}, (pendq, a.vq)
    a("s_barrier")
    VL = 1; VT = 4
    a("L_attn:")
    a(f"""
    s_lshr_b32 s{S_T0}, s{S_WID}, 1
    s_waitcnt lgkmcnt(0)
    s_barrier
    """)
    stamp(3)
    a(f"""
    s_cmp_eq_u32 s{S_T0}, 1
    s_cbranch_scc1 L_u1
    s_cmp_eq_u32 s{S_T0}, 2
    s_cbranch_scc1 L_u2
    s_cmp_eq_u32 s{S_T0}, 3
    s_cbranch_scc1 L_u3
    """)
    def wo_dma(step, vw=VW, both=False):
        a(f"s_add_u32 m0, s{S_LA}, {wo_slot(step)}")
        a(f"s_mov_b32 s{S_T3}, {step*32*2048}")
        a.vm(f"buffer_load_dwordx4 v{vw}, {sr(S_WO,4)}, s{S_T3} offen lds", f"d{step}")
        if both:
            a(f"s_xor_b32 s{S_T2}, s{S_LA}, 4096")
            a(f"s_add_u32 m0, s{S_T2}, {wo_slot(step)}")
            a("s_nop 0")
            a.vm(f"buffer_load_dwordx4 v{VW2}, {sr(S_WO,4)}, s{S_T3} offen lds", f"d{step}")
    def run_tasks(tasks, hooks, first_touch):
        n = len(tasks)
        def rdK(i):
            for f in range(2):
                a.lds(f"ds_read_b128 {vr(KF+4*f,4)}, v{VKP if tasks[i][4] else VK} offset:{tasks[i][1]+1024*f}", f"k{f}")
        def rdV(i):
            for f in range(2):
                a.lds(f"ds_read_b128 {vr(VF+4*f,4)}, v{VVP if tasks[i][4] else VV} offset:{tasks[i][2]+1024*f}", f"v{f}")
        def qk(i, f):
            u, _, _, bias, _ = tasks[i]
            q = QA if u == "A" else QB
            s = vr(SS[i % 2], 16)
            c = s if f else (vr(bias, 16) if bias is not None else "0")
            a.wait_lds(f"k{f}")
            a(f"v_mfma_f32_32x32x16_bf16 {s}, {vr(KF+4*f,4)}, {vr(q+4*f,4)}, {c}")
        def pv(i, f):
            u = tasks[i][0]
            o = vr(OA if u == "A" else OB, 16)
            c = "0" if (u in first_touch and f == 0) else o
            a.wait_lds(f"v{f}")
            a(f"v_mfma_f32_32x32x16_bf16 {o}, {vr(VF+4*f,4)}, {vr(PP[i%2]+4*f,4)}, {c}")
        def sm(i, f):
            u = tasks[i][0]
            l = vr(LA if u == "A" else LB, 4)
            c = l
            if u in first_touch and f == 0:
                c = "0"; first_touch.discard(u)
            a(f"v_mfma_f32_16x16x32_bf16 {l}, {vr(ON,4)}, {vr(PP[i%2]+4*f,4)}, {c}")
        rdK(0)
        qk(0, 0); qk(0, 1)
        if n > 1: rdK(1)
        for i in range(n + 1):
            for h in hooks.get(i, []): h()
            s = SS[i % 2]; p = PP[i % 2]
            ex = [f"v_exp_f32 v{s+r}, v{s+r}" for r in range(16)] if i < n else []
            cv = [f"v_cvt_pk_bf16_f32 v{p+j}, v{s+2*j}, v{s+2*j+1}" for j in range(8)] if i < n else []
            def E(k):
                for _ in range(k):
                    if ex: a(ex.pop(0))
            def C(k):
                for _ in range(k):
                    if cv: a(cv.pop(0))
            if i + 1 < n: qk(i+1, 0)
            if i == 0: a("s_nop 7"); a("s_nop 3")
            if i == n: a("s_nop 1")
            E(3)
            if i >= 1: pv(i-1, 0)
            E(3)
            if i + 1 < n:
                qk(i+1, 1)
                if i + 2 < n: rdK(i+2)
            E(3)
            if i >= 1: pv(i-1, 1)
            if i < n: rdV(i)
            E(3); C(2)
            if i >= 1: sm(i-1, 0)
            E(4); C(1)
            if i >= 1: sm(i-1, 1)
            C(5)
    uid = [0]
    def finalize(U, qb_expr):
        O, Ls = (OA, LA) if U == "A" else (OB, LB)
        uid[0] += 1
        a(f"""
        {qb_expr}
        s_nop 3
        v_cmp_le_f32 s[{S_M0}:{S_M0+1}], s{S_LO}, v{Ls}
        v_cmp_ge_f32 s[{S_M1}:{S_M1+1}], s{S_HI}, v{Ls}
        s_lshl_b32 s{S_T0}, s{S_QB}, 16
        s_add_u32 s{S_T0}, s{S_T0}, s{S_OB}
        s_and_b64 s[{S_M0}:{S_M0+1}], s[{S_M0}:{S_M0+1}], s[{S_M1}:{S_M1+1}]
        s_cmp_eq_u64 s[{S_M0}:{S_M0+1}], -1
        s_cbranch_scc1 L_ok{uid[0]}
        s_call_b64 s[{S_RET}:{S_RET+1}], L_slow{U}
        L_ok{uid[0]}:
        v_rcp_f32 v{Ls+1}, v{Ls}
        s_nop 0
        """)
        for r in range(16): a(f"v_mul_f32 v{O+r}, v{O+r}, v{Ls+1}")
        for j in range(8): a(f"v_cvt_pk_bf16_f32 v{O+j}, v{O+2*j}, v{O+2*j+1}")
        a.vm(f"buffer_store_dwordx4 {vr(O,4)}, v{VO}, {sr(S_WS,4)}, s{S_T0} offen sc1", "o" + U)
        a.vm(f"buffer_store_dwordx4 {vr(O+4,4)}, v{VO}, {sr(S_WS,4)}, s{S_T0} offen offset:512 sc1", "o" + U)
    def o_flag(U, qb_expr, alt=None):
        VT = 4 if alt is None else 48
        a(f"""
        {qb_expr}
        s_lshl_b32 s{S_T0}, s{S_QB}, 8
        s_add_u32 s{S_T0}, s{S_T0}, s{S_FO}
        v_mov_b32 v{VT}, s{S_NON}
        v_mov_b32 v{VT+1}, s{S_TAG}
        v_mov_b32 v{VT+2}, 0
        """)
        a.wait_vm("o" + U)
        a("s_mov_b64 exec, 1")
        a.vm(f"buffer_store_dwordx2 v[{VT}:{VT+1}], v{VT+2}, {sr(S_WS,4)}, s{S_T0} offen sc1", "fl")
        a("s_mov_b64 exec, -1")
        a("s_nop 3")
        if U == "B":
            qs = list(a.q); stamp("ofl"); a.q = qs
    VR = 8; VPL = 12; VOUT = 13; VL2 = 14; VRD = 15
    WFR = 16; TMP = 48; ACB = [224, 128]
    ORING = [64, 72, 112, 120, 160, 168, 176, 200, 208, 216]
    OSC = " sc1"
    OPRE = opts.get("opre", 6)
    OAH = opts.get("oahead", 8)
    def ofr(g): return ORING[g % 10]
    def p3_pre():
        a(f"""
        s_lshr_b32 s{S_TH}, s{S_WID}, 2
        s_and_b32 s{S_DB}, s{S_WID}, 3
        s_lshl_b32 s{S_T0}, s{S_P}, 3
        s_add_u32 s{S_T0}, s{S_T0}, s{S_OC}
        s_lshl_b32 s{S_T1}, s{S_T0}, 3
        s_add_u32 s{S_T1}, s{S_T1}, s{S_DB}
        s_lshl_b32 s{S_KB}, s{S_T1}, 8
        s_lshl_b32 s{S_T2}, s{S_TH}, 7
        s_add_u32 s{S_KB}, s{S_KB}, s{S_T2}
        s_add_u32 s{S_KB}, s{S_KB}, {WS_FO}
        v_and_b32 v7, 15, v0
        v_lshlrev_b32 v7, 3, v7
        s_lshl_b32 s{S_KA}, s{S_T1}, 16
        s_lshl_b32 s{S_T2}, s{S_TH}, 14
        s_add_u32 s{S_KA}, s{S_KA}, s{S_T2}
        s_add_u32 s{S_KA}, s{S_KA}, {WS_O + 4*65536}
        v_add_u32 v{CT}, 0x8000, v{VL}
        """)
        a.vm(f"buffer_load_dwordx2 v[2:3], v7, {sr(S_WS,4)}, s{S_KB} offen offset:1024 sc1", "pl")
    def flags_ok():
        a(f"""
        v_cmp_eq_u32 s[{S_M0}:{S_M0+1}], s{S_NON}, v2
        v_cmp_eq_u32 s[{S_M1}:{S_M1+1}], s{S_TAG}, v3
        s_nop 1
        s_and_b64 s[{S_M0}:{S_M0+1}], s[{S_M0}:{S_M0+1}], s[{S_M1}:{S_M1+1}]
        s_cmp_eq_u64 s[{S_M0}:{S_M0+1}], -1
        """)
    def poll(tag, off, vpl):
        a.wait_vm("pl")
        a(f"s_mov_b32 s{S_CNT}, 0x40000")
        a(f"L_op{tag}:")
        flags_ok()
        a(f"""
        s_cbranch_scc1 L_og{tag}
        s_sub_u32 s{S_CNT}, s{S_CNT}, 1
        s_cmp_eq_u32 s{S_CNT}, 0
        s_cbranch_scc1 L_og{tag}
        s_sleep 1
        buffer_load_dwordx2 v[2:3], v{vpl}, {sr(S_WS,4)}, s{S_KB} offen offset:{off} sc1
        s_waitcnt vmcnt(0)
        s_branch L_op{tag}
        L_og{tag}:
        """)
    def o_load(g, vl2=VL2):
        i = g % 16
        if g == 16: a(f"s_sub_u32 s{S_KA}, s{S_KA}, {4*65536 + 3*4096}")
        elif i % 4 == 0 and i: a(f"s_add_u32 s{S_KA}, s{S_KA}, 4096")
        r = ofr(g)
        a.vm(f"buffer_load_dwordx4 {vr(r,4)}, v{VL}, {sr(S_WS,4)}, s{S_KA} offen offset:{(i%4)*1024}{OSC}", f"o{g}")
        a.vm(f"buffer_load_dwordx4 {vr(r+4,4)}, v{vl2}, {sr(S_WS,4)}, s{S_KA} offen offset:{(i%4)*1024}{OSC}", f"o{g}")
    for u in range(4):
        if u: a(f"L_u{u}:")
        qa, qb = u, 7 - u
        a(f"v_add_u32 v{VT}, v{VFL}, v{VL}")
        for f in range(2):
            a.lds(f"ds_read_b128 {vr(QB+4*f,4)}, v{VT} offset:{qb*2048+f*1024}", "q")
        for f in range(2):
            a.lds(f"ds_read_b128 {vr(QA+4*f,4)}, v{VT} offset:{qa*2048+f*1024}", "qa")
        a.wait_lds("q")
        own = lambda U, q: [(U, t*2048, t*2048, None, 0) for t in range(q)] + [(U, q*2048, q*2048, BD, 0)]
        prv = lambda U, q: [(U, q*4096, q*4096, BF, 1)] + [(U, t*4096, t*4096, None, 1) for t in range(q+1, 8)]
        hooks = {}
        def H(i, f): hooks.setdefault(i, []).append(f)
        def poll_issue():
            a(f"""
            s_cmp_eq_u32 s{S_C}, 0
            s_cbranch_scc1 L_np{u}
            v_mov_b32 v{VT+2}, 0
            buffer_load_dwordx2 v[2:3], v{VT+2}, {sr(S_WS,4)}, s{S_KA} offen sc1
            L_np{u}:
            """)
        def kv_dma(j):
            def f():
                a(f"""
                s_cmp_eq_u32 s{S_C}, 0
                s_cbranch_scc1 L_nd{u}_{j}
                s_add_u32 m0, s{S_DB}, {4096*j}
                s_add_u32 s{S_T2}, s{S_DA}, {4096*j}
                """)
                for k in range(4):
                    a(f"buffer_load_dwordx4 v{VL}, {sr(S_WS,4)}, s{S_T2} offen offset:{1024*k} sc1 lds")
                a(f"L_nd{u}_{j}:")
            return f
        def poll_check():
            a(f"""
            s_cmp_eq_u32 s{S_C}, 0
            s_cbranch_scc1 L_got{u}
            s_mov_b32 s{S_CNT}, 0x40000
            L_poll{u}:
            s_waitcnt vmcnt(0)
            v_readfirstlane_b32 s{S_T2}, v2
            v_readfirstlane_b32 s{S_T3}, v3
            s_cmp_eq_u32 s{S_T2}, s{S_NON}
            s_cselect_b32 s{S_T2}, 1, 0
            s_cmp_eq_u32 s{S_T3}, s{S_TAG}
            s_cselect_b32 s{S_T2}, s{S_T2}, 0
            s_cmp_lg_u32 s{S_T2}, 0
            s_cbranch_scc1 L_got{u}
            s_sub_u32 s{S_CNT}, s{S_CNT}, 1
            s_cmp_eq_u32 s{S_CNT}, 0
            s_cbranch_scc1 L_got{u}
            s_sleep 1
            buffer_load_dwordx2 v[2:3], v{VT+2}, {sr(S_WS,4)}, s{S_KA} offen sc1
            s_branch L_poll{u}
            L_got{u}:
            s_add_u32 s{S_DA}, s{S_KVB}, {(u*16384 - 32768) & 0xffffffff}
            s_lshl_b32 s{S_DB}, s{S_HH}, 15
            s_add_u32 s{S_DB}, s{S_DB}, {R_PREV + u*16384}
            """)
            qs = list(a.q); stamp("got"); a.q = qs
        def landed():
            a.wait_lds("qa")
            a(f"""
            v_mov_b32 v2, s{S_NON}
            v_mov_b32 v3, s{S_TAG}
            s_waitcnt vmcnt(0)
            """)
            a.lds(f"ds_write_b64 v{VFL}, v[2:3] offset:{qa*2048}", "fw")
        def wait_landed(th, tag):
            assert not a.q
            a(f"""
            s_mov_b32 s{S_CNT}, 0x400000
            L_wl{u}{tag}:
            ds_read_b64 v[2:3], v{VFL} offset:{th*2048}
            s_waitcnt lgkmcnt(0)
            v_readfirstlane_b32 s{S_T2}, v2
            v_readfirstlane_b32 s{S_T3}, v3
            s_cmp_eq_u32 s{S_T2}, s{S_NON}
            s_cselect_b32 s{S_T2}, 1, 0
            s_cmp_eq_u32 s{S_T3}, s{S_TAG}
            s_cselect_b32 s{S_T2}, s{S_T2}, 0
            s_cmp_lg_u32 s{S_T2}, 0
            s_cbranch_scc1 L_wd{u}{tag}
            s_sub_u32 s{S_CNT}, s{S_CNT}, 1
            s_cmp_eq_u32 s{S_CNT}, 0
            s_cbranch_scc1 L_wd{u}{tag}
            s_sleep 1
            s_branch L_wl{u}{tag}
            L_wd{u}{tag}:
            """)
        if u == 1:
            c1 = opts.get("c1", 1)
            H(0, poll_issue); H(c1, poll_check)
            for j in range(4): H(c1 + j // 2, kv_dma(j))
            H(opts.get("l1", 5), landed)
        if u == 0:
            stores[:] = list(deferred)
            nd = len(deferred); spt = opts.get("spt", 3)
            for j in range(nd): H(j // spt, lambda: kv_store(VL))
            pub = opts.get("pub_at", (nd + spt - 1) // spt + 1)
            H(pub, lambda: publish(VT)); H(pub, poll_issue)
            c0_ = opts.get("c0", 7)
            H(c0_, poll_check)
            for j in range(4): H(c0_ + j // 2, kv_dma(j))
        ft = {"A", "B"}
        run_tasks(own("B", qb), hooks, ft)
        a.wait_lds_all()
        stamp(4)
        a(f"s_cmp_eq_u32 s{S_C}, 0")
        a(f"s_cbranch_scc1 L_z{u}")
        wait_landed(1, "a")
        a.vq = []
        hooks = {}
        nB = 8 - qb
        qbx = f"s_mov_b32 s{S_QB}, {qb}"
        n23 = nB + qa + 1
        H(nB + 1, lambda: finalize("B", qbx))
        fl = nB + 1 + opts.get("ofl", 2)
        if fl <= n23: H(fl, lambda: o_flag("B", qbx))
        run_tasks(prv("B", qb) + own("A", qa), hooks, ft)
        vq23 = list(a.vq)
        a(f"s_branch L_w{u}")
        a(f"L_z{u}:")
        a.vq = []
        a("s_nop 7")
        finalize("B", qbx)
        run_tasks(own("A", qa), {}, {"A"})
        if fl <= n23: o_flag("B", qbx)
        a.vq = vq23
        a(f"L_w{u}:")
        if u == 0: landed()
        a.wait_lds_all()
        if u < 2: a("s_setprio 0")
        a("s_barrier")
        stamp(5)
        hooks = {}
        if fl > n23: H(max(fl - n23 - 1, 0), lambda: o_flag("B", qbx))
        nA = 8 - qa
        w0 = max(fl - n23 - 1, 0)
        sts = list(range(8))
        for t in range(w0, nA - 1):
            k = -(-len(sts) // (nA - 1 - t))
            for st in sts[:k]: H(t, (lambda s_: (lambda: wo_dma(s_)))(st))
            sts = sts[k:]
        assert not sts
        H(nA - 1, p3_pre)
        a(f"s_cmp_eq_u32 s{S_C}, 0")
        a(f"s_cbranch_scc1 L_y{u}")
        wait_landed(0, "b")
        vq4 = list(a.vq)
        run_tasks(prv("A", qa), hooks, set())
        stamp(7)
        a(f"s_mov_b32 s{S_QB}, {qa}")
        a("s_branch L_last")
        a(f"L_y{u}:")
        a.vq = vq4
        for t in sorted(hooks):
            for h in hooks[t]: h()
        stamp(7)
        a(f"s_mov_b32 s{S_QB}, {qa}")
        if u < 3: a("s_branch L_last")
    a("L_last:")
    a("s_waitcnt vmcnt(0)")
    a.vq = []
    flags_ok()
    a("s_cbranch_scc0 L_late")
    for g in range(OPRE): o_load(g, CT)
    finalize("A", "")
    a("s_branch L_p3")
    a("L_late:")
    vq_keep = list(a.vq)
    finalize("A", "")
    a.vm(f"buffer_load_dwordx2 v[2:3], v7, {sr(S_WS,4)}, s{S_KB} offen offset:1024 sc1", "pl")
    poll("1", 1024, 7)
    for g in range(OPRE): o_load(g, CT)
    a("s_waitcnt vmcnt(0)")
    a.vq = vq_keep
    a("L_p3:")
    a(f"""
    v_bfe_u32 v5, v0, 2, 2
    v_bfe_u32 v6, v0, 4, 1
    v_lshl_add_u32 v5, v6, 2, v5
    v_lshlrev_b32 v{VR}, 7, v5
    v_bfe_u32 v6, v5, 1, 2
    v_lshl_add_u32 v{VR}, v6, 5, v{VR}
    v_and_b32 v6, 3, v0
    v_lshl_add_u32 v{VR}, v6, 3, v{VR}
    v_lshrrev_b32 v6, 5, v0
    v_lshl_add_u32 v{VR}, v6, 11, v{VR}
    s_lshl_b32 s{S_T0}, s{S_TH}, 12
    v_add_u32 v{VR}, s{S_T0}, v{VR}
    v_xor_b32 v{VR+1}, 32, v{VR}
    v_xor_b32 v{VR+2}, 64, v{VR}
    v_xor_b32 v{VR+3}, 0x60, v{VR}
    v_mov_b32 v{VPL}, v7
    v_mov_b32 v{VL2}, v{CT}
    v_mov_b32 v7, v{VW}
    """)
    a("s_barrier")
    stamp(9)
    for st in range(8, 16): wo_dma(st, 7)
    a(f"""
    v_and_b32 v{VOUT}, 15, v0
    v_lshlrev_b32 v{VOUT}, 12, v{VOUT}
    v_bfe_u32 v6, v0, 4, 1
    v_lshl_add_u32 v{VOUT}, v6, 5, v{VOUT}
    v_lshrrev_b32 v6, 5, v0
    v_lshl_add_u32 v{VOUT}, v6, 4, v{VOUT}
    s_lshl_b32 s{S_T0}, s{S_OC}, 8
    s_lshl_b32 s{S_T1}, s{S_DB}, 5
    s_add_u32 s{S_T0}, s{S_T0}, s{S_T1}
    s_lshl_b32 s{S_T0}, s{S_T0}, 12
    s_lshl_b32 s{S_T1}, s{S_P}, 11
    s_add_u32 s{S_T0}, s{S_T0}, s{S_T1}
    s_lshl_b32 s{S_T1}, s{S_OJ}, 7
    s_add_u32 s{S_T0}, s{S_T0}, s{S_T1}
    s_lshl_b32 s{S_T1}, s{S_TH}, 6
    s_add_u32 s{S_DA}, s{S_T0}, s{S_T1}
    s_lshl_b32 s{S_T0}, s{S_WID}, 12
    s_add_u32 s{S_T0}, s{S_T0}, {R_RED}
    v_add_u32 v{VRD}, s{S_T0}, v{VL}
    s_xor_b32 s{S_T0}, s{S_T0}, 0x4000
    v_add_u32 v4, s{S_T0}, v{VL}
    s_cmp_eq_u32 s{S_TH}, 0
    s_cselect_b64 s[{S_CODE}:{S_CODE+1}], -1, 0
    """)
    cur_base = [0]
    def rdWo(g, nb):
        slot = wo_slot(g % 16)
        assert slot & ~0xffff == cur_base[0], (g, nb)
        w = WFR + 16 * (g % 2) + 4 * nb
        for h in range(2):
            a.lds(f"ds_read_b64_tr_b16 {vr(w+2*h,2)}, v{VR+nb} offset:{(slot & 0xffff) + h*1024}", f"w{g%2}_{nb}")
    def rebase(g):
        base = wo_slot(g % 16) & ~0xffff
        if base != cur_base[0]:
            d = (base - cur_base[0]) & 0xffffffff
            for q in range(4): a(f"v_add_u32 v{VR+q}, {d:#x}, v{VR+q}")
            cur_base[0] = base
    def ac(sl, nb, tb): return ACB[sl] + (nb*2 + tb)*4
    KEEP = f"s[{S_CODE}:{S_CODE+1}]"
    def red_send(sl):
        lo, hi = ac(sl, 0, 0), ac(sl, 2, 0)
        o = []
        for r in range(16):
            o.append(f"v_cndmask_b32 v{TMP+r}, v{lo+r}, v{hi+r}, {KEEP}")
        for r in range(16):
            o.append(f"v_cndmask_b32 v{lo+r}, v{hi+r}, v{lo+r}, {KEEP}")
        for i in range(4):
            o.append(("lds", f"ds_write_b128 v{VRD}, {vr(TMP+4*i,4)} offset:{1024*i}", "rw"))
        return o
    def red_recv(sl):
        lo = ac(sl, 0, 0)
        o = [("lds", f"ds_read_b128 {vr(TMP+4*i,4)}, v4 offset:{1024*i}", f"rr{i}") for i in range(4)]
        for i in range(4):
            o.append(("wait", f"rr{i}"))
            for r in range(4): o.append(f"v_add_f32 v{lo+4*i+r}, v{lo+4*i+r}, v{TMP+4*i+r}")
        for tb in range(2):
            ra, rb_, t = lo + 4*tb, lo + 8 + 4*tb, TMP + 4*tb
            o += [f"v_cvt_pk_bf16_f32 v{t}, v{ra}, v{ra+1}", f"v_cvt_pk_bf16_f32 v{t+1}, v{ra+2}, v{ra+3}",
                  f"v_cvt_pk_bf16_f32 v{t+2}, v{rb_}, v{rb_+1}", f"v_cvt_pk_bf16_f32 v{t+3}, v{rb_+2}, v{rb_+3}"]
        o += [f"s_add_u32 s{S_T0}, s{S_DA}, {(1-sl)*128*4096}", f"s_add_u32 s{S_T1}, s{S_T0}, 0x10000"]
        for tb in range(2): o += swap(TMP + 4*tb)
        o.append("s_nop 0")
        for tb in range(2):
            o.append(("vm", f"buffer_store_dwordx4 {vr(TMP+4*tb,4)}, v{VOUT}, {sr(S_OUT,4)}, s{S_T1 if tb else S_T0} offen{['', ' sc1', ' nt', ' sc0 sc1'][opts.get('outsc', 0)]}", "st"))
        return o
    def emit(x):
        if isinstance(x, str): a(x)
        elif x[0] == "lds": a.lds(x[1], x[2])
        elif x[0] == "vm": a.vm(x[1], x[2])
        else: a.wait_lds(x[1])
    for nb in range(4): rdWo(0, nb)
    side = []
    P2C = opts.get("p2c", 11)
    issued = set()
    def issue_step(x): return max(x - OAH, P2C) if x >= 16 else x - OAH
    for g in range(32):
        sl, st = divmod(g, 16)
        if g == 6:
            a.wait_vm("d11"); a("s_barrier")
        if g == 10:
            a.wait_vm("d15"); a("s_barrier")
        if g == P2C - 2:
            a.vm(f"buffer_load_dwordx2 v[2:3], v{VPL}, {sr(S_WS,4)}, s{S_KB} offen sc1", "pl")
        if g == P2C: poll("0", 0, VPL)
        if g == opts.get("afl", 3): o_flag("A", f"s_lshr_b32 s{S_QB}, s{S_WID}, 1", 5)
        if g == 16:
            qsave = list(a.q); stamp("mm1"); a.q = qsave
        if g == 17: side = red_send(0)
        if g == 20:
            assert not side
            a.wait_lds("rw"); a("s_barrier"); side = red_recv(0)
        if g == 27:
            assert not side
            a("s_barrier")
        a.wait_vm(f"o{g}")
        if g < 31: rebase(g + 1)
        for nb in range(4):
            a.wait_lds(f"w{g%2}_{nb}")
            for tb in range(2):
                d = vr(ac(sl, nb, tb), 4)
                a(f"v_mfma_f32_16x16x32_bf16 {d}, {vr(WFR+16*(g%2)+4*nb,4)}, {vr(ofr(g)+4*tb,4)}, {d if st else '0'}")
                for _ in range(2):
                    if side: emit(side.pop(0))
            if g < 31: rdWo(g + 1, nb)
            if nb in (1, 3):
                due = [x for x in range(OPRE, 32) if x not in issued and issue_step(x) <= g]
                if due:
                    o_load(due[0]); issued.add(due[0])
    stamp(10)
    a("s_nop 7")
    for x in red_send(1): emit(x)
    a.wait_lds_all()
    a("s_barrier")
    for x in red_recv(1): emit(x)
    if stamps:
        a("s_waitcnt vmcnt(0)")
        stamp(11)
        a(f"""
        s_lshl_b32 s{S_T0}, s2, 3
        s_add_u32 s{S_T0}, s{S_T0}, s{S_WID}
        s_lshl_b32 s{S_T0}, s{S_T0}, 6
        s_add_u32 s{S_T0}, s{S_T0}, {WS_STAMP}
        v_mov_b32 v7, 0
        """)
        for i in range(16): a(f"v_mov_b32 v{8+i}, s{4+i}")
        a(f"""
        s_mov_b64 exec, 1
        buffer_store_dwordx4 v[8:11], v7, {sr(S_WS,4)}, s{S_T0} offen
        buffer_store_dwordx4 v[12:15], v7, {sr(S_WS,4)}, s{S_T0} offen offset:16
        buffer_store_dwordx4 v[16:19], v7, {sr(S_WS,4)}, s{S_T0} offen offset:32
        buffer_store_dwordx4 v[20:23], v7, {sr(S_WS,4)}, s{S_T0} offen offset:48
        s_mov_b64 exec, -1
        """)
    a(f"""
    s_cmp_lg_u32 s{S_WID}, 0
    s_cbranch_scc1 L_end
    v_mov_b32 v4, 1
    v_mov_b32 v7, 0
    s_mov_b64 exec, 1
    buffer_atomic_add v4, v7, {sr(S_DBG,4)}, 0 offen sc0
    s_waitcnt vmcnt(0)
    v_readfirstlane_b32 s{S_T0}, v4
    s_cmp_lg_u32 s{S_T0}, 255
    s_cbranch_scc1 L_end
    v_mov_b32 v4, s{S_NON}
    s_mov_b32 s{S_T0}, {WS_FLAG}
    buffer_store_dword v4, v7, {sr(S_WS,4)}, s{S_T0} offen sc1
    L_end:
    s_endpgm
    """)
    for U, O, Ls, Q in (("A", OA, LA, QA), ("B", OB, LB, QB)):
        S = 64; P = 112; K2 = 120; V2 = 160; M = 168; NB = 169; AK = 170; AT = 171
        if U == "A":
            S = SS[0]; P = PP[0]; K2 = KF; V2 = VF; M = SS[1]; NB = M + 1; AK = M + 2; AT = M + 3
        a(f"""
        L_slow{U}:
        v_and_b32 v{AK}, 0x33, v0
        v_bfe_u32 v{AT}, v0, 2, 1
        v_lshl_or_b32 v{AK}, v{AT}, 3, v{AK}
        v_bfe_u32 v{AT}, v0, 3, 1
        v_lshl_or_b32 v{AK}, v{AT}, 2, v{AK}
        v_lshlrev_b32 v{AK}, 4, v{AK}
        v_mov_b32 v{M}, 0xff800000
        s_mov_b32 s{S_U0}, 0
        L_sp{U}:
        s_mov_b32 s{S_U1}, 0
        s_cmp_eq_u32 s{S_C}, 0
        s_cbranch_scc0 L_st{U}
        s_sub_u32 s{S_U1}, 8, s{S_QB}
        L_st{U}:
        s_add_u32 s{S_U2}, s{S_U1}, s{S_QB}
        s_lshl_b32 s{S_U2}, s{S_U2}, 12
        s_add_u32 s{S_U2}, s{S_U2}, s{S_KVB}
        s_sub_u32 s{S_U2}, s{S_U2}, 0x8000
        buffer_load_dwordx4 {vr(K2,4)}, v{AK}, {sr(S_WS,4)}, s{S_U2} offen sc1
        buffer_load_dwordx4 {vr(K2+4,4)}, v{AK}, {sr(S_WS,4)}, s{S_U2} offen offset:1024 sc1
        buffer_load_dwordx4 {vr(V2,4)}, v{VL}, {sr(S_WS,4)}, s{S_U2} offen offset:2048 sc1
        buffer_load_dwordx4 {vr(V2+4,4)}, v{VL}, {sr(S_WS,4)}, s{S_U2} offen offset:3072 sc1
        s_waitcnt vmcnt(0)
        s_cmp_eq_u32 s{S_U1}, 0
        s_cbranch_scc1 L_sf{U}
        s_cmp_eq_u32 s{S_U1}, 8
        s_cbranch_scc1 L_sd{U}
        v_mfma_f32_32x32x16_bf16 {vr(S,16)}, {vr(K2,4)}, {vr(Q,4)}, 0
        s_branch L_sj{U}
        L_sf{U}:
        v_mfma_f32_32x32x16_bf16 {vr(S,16)}, {vr(K2,4)}, {vr(Q,4)}, {vr(BF,16)}
        s_branch L_sj{U}
        L_sd{U}:
        v_mfma_f32_32x32x16_bf16 {vr(S,16)}, {vr(K2,4)}, {vr(Q,4)}, {vr(BD,16)}
        L_sj{U}:
        v_mfma_f32_32x32x16_bf16 {vr(S,16)}, {vr(K2+4,4)}, {vr(Q+4,4)}, {vr(S,16)}
        s_nop 7
        s_nop 7
        s_cmp_eq_u32 s{S_U0}, 0
        s_cbranch_scc0 L_s2{U}
        """)
        for r in range(16): a(f"v_max_f32 v{M}, v{M}, v{S+r}")
        a(f"s_branch L_sn{U}")
        a(f"L_s2{U}:")
        for r in range(16): a(f"v_sub_f32 v{S+r}, v{S+r}, v{M}")
        for r in range(16): a(f"v_exp_f32 v{S+r}, v{S+r}")
        a("s_nop 0")
        for j in range(8): a(f"v_cvt_pk_bf16_f32 v{P+j}, v{S+2*j}, v{S+2*j+1}")
        a("s_nop 1")
        for f in range(2):
            a(f"v_mfma_f32_32x32x16_bf16 {vr(O,16)}, {vr(V2+4*f,4)}, {vr(P+4*f,4)}, {vr(O,16)}")
        for f in range(2):
            a(f"v_mfma_f32_16x16x32_bf16 {vr(Ls,4)}, {vr(ON,4)}, {vr(P+4*f,4)}, {vr(Ls,4)}")
        a(f"""
        s_nop 7
        s_nop 7
        L_sn{U}:
        s_add_u32 s{S_U1}, s{S_U1}, 1
        s_cmp_le_u32 s{S_U1}, 8
        s_cbranch_scc1 L_st{U}
        s_cmp_eq_u32 s{S_U0}, 0
        s_cbranch_scc0 L_sx{U}
        v_mov_b32 v{NB}, v{M}
        s_nop 1
        v_permlane32_swap_b32 v{NB}, v{M}
        s_nop 1
        v_max_f32 v{M}, v{M}, v{NB}
        """)
        for r in range(16): a(f"v_mov_b32 v{O+r}, 0")
        for r in range(4): a(f"v_mov_b32 v{Ls+r}, 0")
        a(f"""
        s_mov_b32 s{S_U0}, 1
        s_branch L_sp{U}
        L_sx{U}:
        s_setpc_b64 s[{S_RET}:{S_RET+1}]
        """)
    a("L_codeend:")
    hdr = open("concat_heads__sliding_block__sliding_block__prompt.s.ref").read().split("; Override launch")[0]
    head = hdr + f"""; @launch grid=(256,1,1) block=(512,1,1) lds={LDS_BYTES}
.amdgcn_target "amdgcn-amd-amdhsa--gfx950"
.text
.globl {name}
.p2align 8
.type {name},@function
{name}:
"""
    tail = f"""
.section .rodata,"a"
.p2align 6
.amdhsa_kernel {name}
  .amdhsa_next_free_vgpr 256
  .amdhsa_next_free_sgpr 102
  .amdhsa_accum_offset 256
  .amdhsa_group_segment_fixed_size 0
  .amdhsa_kernarg_size 72
  .amdhsa_user_sgpr_count 2
  .amdhsa_user_sgpr_kernarg_segment_ptr 1
  .amdhsa_system_sgpr_workgroup_id_x 1
.end_amdhsa_kernel
"""
    return head + a.text().replace("CODE_END_BYTES", "(L_codeend - L_pcref)") + tail

if __name__ == "__main__":
    stamps = "--stamps" in sys.argv
    opts = {}
    for x in sys.argv[2:]:
        if "=" in x:
            k, v = x.split("="); opts[k] = int(v)
    open(sys.argv[1], "w").write(gen(stamps, opts=opts))
```

```python
import sys, struct

class Asm:
    def __init__(self):
        self.l = []
        self.q = []
        self.vq = []
    def __call__(self, s):
        for x in s.strip("\n").split("\n"):
            x = x.strip()
            if not x: continue
            self.l.append(x if x.endswith(":") else "    " + x)
    def text(self):
        return "\n".join(self.l) + "\n"
    def lds(self, s, tag):
        self(s); self.q.append(tag)
    def wait_lds(self, *tags):
        idx = [i for i, t in enumerate(self.q) if t in tags]
        if not idx: return
        last = max(idx); n = min(len(self.q) - 1 - last, 15)
        self(f"s_waitcnt lgkmcnt({n})")
        self.q = self.q[len(self.q)-n:] if n else []
    def wait_lds_all(self):
        self("s_waitcnt lgkmcnt(0)"); self.q = []
    def vm(self, s, tag):
        self(s); self.vq.append(tag)
    def wait_vm(self, *tags):
        idx = [i for i, t in enumerate(self.vq) if t in tags]
        if not idx: return
        last = max(idx); n = len(self.vq) - 1 - last
        assert n <= 63, n
        self(f"s_waitcnt vmcnt({n})")
        self.vq = self.vq[last+1:]
    def wait_vm_all(self):
        self("s_waitcnt vmcnt(0)"); self.vq = []

def vr(a, n): return f"v[{a}:{a+n-1}]"
def sr(a, n): return f"s[{a}:{a+n-1}]"
def f32bits(x): return struct.unpack("<I", struct.pack("<f", x))[0]
def L(s): return [x.strip() for x in s.strip().split("\n") if x.strip()]

WS_KV = 0
WS_O = 16 << 20
WS_FLAG = 24 << 20
WS_FKV = WS_FLAG + 4096
WS_FO = WS_FLAG + 65536
WS_STAMP = 25 << 20
WS_BYTES = 26 << 20
TAGX = 0x5bd1e995

A_SLOT = 32768; B_BASE = 3 * A_SLOT; B_SLOT = 12288
LDS_BYTES = 160 * 1024
R_V = 0; R_PREV = 32768; R_K = 98304; R_Q = 131072; R_RED = 65536
def wo_slot(st): return [R_V, R_K, R_Q, R_PREV][st // 4] + (st % 4) * 8192

S_X = 36; S_W = 40; S_WS = 44; S_WO = 48; S_OUT = 52; S_DBG = 56
S_P = 60; S_C = 61; S_HP = 62; S_WID = 63
S_T0 = 64; S_T1 = 65; S_T2 = 66; S_T3 = 67
S_ASL = 68; S_BSL = 69; S_KA = 70; S_KB = 71; S_CNT = 72
S_TH = 73; S_HH = 74; S_DA = 75; S_DB = 76
S_NON = 77; S_KVB = 78; S_OC = 79; S_OJ = 80; S_TAG = 81
S_LA = 82; S_LB = 83
S_M0 = 84; S_M1 = 86
S_QB = 88; S_OB = 89
S_RET = 90; S_CODE = 92
S_FO = 96; S_U0 = 97; S_U1 = 98; S_U2 = 99
S_LO = 34; S_HI = 35

QSCALE = 0.17677669529663687 * 1.4426950408889634
CODE_LINES = 512

def gen(stamps=False, name="concat_heads__sliding_block__sliding_block__prompt_kernel", opts=None):
    opts = opts or {}
    a = Asm()
    SN = ["start", "bar0", "main", "kv", "qend", "pub", "barA", "p1end", "barC", "p2end", "got", "barE", "mm1", "mm", "end", "ofl"]
    def stamp(i):
        if isinstance(i, str): i = SN.index(i)
        else: i = SN.index({0: "start", 1: "bar0", 2: "kv", 3: "barA", 4: "p1end", 5: "barC", 7: "p2end", 9: "barE", 10: "mm", 11: "end"}.get(i, "none")) if i not in (6, 8) else None
        if i is None: return
        if stamps:
            a(f"s_memtime s[100:101]" if opts.get("cyc") else f"s_memrealtime s[100:101]")
            a(f"s_waitcnt lgkmcnt(0)")
            a(f"s_mov_b32 s{4+i}, s100")
            a.q = []
    a(f"""
    s_cmp_ge_u32 s2, 256
    s_cbranch_scc1 L_end
    s_load_dwordx16 s[16:31], s[0:1], 0
    s_load_dwordx2 s[32:33], s[0:1], 64
    """)
    stamp(0)
    a(f"""
    v_lshrrev_b32 v1, 6, v0
    v_and_b32 v0, 63, v0
    s_and_b32 s{S_T0}, s2, 7
    v_readfirstlane_b32 s{S_WID}, v1
    s_lshr_b32 s{S_T1}, s2, 3
    s_lshr_b32 s{S_P}, s{S_T0}, 2
    s_and_b32 s{S_T2}, s{S_T0}, 3              ; hq
    s_lshr_b32 s{S_C}, s{S_T1}, 2              ; chunk
    s_and_b32 s{S_T3}, s{S_T1}, 3
    s_lshl_b32 s{S_HP}, s{S_T2}, 2
    s_add_u32 s{S_HP}, s{S_HP}, s{S_T3}
    s_lshr_b32 s{S_OC}, s{S_T1}, 4
    s_lshl_b32 s{S_T3}, s{S_T2}, 1
    s_add_u32 s{S_OC}, s{S_OC}, s{S_T3}
    s_and_b32 s{S_OJ}, s{S_T1}, 15
    s_and_b32 s{S_HH}, s{S_WID}, 1
    s_waitcnt lgkmcnt(0)
    s_cmp_eq_u32 s{S_P}, 0
    s_cselect_b32 s{S_X}, s16, s22
    s_cselect_b32 s{S_X+1}, s17, s23
    s_cselect_b32 s{S_W}, s18, s24
    s_cselect_b32 s{S_W+1}, s19, s25
    s_cselect_b32 s{S_WO}, s20, s26
    s_cselect_b32 s{S_WO+1}, s21, s27
    s_lshl_b32 s{S_T0}, s{S_C}, 19
    s_add_u32 s{S_X}, s{S_X}, s{S_T0}
    s_addc_u32 s{S_X+1}, s{S_X+1}, 0
    s_mov_b32 s{S_X+2}, 0x80000
    s_mov_b32 s{S_X+3}, 0x20000
    s_mov_b32 s{S_W+2}, 0x600000
    s_mov_b32 s{S_W+3}, 0x20000
    s_cmp_ge_u32 s{S_WID}, 4
    s_cbranch_scc1 L_loader
    """)
    def common_setup():
        a(f"""
        s_add_u32 s{S_T0}, s32, {WS_FLAG}
        s_addc_u32 s{S_T1}, s33, 0
        s_load_dword s{S_NON}, s[{S_T0}:{S_T1}], 0
        s_mov_b32 s{S_WS}, s32
        s_mov_b32 s{S_WS+1}, s33
        s_mov_b32 s{S_WS+2}, {WS_BYTES}
        s_mov_b32 s{S_WS+3}, 0x20000
        s_mov_b32 s{S_WO+2}, 0x200000
        s_mov_b32 s{S_WO+3}, 0x20000
        s_mov_b32 s{S_OUT}, s28
        s_mov_b32 s{S_OUT+1}, s29
        s_mov_b32 s{S_OUT+2}, 0x800000
        s_mov_b32 s{S_OUT+3}, 0x20000
        s_mov_b32 s{S_DBG}, s30
        s_mov_b32 s{S_DBG+1}, s31
        s_mov_b32 s{S_DBG+2}, 256
        s_mov_b32 s{S_DBG+3}, 0x20000
        s_lshl_b32 s{S_T3}, s{S_HP}, 1
        s_add_u32 s{S_T3}, s{S_T3}, s{S_HH}        ; head
        s_lshl_b32 s{S_T2}, s{S_P}, 5
        s_add_u32 s{S_T2}, s{S_T2}, s{S_T3}        ; p*32+head
        s_lshl_b32 s{S_T2}, s{S_T2}, 6
        s_lshl_b32 s{S_KVB}, s{S_C}, 3
        s_add_u32 s{S_T2}, s{S_T2}, s{S_KVB}
        s_lshl_b32 s{S_KVB}, s{S_T2}, 12
        s_lshl_b32 s{S_T2}, s{S_P}, 3
        s_add_u32 s{S_T2}, s{S_T2}, s{S_C}         ; p*8+c
        s_lshl_b32 s{S_OB}, s{S_T2}, 19
        s_lshl_b32 s{S_FO}, s{S_T3}, 10
        s_add_u32 s{S_OB}, s{S_OB}, s{S_FO}
        s_add_u32 s{S_OB}, s{S_OB}, {WS_O}
        s_lshl_b32 s{S_FO}, s{S_T2}, 11
        s_lshl_b32 s{S_T3}, s{S_T3}, 3
        s_add_u32 s{S_FO}, s{S_FO}, s{S_T3}
        s_add_u32 s{S_FO}, s{S_FO}, {WS_FO}
        s_mov_b32 s{S_LO}, {f32bits(2.0**-60)}
        s_mov_b32 s{S_HI}, {f32bits(2.0**60)}
        s_waitcnt lgkmcnt(0)
        s_add_u32 s{S_NON}, s{S_NON}, 1
        s_xor_b32 s{S_TAG}, s{S_NON}, {TAGX}
        """)
    BD = 88; BF = 136; ON = 184; VW = 188; VO = 189; VK = 190; VV = 191; CT = 192; VW2 = 195; VKP = 196; VVP = 197; VFL = 198
    QA = 8; QB = 16; OA = 24; OB = 40; LA = 56; LB = 60; KF = 80; VF = 104; SS = [224, 240]; PP = [128, 152]
    VLS = 194
    def attn_consts0(vl):
        return L(f"""
        v_and_b32 v{CT}, 0x33, v0
        v_bfe_u32 v{CT+1}, v0, 2, 1
        v_lshl_or_b32 v{CT}, v{CT+1}, 3, v{CT}
        v_bfe_u32 v{CT+1}, v0, 3, 1
        v_lshl_or_b32 v{CT}, v{CT+1}, 2, v{CT}
        s_lshl_b32 s{S_T0}, s{S_HH}, 14
        v_lshlrev_b32 v{VK}, 4, v{CT}
        v_add_u32 v{VV}, s{S_T0}, v{vl}
        s_add_u32 s{S_T0}, s{S_T0}, {R_K}
        v_add_u32 v{VK}, s{S_T0}, v{VK}
        s_lshl_b32 s{S_T0}, s{S_HH}, 14
        s_add_u32 s{S_T1}, s{S_T0}, {(R_PREV - R_K) & 0xffffffff:#x}
        v_add_u32 v{VKP}, s{S_T1}, v{VK}
        s_add_u32 s{S_T1}, s{S_T0}, {R_PREV + 2048}
        v_add_u32 v{VVP}, s{S_T1}, v{VV}
        s_add_u32 s{S_T1}, s{S_T0}, {R_Q}
        v_mov_b32 v{VFL}, s{S_T1}
        v_lshrrev_b32 v{CT}, 2, v0
        v_lshrrev_b32 v{CT+1}, 4, v0
        v_xor_b32 v{CT}, v{CT}, v{CT+1}
        v_and_b32 v{CT}, 1, v{CT}
        v_subrev_u32 v{CT}, 1, v{CT}
        v_and_b32 v{ON}, 0x3f803f80, v{CT}
        v_mov_b32 v{ON+1}, v{ON}
        v_mov_b32 v{ON+2}, v{ON}
        v_mov_b32 v{ON+3}, v{ON}
        """)
    def attn_consts1():
        c = L(f"""
        v_and_b32 v{CT}, 31, v0
        v_lshrrev_b32 v{BD}, 5, v0
        v_lshlrev_b32 v{BD}, 3, v{BD}
        v_sub_u32 v{CT}, v{CT}, v{BD}
        s_mov_b32 s{S_T1}, 0xff800000
        """)
        for r in range(16):
            f, u_, e = r >> 3, (r >> 2) & 1, r & 3
            kc = 16*f + 4*u_ + e
            c += [f"v_subrev_u32 v{BD+r}, {kc}, v{CT}", f"v_ashrrev_i32 v{BD+r}, 31, v{BD+r}", f"v_and_b32 v{BD+r}, s{S_T1}, v{BD+r}"]
        return c
    def attn_consts2():
        c = [f"s_mov_b32 s{S_T1}, 0xff800000"]
        c += [f"v_xor_b32 v{BF+r}, s{S_T1}, v{BD+r}" for r in range(16)]
        c += L(f"""
        v_lshrrev_b32 v{CT}, 3, v0
        v_and_b32 v{VW}, 7, v0
        v_bfe_u32 v{VO}, v0, 4, 2
        v_lshlrev_b32 v{VO}, 1, v{VO}
        v_xor_b32 v{VW}, v{VW}, v{VO}
        s_lshr_b32 s{S_T0}, s{S_WID}, 2
        s_lshl_b32 s{S_T0}, s{S_T0}, 20
        s_and_b32 s{S_T1}, s{S_WID}, 3
        s_lshl_b32 s{S_T1}, s{S_T1}, 14
        s_add_u32 s{S_T0}, s{S_T0}, s{S_T1}
        s_lshl_b32 s{S_T1}, s{S_OJ}, 7
        s_add_u32 s{S_T0}, s{S_T0}, s{S_T1}
        v_lshlrev_b32 v{CT}, 11, v{CT}
        v_add_u32 v{CT}, s{S_T0}, v{CT}
        v_lshl_add_u32 v{VW}, v{VW}, 4, v{CT}
        v_xor_b32 v{VW2}, 0x100000, v{VW}
        s_lshl_b32 s{S_LA}, s{S_WID}, 10
        v_and_b32 v{VO}, 15, v0
        v_lshrrev_b32 v{CT}, 5, v0
        v_lshl_add_u32 v{VO}, v{CT}, 4, v{VO}
        v_lshlrev_b32 v{VO}, 4, v{VO}
        v_bfe_u32 v{CT}, v0, 4, 1
        v_lshl_add_u32 v{VO}, v{CT}, 15, v{VO}
        """)
        return c
    D = opts.get("D", 3); MB = 16 - D
    KVS = B_BASE; QS = B_BASE + 32768; A4 = KVS
    qorder = [15, 14, 13] + list(range(12, MB - 1, -1))
    qorder = qorder[:D]
    aslot_q = {}
    for i, b in enumerate(qorder):
        aslot_q[b] = (b % 3) * A_SLOT if b >= 13 else [A4, 0, 2 * A_SLOT, A_SLOT][(i - 3) % 4]
    nst = 32 + D
    items = []
    for u in range(32):
        b, kk = divmod(u, 2)
        if kk == 0:
            for hf in range(2): items.append(dict(need=u, kind="A", blk=b, hf=hf, lds=(b % 3)*A_SLOT + hf*16384, size=16384,
                                                  free=(u + 2) if b < 13 or b not in qorder else 32 + qorder.index(b) + 2))
        if u <= 2*MB: items.append(dict(need=u, kind="B", u=u, lds=B_BASE + (u % 5)*B_SLOT, size=B_SLOT, free=u + 1))
        else: items.append(dict(need=u, kind="KV", u=u, lds=None, size=8192, free=u + 1))
    for i, b in enumerate(qorder):
        if b < 13:
            for hf in range(2): items.append(dict(need=32 + i, kind="A", blk=b, hf=hf, lds=aslot_q[b] + hf*16384, size=16384, free=32 + i + 2))
        for kk in range(2): items.append(dict(need=32 + i, kind="Q", u=2*b + kk, qi=(i, kk), lds=None, size=4096, free=32 + i + 2))
    def after_of(n, lo, size):
        r = -1
        for pv_ in items[:n]:
            if pv_["lds"] < lo + size and lo < pv_["lds"] + pv_["size"]: r = max(r, pv_["free"])
        return r
    for n, it in enumerate(items):
        if it["lds"] is None:
            lo_lim = B_BASE if it["kind"] == "KV" else QS
            cands = range(lo_lim, LDS_BYTES - 8192 - it["size"] + 1, 4096)
            it["lds"] = min(cands, key=lambda lo: (max(after_of(n, lo, it["size"]), it["need"] - 5), lo))
        it["after"] = after_of(n, it["lds"], it["size"])
        assert it["after"] < it["need"], it
        it["n"] = {"A": 4, "B": 3, "KV": 2, "Q": 1}[it["kind"]]
    def kvslot(u): return [it["lds"] for it in items if it["kind"] == "KV" and it["u"] == u][0]
    def qslot(i, kk): return [it["lds"] for it in items if it["kind"] == "Q" and it["qi"] == (i, kk)][0]
    VA = 1; VB = 3; VT = 5
    XF = 8; WF = 40; ACC = 64
    SEG = [1, 1, 2, 2, 0, 0]
    def acc(rb, col): return ACC + (rb * 6 + col) * 4
    def xf(rb): return XF + 4 * rb
    def wf(sl): return WF + 4 * sl
    a(f"""
    s_lshr_b32 s{S_TH}, s{S_WID}, 1
    v_and_b32 v{VT}, 15, v0
    v_lshrrev_b32 v{VT+1}, 4, v0
    v_bfe_u32 v{VT+2}, v0, 1, 3
    v_xor_b32 v{VT+2}, v{VT+2}, v{VT+1}
    v_lshlrev_b32 v{VT+2}, 4, v{VT+2}
    v_lshl_add_u32 v{VT+2}, v{VT}, 7, v{VT+2}
    s_lshl_b32 s{S_T0}, s{S_TH}, 14
    v_add_u32 v{VA}, s{S_T0}, v{VT+2}
    v_xor_b32 v{VA+1}, 64, v{VA}
    v_bfe_u32 v{VT}, v0, 2, 2
    v_lshlrev_b32 v{VB}, 7, v{VT}
    v_and_b32 v{VT}, 3, v0
    v_lshl_add_u32 v{VB}, v{VT}, 3, v{VB}
    v_mul_u32_u24 v{VT}, 3072, v{VT+1}
    v_add_u32 v{VB}, v{VB}, v{VT}
    v_bfe_u32 v{VT}, v0, 3, 2
    s_lshl_b32 s{S_T0}, s{S_HH}, 1
    v_xor_b32 v{VT}, s{S_T0}, v{VT}
    v_lshl_add_u32 v{VB}, v{VT}, 5, v{VB}
    v_add_u32 v{VB}, {B_BASE}, v{VB}
    v_xor_b32 v{VB+1}, 32, v{VB}
    """)
    LOOK = opts.get("look", 4)
    a(f"""
    s_and_b32 s{S_T0}, s{S_HP}, 3
    s_lshl_b32 s{S_T0}, s{S_T0}, 6
    s_lshl_b32 s{S_T1}, s{S_WID}, 4
    s_add_u32 s{S_T0}, s{S_T0}, s{S_T1}
    s_lshl_b32 s{S_T0}, s{S_T0}, 11
    v_lshlrev_b32 v5, 11, v0
    v_add_u32 v5, s{S_T0}, v5
    v_mov_b32 v11, 0x7f000000
    v_cmp_lt_u32 vcc, 15, v0
    v_and_b32 v9, 1, v0
    v_lshrrev_b32 v10, 1, v0
    v_cndmask_b32 v5, v5, v11, vcc
    s_lshl_b32 s{S_T0}, s{S_C}, 3
    s_lshl_b32 s{S_T1}, s{S_WID}, 1
    s_add_u32 s{S_T0}, s{S_T0}, s{S_T1}
    v_add_u32 v6, s{S_T0}, v9
    v_mul_u32_u24 v6, 6144, v6
    v_lshl_add_u32 v6, v10, 11, v6
    s_lshl_b32 s{S_T0}, s{S_HP}, 7
    v_add_u32 v6, s{S_T0}, v6
    v_cmp_lt_u32 vcc, 5, v0
    s_movk_i32 s{S_KA}, {128*LOOK}
    s_mov_b32 s{S_KB}, {64*6144*LOOK}
    v_cndmask_b32 v6, v6, v11, vcc
    s_getpc_b64 s[{S_CODE}:{S_CODE+1}]
    s_mov_b32 s{S_CODE+2}, CODE_END_BYTES
    s_mov_b32 s{S_CODE+3}, 0x20000
    s_lshr_b32 s{S_T0}, s2, 3
    s_and_b32 s{S_T0}, s{S_T0}, 7
    s_lshl_b32 s{S_T0}, s{S_T0}, 2
    s_add_u32 s{S_T0}, s{S_T0}, s{S_WID}
    s_mul_i32 s{S_T0}, s{S_T0}, {CODE_LINES // 32 * 128}
    v_lshlrev_b32 v12, 7, v0
    v_add_u32 v12, s{S_T0}, v12
    v_cmp_lt_u32 vcc, 15, v0
    s_nop 1
    v_cndmask_b32 v12, v12, v11, vcc
    """)
    a(f"""
    s_and_b32 s{S_T0}, s{S_OC}, 1
    s_lshl_b32 s{S_T0}, s{S_T0}, 9
    s_mul_i32 s{S_T1}, s{S_WID}, 10
    s_add_u32 s{S_T0}, s{S_T0}, s{S_T1}
    s_lshl_b32 s{S_T0}, s{S_T0}, 11
    s_lshl_b32 s{S_T1}, s{S_OJ}, 7
    s_add_u32 s{S_QB}, s{S_T0}, s{S_T1}
    v_cmp_lt_u32 vcc, 9, v0
    v_lshlrev_b32 v0, 11, v0
    s_nop 0
    v_cndmask_b32 v0, v0, v11, vcc
    """)
    a("L_pcref:")
    common_setup()
    for r in range(ACC, 256):
        a(f"v_mov_b32 v{r}, 0")
    a(f"""
    s_mov_b32 s{S_ASL}, 0
    s_mov_b32 s{S_BSL}, 0
    s_mov_b32 s{S_CNT}, {MB}
    s_barrier
    """)
    stamp(1)
    VTOUCH = opts.get("vtouch", 0)
    for b in range(3, LOOK if VTOUCH else 0):
        a(f"s_mov_b32 s{S_T0}, {64*6144*b}")
        a(f"buffer_load_dword v7, v6, {sr(S_W,4)}, s{S_T0} offen")
        a(f"buffer_load_dword v7, v5, {sr(S_X,4)}, 0 offen offset:{128*b}")
    if opts.get("codetouch", 1):
        a(f"buffer_load_dword v7, v12, {sr(S_CODE,4)}, 0 offen")
    def rdX(rb, va, off=0):
        a.lds(f"ds_read_b128 {vr(xf(rb),4)}, v{va} offset:{2048*rb+off}", f"x{rb}")
    def rdW(sl, col, half, off=0):
        a.lds(f"ds_read_b64_tr_b16 {vr(wf(sl)+2*half,2)}, v{VB+(col&1)} offset:{off+SEG[col]*1024+half*512}", f"w{sl}")
    def mf(rb, col, sl):
        d = vr(acc(rb, col), 4)
        if col in (2, 3):
            a(f"v_mfma_f32_16x16x32_bf16 {d}, {vr(xf(rb),4)}, {vr(wf(sl),4)}, {d}")
        else:
            a(f"v_mfma_f32_16x16x32_bf16 {d}, {vr(wf(sl),4)}, {vr(xf(rb),4)}, {d}")
    for rb in range(8):
        if rb < 3:
            rdW(rb, rb, 0); rdW(rb, rb, 1)
        rdX(rb, VA)
    q0 = list(a.q)
    a("L_cloop:")
    for kk in range(2):
        fill = {}
        for i, (c, h) in enumerate([(c, h) for c in (3, 4, 5) for h in (0, 1)]):
            fill[i] = (lambda c=c, h=h: rdW(c, c, h))
        for i, x in enumerate(L(f"""
            s_add_u32 s{S_T0}, s{S_BSL}, {B_SLOT}
            s_cmp_eq_u32 s{S_T0}, {5*B_SLOT}
            s_cselect_b32 s{S_T0}, 0, s{S_T0}
            s_sub_u32 s{S_DB}, s{S_T0}, s{S_BSL}
            s_mov_b32 s{S_BSL}, s{S_T0}
            """)): fill[6 + i] = (lambda x=x: a(x))
        fill[12] = lambda: a(f"v_add_u32 v{VB}, s{S_DB}, v{VB}")
        fill[13] = lambda: a(f"v_add_u32 v{VB+1}, s{S_DB}, v{VB+1}")
        if kk == 1:
            for i, x in enumerate(L(f"""
                s_add_u32 s{S_T0}, s{S_ASL}, {A_SLOT}
                s_cmp_eq_u32 s{S_T0}, {3*A_SLOT}
                s_cselect_b32 s{S_T0}, 0, s{S_T0}
                s_sub_u32 s{S_DA}, s{S_T0}, s{S_ASL}
                s_mov_b32 s{S_ASL}, s{S_T0}
                v_add_u32 v{VA}, s{S_DA}, v{VA}
                v_add_u32 v{VA+1}, s{S_DA}, v{VA+1}
                """)): fill[14 + i] = (lambda x=x: a(x))
        m = 0
        for rb in range(8):
            if rb == 0: a.wait_lds("w0", "w1", "w2", "x3")
            if rb == 4: a.wait_lds("x7")
            for c in range(3):
                mf(rb, c, c)
                if m in fill: fill[m]()
                m += 1
        a.wait_lds_all()
        if not opts.get("x_nobar"): a("s_barrier")
        pend = [(c, h) for c in (0, 1, 2) for h in (0, 1)]
        m = 0
        for rb in range(8):
            for c in range(3, 6):
                mf(rb, c, c)
                if c == 5: rdX(rb, VA + (kk ^ 1))
                elif pend:
                    cc, h = pend.pop(0); rdW(cc, cc, h)
                elif kk == 1 and m == 18: a(f"s_sub_u32 s{S_CNT}, s{S_CNT}, 1")
                elif kk == 1 and m == 19: a(f"s_cmp_lg_u32 s{S_CNT}, 0")
                m += 1
        if kk == 0: qmid = list(a.q)
        else: assert a.q == qmid
    assert qmid == q0, (qmid, q0)
    a("s_cbranch_scc1 L_cloop")
    qsave = list(a.q); stamp("main"); a.q = qsave
    VAH = 56; VLN = 58; VG2 = 59; VQ = 60
    u0 = 2 * MB
    a(f"""
    v_mbcnt_lo_u32_b32 v0, -1, 0
    v_mbcnt_hi_u32_b32 v0, -1, v0
    v_add_u32 v{VA}, {(-(MB % 3)*A_SLOT) & 0xffffffff:#x}, v{VA}
    v_add_u32 v{VA+1}, {(-(MB % 3)*A_SLOT) & 0xffffffff:#x}, v{VA+1}
    v_add_u32 v{VB}, {(-(u0 % 5)*B_SLOT) & 0xffffffff:#x}, v{VB}
    v_add_u32 v{VB+1}, {(-(u0 % 5)*B_SLOT) & 0xffffffff:#x}, v{VB+1}
    """)
    def rdXs(rb, slot, kk):
        if slot < 65536: rdX(rb, VA + kk, slot)
        else: rdX(rb, VAH + kk, slot - 65536)
    def rdWkv(sl, col, half, u):
        a.lds(f"ds_read_b64_tr_b16 {vr(wf(sl)+2*half,2)}, v{VB+(col&1)} offset:{kvslot(u)-B_BASE+(col>>1)*1024+half*512}", f"w{sl}")
    def rdWq(sl, j, half, i, kk):
        a.lds(f"ds_read_b64_tr_b16 {vr(wf(sl)+2*half,2)}, v{VQ+j} offset:{qslot(i,kk)-B_BASE+half*512}", f"w{sl}")
    for u in range(u0, 32):
        blk, kk = divmod(u, 2)
        pend = [(3, 0), (3, 1)] if u == u0 else [(2, 0), (2, 1), (3, 0), (3, 1)]
        for rb in range(8):
            if rb == 0: a.wait_lds("w0", "w1", "x3")
            if rb == 4: a.wait_lds("x7")
            for c in range(2):
                mf(rb, c, c)
                if pend:
                    cc, h = pend.pop(0)
                    if u == u0: rdW(cc, cc, h, (u0 % 5) * B_SLOT)
                    else: rdWkv(cc, cc, h, u)
            if u == u0 and rb == 2:
                a(f"""
                v_add_u32 v{VAH}, 0x10000, v{VA}
                v_add_u32 v{VAH+1}, 0x10000, v{VA+1}
                v_lshrrev_b32 v{VG2}, 4, v0
                v_lshlrev_b32 v{VG2}, 10, v{VG2}
                v_sub_u32 v{VB}, v{VB}, v{VG2}
                v_sub_u32 v{VB+1}, v{VB+1}, v{VG2}
                v_sub_u32 v{VQ}, v{VB}, v{VG2}
                v_sub_u32 v{VQ+1}, v{VB+1}, v{VG2}
                v_lshlrev_b32 v{VLN}, 4, v0
                """)
            if kk == 0 and rb == 5 and blk + LOOK < 16 and VTOUCH:
                a(f"buffer_load_dword v7, v6, {sr(S_W,4)}, s{S_KB} offen")
                a(f"s_add_u32 s{S_KB}, s{S_KB}, {64*6144}")
            if kk == 0 and rb == 6 and blk + LOOK < 16 and VTOUCH:
                a(f"buffer_load_dword v7, v5, {sr(S_X,4)}, s{S_KA} offen")
                a(f"s_add_u32 s{S_KA}, s{S_KA}, 128")
        a.wait_lds_all()
        a("s_barrier")
        for rb in range(8):
            for c in (2, 3):
                mf(rb, c, c)
                if rb < 4 and c == 2:
                    if u < 31: rdWkv(rb >> 1, rb >> 1, rb & 1, u + 1)
                    else: rdWq(rb >> 1, rb >> 1, rb & 1, 0, 0)
            if u < 31: rdXs(rb, (((u + 1) // 2) % 3) * A_SLOT, (u + 1) % 2)
            else: rdXs(rb, aslot_q[qorder[0]], 0)
    qsave = list(a.q); stamp(2); a.q = qsave
    a(f"s_cmp_eq_u32 s{S_TH}, 1")
    a(f"s_cselect_b64 vcc, -1, 0")
    S_G = S_ASL; S_LK = S_KB
    KVSC = ["", " sc1", " nt", " sc0"][opts.get("kvsc", 1)]
    def pack(rd, ra, rb_):
        return [f"v_cvt_pk_bf16_f32 v{rd}, v{ra}, v{ra+1}", f"v_cvt_pk_bf16_f32 v{rd+1}, v{ra+2}, v{ra+3}",
                f"v_cvt_pk_bf16_f32 v{rd+2}, v{rb_}, v{rb_+1}", f"v_cvt_pk_bf16_f32 v{rd+3}, v{rb_+2}, v{rb_+3}"]
    def swap(ra):
        return [f"v_permlane16_swap_b32 v{ra}, v{ra+2}", f"v_permlane16_swap_b32 v{ra+1}, v{ra+3}"]
    frs = []
    for tb in range(4):
        frs.append((acc(2*tb, 0), acc(2*tb, 0), acc(2*tb+1, 0), tb, 0))
        frs.append((acc(2*tb, 1), acc(2*tb, 1), acc(2*tb+1, 1), tb, 1))
        frs.append((acc(2*tb, 2), acc(2*tb, 2), acc(2*tb, 3), tb, 2))
        frs.append((acc(2*tb, 3), acc(2*tb+1, 2), acc(2*tb+1, 3), tb, 3))
    side = L(f"""
    s_lshl_b32 s{S_T0}, s{S_TH}, 14
    s_add_u32 s{S_G}, s{S_KVB}, s{S_T0}
    s_lshl_b32 s{S_T1}, s{S_HH}, 14
    s_lshl_b32 s{S_T0}, s{S_TH}, 13
    s_add_u32 s{S_LK}, s{S_T1}, s{S_T0}
    s_mov_b32 s{S_M0}, {f32bits(QSCALE)}
    s_mov_b32 s{S_M0+1}, {f32bits(QSCALE)}
    v_add_u32 v{VG2}, s{S_LK}, v{VLN}
    v_add_u32 v{VG2+3}, {R_K}, v{VG2}
    v_add_u32 v{VG2+4}, {LDS_BYTES - 8192}, v{VLN}
    """)
    for i, fr in enumerate(frs + [None]):
        if fr is not None: side += pack(fr[0], fr[1], fr[2])
        else: side += ["s_nop 1"]
        if i >= 1: side += swap(frs[i-1][0]) + [("ready", i - 1)]
    C_LDS = LDS_BYTES - 8192
    assert all(it["lds"] + it["size"] <= C_LDS for it in items if it["free"] > 31)
    side += attn_consts0(VLN) + attn_consts2()[17:]
    cread = [f"ds_read_b128 {vr((BD if i < 4 else BF) + 4*(i%4), 4)}, v{VG2+4} offset:{1024*i}" for i in range(8)]
    ready = set()
    stores = list(range(16))
    qfr = [(acc(2*tb, 4+f), acc(2*tb+1, 4+f), tb, f) for tb in range(4) for f in range(2)]
    def emit_side(n):
        while side and n > 0:
            x = side.pop(0)
            if isinstance(x, tuple): ready.add(x[1])
            else:
                if not (opts.get("x_noside") and x.startswith("v_")): a(x)
                n -= 1
    assert D == 3
    nm = 32 * D
    NSQ = opts.get("nsq", 12)
    st_first, st_last = opts.get("st0", 8), nm - opts.get("st1", 8)
    done = 0
    kw = [i for i in range(16) if frs[i][4] < 2]; vw = [i for i in range(16) if frs[i][4] >= 2]
    def kv_store(vl):
        rd, _, _, tb, sl = frs[stores.pop(0)]
        a(f"s_add_u32 s{S_T3}, s{S_G}, {tb*4096}")
        a(f"buffer_store_dwordx4 {vr(rd,4)}, v{vl}, {sr(S_WS,4)}, s{S_T3} offen offset:{sl*1024}{KVSC}")
    early = list(range(16))
    st_mid = opts.get("stm", 44); st_pub = opts.get("stp", 80)
    gid = [0]
    def guarded_store(i, cond):
        if opts.get("x_nost"): return
        gid[0] += 1
        rd, _, _, tb, sl = frs[i]
        a(f"s_cbranch_vcc{cond} L_gs{gid[0]}")
        a(f"s_add_u32 s{S_T3}, s{S_G}, {tb*4096}")
        a(f"buffer_store_dwordx4 {vr(rd,4)}, v{VLN}, {sr(S_WS,4)}, s{S_T3} offen offset:{sl*1024}{KVSC}")
        a(f"L_gs{gid[0]}:")
    def publish(vt):
        a(f"""
        s_lshl_b32 s{S_T0}, s{S_P}, 7
        s_lshl_b32 s{S_T1}, s{S_HP}, 3
        s_add_u32 s{S_T0}, s{S_T0}, s{S_T1}
        s_add_u32 s{S_T0}, s{S_T0}, s{S_C}
        s_lshl_b32 s{S_T0}, s{S_T0}, 7
        s_lshl_b32 s{S_T1}, s{S_WID}, 3
        s_add_u32 s{S_T0}, s{S_T0}, s{S_T1}
        s_add_u32 s{S_T0}, s{S_T0}, {WS_FKV}
        v_mov_b32 v{vt}, s{S_NON}
        v_mov_b32 v{vt+1}, s{S_TAG}
        v_mov_b32 v{vt+2}, 0
        s_sub_u32 s{S_KA}, s{S_T0}, 128
        s_waitcnt vmcnt(0)
        s_mov_b64 exec, 1
        buffer_store_dwordx2 v[{vt}:{vt+1}], v{vt+2}, {sr(S_WS,4)}, s{S_T0} offen sc1
        s_mov_b64 exec, -1
        s_nop 3
        """)
        qs = list(a.q); stamp("pub"); a.q = qs
    def stage(lst):
        rd, _, _, tb, sl = frs[lst.pop(0)]
        a.lds(f"ds_write_b128 v{VG2 if sl >= 2 else VG2+3}, {vr(rd,4)} offset:{tb*2048+(sl&1)*1024}", "kw")
    for i, b in enumerate(qorder):
        last = (i == D - 1)
        for kk in range(2):
            cur = (0, 1) if kk == 0 else (2, 3)
            if kk == 0: pend = [(2, 0, 0), (2, 0, 1), (3, 1, 0), (3, 1, 1)]
            else: pend = [] if last else [(0, 0, 0), (0, 0, 1), (1, 1, 0), (1, 1, 1)]
            if kk == 1 and not last: a("s_barrier")
            for rb in range(8):
                if rb == 0: a.wait_lds(f"w{cur[0]}", f"w{cur[1]}", "x3")
                if rb == 4: a.wait_lds("x7")
                for j in range(2):
                    mf(rb, 4 + j, cur[j])
                    if pend:
                        sl, jj, h = pend.pop(0)
                        rdWq(sl, jj, h, i, 1) if kk == 0 else rdWq(sl, jj, h, i + 1, 0)
                    done += 1
                    if done > 2: emit_side(opts.get('spm', 2))
                    if early and early[0] in ready and done >= st_first + (st_mid - st_first) * (16 - len(early)) // 16:
                        guarded_store(early.pop(0), "z")
                    if done == st_pub and not opts.get("x_nopub"):
                        a("s_cbranch_vccz L_nopub1"); publish(4); a("L_nopub1:")
                    nst_done = 16 - len(stores)
                    if nst_done < NSQ and done >= st_mid + (st_last - st_mid) * nst_done // NSQ:
                        guarded_store(stores.pop(0), "nz")
                    if j == 1 and kw and kw[0] in ready: stage(kw)
                    if j == 1 and last and vw and not kw: stage(vw)
                    if j == 0 and last and cread and 15 in ready: a.lds(cread.pop(0), "cr")
                if kk == 0: rdXs(rb, aslot_q[b], 1)
                elif not last: rdXs(rb, aslot_q[qorder[i+1]], 0)
                if last and kk == 1 and rb >= 3 and rb % 2 == 1:
                    a("s_nop 1")
                    for f in range(2):
                        ra, rb_, _, _ = qfr[(rb - 3) + f]
                        for r in (ra, ra+2, rb_, rb_+2):
                            a(f"v_pk_mul_f32 v[{r}:{r+1}], v[{r}:{r+1}], s[{S_M0}:{S_M0+1}]")
                        for x in pack(ra, ra, rb_): a(x)
                    a("s_nop 0")
                    for f in range(2):
                        for x in swap(qfr[(rb - 3) + f][0]): a(x)
    assert not early and not cread and not side and not kw and not vw and len(stores) == 16 - NSQ, (len(side), stores, kw, vw)
    deferred = list(stores)
    a.wait_lds_all()
    stamp("qend")
    a("s_barrier")
    a(f"v_add_u32 v{VG2+1}, {R_Q}, v{VG2}")
    for f in range(2):
        ra, rb_, _, _ = qfr[6 + f]
        for r in (ra, ra+2, rb_, rb_+2):
            a(f"v_pk_mul_f32 v[{r}:{r+1}], v[{r}:{r+1}], s[{S_M0}:{S_M0+1}]")
        for x in pack(ra, ra, rb_): a(x)
    for i in range(6):
        r, _, tb, f = qfr[i]
        a(f"ds_write_b128 v{VG2+1}, {vr(r,4)} offset:{tb*2048+f*1024}")
    for f in range(2):
        for x in swap(qfr[6 + f][0]): a(x)
    a(f"v_mov_b32 v1, v{VLN}")
    for i in (6, 7):
        r, _, tb, f = qfr[i]
        a(f"ds_write_b128 v{VG2+1}, {vr(r,4)} offset:{tb*2048+f*1024}")
    a("s_setprio 1")
    a("s_branch L_attn")
    a("L_loader:")
    if stamps: a("\n".join(f"s_mov_b32 s{r}, s4" for r in [5, 6, 7, 8, 9, 14]))
    VOA = 2; VOB = 6
    a(f"""
    s_sub_u32 s{S_T3}, s{S_WID}, 4
    v_lshrrev_b32 v10, 3, v0
    v_and_b32 v11, 7, v0
    v_lshrrev_b32 v12, 1, v10
    v_xor_b32 v13, v11, v12
    v_xor_b32 v14, 4, v13
    s_lshl_b32 s{S_T0}, s{S_T3}, 16
    v_lshlrev_b32 v15, 11, v10
    v_add_u32 v15, s{S_T0}, v15
    v_lshl_add_u32 v{VOA}, v13, 4, v15
    v_lshl_add_u32 v{VOA+1}, v14, 4, v15
    v_add_u32 v{VOA+1}, {16384-1024}, v{VOA+1}
    v_add_u32 v{VOA+2}, {2*(16384-1024)}, v{VOA}
    v_add_u32 v{VOA+3}, {2*(16384-1024)}, v{VOA+1}
    s_lshl_b32 s{S_LA}, s{S_T3}, 12
    """)
    def issue(it, tag):
        k = it["kind"]
        if opts.get("x_noload") and 4 <= it["need"] < 2*MB: return
        if k == "A":
            a(f"s_mov_b32 s{S_KA}, {it['hf']*128*2048 + it['blk']*128}")
            a(f"s_add_u32 m0, s{S_LA}, {it['lds']}")
            a("s_nop 0")
            for i in range(4): a.vm(f"buffer_load_dwordx4 v{VOA+i}, {sr(S_X,4)}, s{S_KA} offen offset:{1024*i} lds", tag)
        elif k == "B":
            a(f"s_mov_b32 s{S_KB}, {it['u']*32*6144}")
            a(f"s_add_u32 m0, s{S_LB}, {it['lds']}")
            a("s_nop 0")
            for i in range(3): a.vm(f"buffer_load_dwordx4 v{VOB+i}, {sr(S_W,4)}, s{S_KB} offen offset:{1024*i} lds", tag)
        elif k == "KV":
            a(f"s_mov_b32 s{S_KB}, {it['u']*32*6144 + 1024}")
            a(f"s_add_u32 m0, s{S_ASL}, {it['lds']}")
            a("s_nop 0")
            for i in range(2): a.vm(f"buffer_load_dwordx4 v{VOB+1+i}, {sr(S_W,4)}, s{S_KB} offen offset:{1024*i} lds", tag)
        else:
            a(f"s_mov_b32 s{S_KB}, {it['u']*32*6144}")
            a(f"s_add_u32 m0, s{S_BSL}, {it['lds']}")
            a("s_nop 0")
            a.vm(f"buffer_load_dwordx4 v{VOB}, {sr(S_W,4)}, s{S_KB} offen lds", tag)
    a.vq = []
    issue(items[0], "n0")
    a(f"""
    v_and_b32 v12, 1, v12
    s_and_b32 s{S_T0}, s{S_T3}, 1
    s_lshl_b32 s{S_T0}, s{S_T0}, 1
    v_or_b32 v12, s{S_T0}, v12
    v_lshlrev_b32 v12, 1, v12
    v_xor_b32 v13, v11, v12
    s_mul_i32 s{S_T0}, s{S_T3}, {8*6144}
    s_lshl_b32 s{S_T1}, s{S_HP}, 7
    s_add_u32 s{S_T0}, s{S_T0}, s{S_T1}
    v_mul_u32_u24 v15, 6144, v10
    v_add_u32 v15, s{S_T0}, v15
    v_lshl_add_u32 v{VOB}, v13, 4, v15
    v_add_u32 v{VOB+1}, {2048-1024}, v{VOB}
    v_add_u32 v{VOB+2}, {2*(2048-1024)}, v{VOB}
    s_mul_i32 s{S_LB}, s{S_T3}, 3072
    s_lshl_b32 s{S_ASL}, s{S_T3}, 11
    s_lshl_b32 s{S_BSL}, s{S_T3}, 10
    """)
    st_sched = {}
    def ST(k, x):
        st_sched.setdefault(k, []).append(x)
        if x.startswith("s_load") and opts.get("s2", 1):
            head, off = x.rsplit(", ", 1)
            st_sched[k].append(f"{head}, {int(off) + 64}")
    TW, TX, TO, TO2 = 16, 18, 20, 24
    if opts.get("stouch", 1):
        lead = opts.get("slead", 8)
        for i in range(8):
            k = max(4*i - lead, i)
            for seg in range(3): ST(k, f"s_load_dword s22, s[{TW}:{TW+1}], {seg*2048}")
            ST(k, f"s_add_u32 s{TW}, s{TW}, {128*6144}"); ST(k, f"s_addc_u32 s{TW+1}, s{TW+1}, 0")
        for j in range(16): ST(j // 8, f"s_load_dword s22, s[{TX}:{TX+1}], {j*2048 + 3*128}")
        for j in range(16): ST(opts.get("sx11", 6) + j // 2, f"s_load_dword s22, s[{TX}:{TX+1}], {j*2048 + 11*128}")
        for j in range(16): ST(opts.get("swo", 14) + j // 2, f"s_load_dword s22, s[{TO}:{TO+1}], {(j//2)*2048 + (3 + 8*(j&1))*128}")
        woa = opts.get("woa", 16)
        if woa < 16:
            R = (16 - woa) * 32 // 128
            lst = [(kh, j, l) for kh in range(2) for j in range(R) for l in range(16) if l % 8 != 3]
            k0, k1 = opts.get("wk0", 14), opts.get("wk1", 31)
            for i, (kh, j, l) in enumerate(lst):
                ST(k0 + i * (k1 - k0) // len(lst), f"s_load_dword s22, s[{TO2}:{TO2+1}], {kh*512*2048 + j*2048 + l*128 - 0x80000}")
    def st_setup():
        a(f"""
        s_lshr_b32 s{S_T0}, s2, 3
        s_lshl_b32 s{S_T0}, s{S_T0}, 2
        s_add_u32 s{S_T0}, s{S_T0}, s{S_WID}
        s_sub_u32 s{S_T0}, s{S_T0}, 4              ; n = slot*4 + w
        s_mul_i32 s{S_T1}, s{S_T0}, 6144
        s_or_b32 s{S_T2}, s{S_HP}, 3
        s_lshl_b32 s{S_T2}, s{S_T2}, 7
        s_add_u32 s{S_T1}, s{S_T1}, s{S_T2}
        s_add_u32 s{TW}, s{S_W}, s{S_T1}
        s_addc_u32 s{TW+1}, s{S_W+1}, 0
        s_lshl_b32 s{S_T1}, s{S_T0}, 15
        s_lshl_b32 s{S_T2}, s{S_C}, 19
        s_sub_u32 s{TX}, s{S_X}, s{S_T2}
        s_subb_u32 s{TX+1}, s{S_X+1}, 0
        s_add_u32 s{TX}, s{TX}, s{S_T1}
        s_addc_u32 s{TX+1}, s{TX+1}, 0
        s_lshl_b32 s{S_T1}, s{S_T0}, 14
        s_add_u32 s{TO}, s{S_WO}, s{S_T1}
        s_addc_u32 s{TO+1}, s{S_WO+1}, 0
        s_mul_i32 s{S_T1}, s{S_T0}, {(16 - opts.get("woa", 16)) * 32 // 128 * 2048}
        s_add_u32 s{S_T1}, s{S_T1}, {32 * opts.get("woa", 16) * 2048 + 0x80000}
        s_add_u32 s{TO2}, s{S_WO}, s{S_T1}
        s_addc_u32 s{TO2+1}, s{S_WO+1}, 0
        """)
    pendq = items[1:]
    for k in range(-1, nst):
        budget = opts.get("pro", 14) if k < 0 else (opts.get("bud0", 10) if k < 4 else (opts.get("bud", 7) if k < 31 else 10))
        for it in list(pendq):
            if it["after"] <= k and it["need"] <= k + 6 and (budget >= it["n"] or it["need"] <= k + 2):
                pendq.remove(it); issue(it, f"n{it['need']}"); budget -= it["n"]
        if k == -1:
            common_setup(); st_setup()
        for x in st_sched.get(k, []): a(x)
        if k == opts.get("wvt", 99):
            a(f"""
            s_and_b32 s{S_T0}, s{S_OC}, 1
            s_lshl_b32 s{S_T0}, s{S_T0}, 2
            s_add_u32 s{S_T0}, s{S_T0}, s{S_WID}
            s_sub_u32 s{S_T0}, s{S_T0}, 4
            s_lshl_b32 s{S_T0}, s{S_T0}, 18
            s_lshl_b32 s{S_T1}, s{S_OJ}, 7
            s_add_u32 s{S_T0}, s{S_T0}, s{S_T1}
            v_lshlrev_b32 v9, 11, v0
            s_add_u32 s{S_T1}, s{S_T0}, 0x20000
            """)
            a.vm(f"buffer_load_dword v10, v9, {sr(S_WO,4)}, s{S_T0} offen", "wt")
            a.vm(f"buffer_load_dword v10, v9, {sr(S_WO,4)}, s{S_T1} offen", "wt")
        if 18 <= k < 28:
            if k == 18:
                a("v_lshlrev_b32 v1, 4, v0")
                lc = [x for x in attn_consts0(1) + attn_consts1() + attn_consts2() if not x.startswith(f"s_lshl_b32 s{S_LA},")]
                lc.append(f"v_add_u32 v{CT}, {LDS_BYTES - 8192}, v1")
                lc = [x.replace(f"s{S_T0}", "s26").replace(f"s{S_T1}", "s27") for x in lc]
                per = -(-len(lc) // 10)
            for x in lc[(k-18)*per:(k-17)*per]: a(x)
        if k == 32:
            a(f"s_lshl_b32 s{S_LA}, s{S_WID}, 10")
            for i in range(8): a(f"ds_write_b128 v{CT}, {vr((BD if i < 4 else BF) + 4*(i%4), 4)} offset:{1024*i}")
            a("s_waitcnt lgkmcnt(0)")
        if k + 1 < nst:
            assert not any(it["need"] <= k + 1 for it in pendq), k
            a.wait_vm(*[f"n{j}" for j in range(k + 2)])
            if not (opts.get("x_nobar") and 0 <= k < 2*MB): a("s_barrier")
            elif opts.get("x_nobar") == 2: a("s_sleep 10")
    assert not pendq and set(a.vq) <= {"wt"}, (pendq, a.vq)
    a("s_barrier")
    VL = 1; VT = 4
    a("L_attn:")
    a(f"""
    s_lshr_b32 s{S_T0}, s{S_WID}, 1
    s_waitcnt lgkmcnt(0)
    s_barrier
    """)
    stamp(3)
    a(f"""
    s_cmp_eq_u32 s{S_T0}, 1
    s_cbranch_scc1 L_u1
    s_cmp_eq_u32 s{S_T0}, 2
    s_cbranch_scc1 L_u2
    s_cmp_eq_u32 s{S_T0}, 3
    s_cbranch_scc1 L_u3
    """)
    def wo_dma(step, vw=VW, both=False):
        a(f"s_add_u32 m0, s{S_LA}, {wo_slot(step)}")
        a(f"s_mov_b32 s{S_T3}, {step*32*2048}")
        a.vm(f"buffer_load_dwordx4 v{vw}, {sr(S_WO,4)}, s{S_T3} offen lds", f"d{step}")
        if both:
            a(f"s_xor_b32 s{S_T2}, s{S_LA}, 4096")
            a(f"s_add_u32 m0, s{S_T2}, {wo_slot(step)}")
            a("s_nop 0")
            a.vm(f"buffer_load_dwordx4 v{VW2}, {sr(S_WO,4)}, s{S_T3} offen lds", f"d{step}")
    def run_tasks(tasks, hooks, first_touch):
        n = len(tasks)
        def rdK(i):
            for f in range(2):
                a.lds(f"ds_read_b128 {vr(KF+4*f,4)}, v{VKP if tasks[i][4] else VK} offset:{tasks[i][1]+1024*f}", f"k{f}")
        def rdV(i):
            for f in range(2):
                a.lds(f"ds_read_b128 {vr(VF+4*f,4)}, v{VVP if tasks[i][4] else VV} offset:{tasks[i][2]+1024*f}", f"v{f}")
        def qk(i, f):
            u, _, _, bias, _ = tasks[i]
            q = QA if u == "A" else QB
            s = vr(SS[i % 2], 16)
            c = s if f else (vr(bias, 16) if bias is not None else "0")
            a.wait_lds(f"k{f}")
            a(f"v_mfma_f32_32x32x16_bf16 {s}, {vr(KF+4*f,4)}, {vr(q+4*f,4)}, {c}")
        def pv(i, f):
            u = tasks[i][0]
            o = vr(OA if u == "A" else OB, 16)
            c = "0" if (u in first_touch and f == 0) else o
            a.wait_lds(f"v{f}")
            a(f"v_mfma_f32_32x32x16_bf16 {o}, {vr(VF+4*f,4)}, {vr(PP[i%2]+4*f,4)}, {c}")
        def sm(i, f):
            u = tasks[i][0]
            l = vr(LA if u == "A" else LB, 4)
            c = l
            if u in first_touch and f == 0:
                c = "0"; first_touch.discard(u)
            a(f"v_mfma_f32_16x16x32_bf16 {l}, {vr(ON,4)}, {vr(PP[i%2]+4*f,4)}, {c}")
        rdK(0)
        qk(0, 0); qk(0, 1)
        if n > 1: rdK(1)
        for i in range(n + 1):
            for h in hooks.get(i, []): h()
            s = SS[i % 2]; p = PP[i % 2]
            ex = [f"v_exp_f32 v{s+r}, v{s+r}" for r in range(16)] if i < n else []
            cv = [f"v_cvt_pk_bf16_f32 v{p+j}, v{s+2*j}, v{s+2*j+1}" for j in range(8)] if i < n else []
            def E(k):
                for _ in range(k):
                    if ex: a(ex.pop(0))
            def C(k):
                for _ in range(k):
                    if cv: a(cv.pop(0))
            if i + 1 < n: qk(i+1, 0)
            if i == 0: a("s_nop 7"); a("s_nop 3")
            if i == n: a("s_nop 1")
            E(3)
            if i >= 1: pv(i-1, 0)
            E(3)
            if i + 1 < n:
                qk(i+1, 1)
                if i + 2 < n: rdK(i+2)
            E(3)
            if i >= 1: pv(i-1, 1)
            if i < n: rdV(i)
            E(3); C(2)
            if i >= 1: sm(i-1, 0)
            E(4); C(1)
            if i >= 1: sm(i-1, 1)
            C(5)
    uid = [0]
    def finalize(U, qb_expr):
        O, Ls = (OA, LA) if U == "A" else (OB, LB)
        uid[0] += 1
        a(f"""
        {qb_expr}
        s_nop 3
        v_cmp_le_f32 s[{S_M0}:{S_M0+1}], s{S_LO}, v{Ls}
        v_cmp_ge_f32 s[{S_M1}:{S_M1+1}], s{S_HI}, v{Ls}
        s_lshl_b32 s{S_T0}, s{S_QB}, 16
        s_add_u32 s{S_T0}, s{S_T0}, s{S_OB}
        s_and_b64 s[{S_M0}:{S_M0+1}], s[{S_M0}:{S_M0+1}], s[{S_M1}:{S_M1+1}]
        s_cmp_eq_u64 s[{S_M0}:{S_M0+1}], -1
        s_cbranch_scc1 L_ok{uid[0]}
        s_call_b64 s[{S_RET}:{S_RET+1}], L_slow{U}
        L_ok{uid[0]}:
        v_rcp_f32 v{Ls+1}, v{Ls}
        s_nop 0
        """)
        for r in range(16): a(f"v_mul_f32 v{O+r}, v{O+r}, v{Ls+1}")
        for j in range(8): a(f"v_cvt_pk_bf16_f32 v{O+j}, v{O+2*j}, v{O+2*j+1}")
        a.vm(f"buffer_store_dwordx4 {vr(O,4)}, v{VO}, {sr(S_WS,4)}, s{S_T0} offen sc1", "o" + U)
        a.vm(f"buffer_store_dwordx4 {vr(O+4,4)}, v{VO}, {sr(S_WS,4)}, s{S_T0} offen offset:512 sc1", "o" + U)
    def o_flag(U, qb_expr, alt=None):
        VT = 4 if alt is None else 48
        a(f"""
        {qb_expr}
        s_lshl_b32 s{S_T0}, s{S_QB}, 8
        s_add_u32 s{S_T0}, s{S_T0}, s{S_FO}
        v_mov_b32 v{VT}, s{S_NON}
        v_mov_b32 v{VT+1}, s{S_TAG}
        v_mov_b32 v{VT+2}, 0
        """)
        a.wait_vm("o" + U)
        a("s_mov_b64 exec, 1")
        a.vm(f"buffer_store_dwordx2 v[{VT}:{VT+1}], v{VT+2}, {sr(S_WS,4)}, s{S_T0} offen sc1", "fl")
        a("s_mov_b64 exec, -1")
        a("s_nop 3")
        if U == "B":
            qs = list(a.q); stamp("ofl"); a.q = qs
    VR = 8; VPL = 12; VOUT = 13; VL2 = 14; VRD = 15
    WFR = 16; TMP = 48; ACB = [224, 128]
    ORING = [64, 72, 112, 120, 160, 168, 176, 200, 208, 216]
    OSC = " sc1"
    OPRE = opts.get("opre", 6)
    OAH = opts.get("oahead", 8)
    def ofr(g): return ORING[g % 10]
    def p3_pre():
        a(f"""
        s_lshr_b32 s{S_TH}, s{S_WID}, 2
        s_and_b32 s{S_DB}, s{S_WID}, 3
        s_lshl_b32 s{S_T0}, s{S_P}, 3
        s_add_u32 s{S_T0}, s{S_T0}, s{S_OC}
        s_lshl_b32 s{S_T1}, s{S_T0}, 3
        s_add_u32 s{S_T1}, s{S_T1}, s{S_DB}
        s_lshl_b32 s{S_KB}, s{S_T1}, 8
        s_lshl_b32 s{S_T2}, s{S_TH}, 7
        s_add_u32 s{S_KB}, s{S_KB}, s{S_T2}
        s_add_u32 s{S_KB}, s{S_KB}, {WS_FO}
        v_and_b32 v7, 15, v0
        v_lshlrev_b32 v7, 3, v7
        s_lshl_b32 s{S_KA}, s{S_T1}, 16
        s_lshl_b32 s{S_T2}, s{S_TH}, 14
        s_add_u32 s{S_KA}, s{S_KA}, s{S_T2}
        s_add_u32 s{S_KA}, s{S_KA}, {WS_O + 4*65536}
        v_add_u32 v{CT}, 0x8000, v{VL}
        """)
        a.vm(f"buffer_load_dwordx2 v[2:3], v7, {sr(S_WS,4)}, s{S_KB} offen offset:1024 sc1", "pl")
    def flags_ok():
        a(f"""
        v_cmp_eq_u32 s[{S_M0}:{S_M0+1}], s{S_NON}, v2
        v_cmp_eq_u32 s[{S_M1}:{S_M1+1}], s{S_TAG}, v3
        s_nop 1
        s_and_b64 s[{S_M0}:{S_M0+1}], s[{S_M0}:{S_M0+1}], s[{S_M1}:{S_M1+1}]
        s_cmp_eq_u64 s[{S_M0}:{S_M0+1}], -1
        """)
    def poll(tag, off, vpl):
        a.wait_vm("pl")
        a(f"s_mov_b32 s{S_CNT}, 0x40000")
        a(f"L_op{tag}:")
        flags_ok()
        a(f"""
        s_cbranch_scc1 L_og{tag}
        s_sub_u32 s{S_CNT}, s{S_CNT}, 1
        s_cmp_eq_u32 s{S_CNT}, 0
        s_cbranch_scc1 L_og{tag}
        s_sleep 1
        buffer_load_dwordx2 v[2:3], v{vpl}, {sr(S_WS,4)}, s{S_KB} offen offset:{off} sc1
        s_waitcnt vmcnt(0)
        s_branch L_op{tag}
        L_og{tag}:
        """)
    def o_load(g, vl2=VL2):
        i = g % 16
        if g == 16: a(f"s_sub_u32 s{S_KA}, s{S_KA}, {4*65536 + 3*4096}")
        elif i % 4 == 0 and i: a(f"s_add_u32 s{S_KA}, s{S_KA}, 4096")
        r = ofr(g)
        a.vm(f"buffer_load_dwordx4 {vr(r,4)}, v{VL}, {sr(S_WS,4)}, s{S_KA} offen offset:{(i%4)*1024}{OSC}", f"o{g}")
        a.vm(f"buffer_load_dwordx4 {vr(r+4,4)}, v{vl2}, {sr(S_WS,4)}, s{S_KA} offen offset:{(i%4)*1024}{OSC}", f"o{g}")
    for u in range(4):
        if u: a(f"L_u{u}:")
        qa, qb = u, 7 - u
        a(f"v_add_u32 v{VT}, v{VFL}, v{VL}")
        for f in range(2):
            a.lds(f"ds_read_b128 {vr(QB+4*f,4)}, v{VT} offset:{qb*2048+f*1024}", "q")
        for f in range(2):
            a.lds(f"ds_read_b128 {vr(QA+4*f,4)}, v{VT} offset:{qa*2048+f*1024}", "qa")
        a.wait_lds("q")
        own = lambda U, q: [(U, t*2048, t*2048, None, 0) for t in range(q)] + [(U, q*2048, q*2048, BD, 0)]
        prv = lambda U, q: [(U, q*4096, q*4096, BF, 1)] + [(U, t*4096, t*4096, None, 1) for t in range(q+1, 8)]
        hooks = {}
        def H(i, f): hooks.setdefault(i, []).append(f)
        def poll_issue():
            a(f"""
            s_cmp_eq_u32 s{S_C}, 0
            s_cbranch_scc1 L_np{u}
            v_mov_b32 v{VT+2}, 0
            buffer_load_dwordx2 v[2:3], v{VT+2}, {sr(S_WS,4)}, s{S_KA} offen sc1
            L_np{u}:
            """)
        def kv_dma(j):
            def f():
                a(f"""
                s_cmp_eq_u32 s{S_C}, 0
                s_cbranch_scc1 L_nd{u}_{j}
                s_add_u32 m0, s{S_DB}, {4096*j}
                s_add_u32 s{S_T2}, s{S_DA}, {4096*j}
                """)
                for k in range(4):
                    a(f"buffer_load_dwordx4 v{VL}, {sr(S_WS,4)}, s{S_T2} offen offset:{1024*k} sc1 lds")
                a(f"L_nd{u}_{j}:")
            return f
        def poll_check():
            a(f"""
            s_cmp_eq_u32 s{S_C}, 0
            s_cbranch_scc1 L_got{u}
            s_mov_b32 s{S_CNT}, 0x40000
            L_poll{u}:
            s_waitcnt vmcnt(0)
            v_readfirstlane_b32 s{S_T2}, v2
            v_readfirstlane_b32 s{S_T3}, v3
            s_cmp_eq_u32 s{S_T2}, s{S_NON}
            s_cselect_b32 s{S_T2}, 1, 0
            s_cmp_eq_u32 s{S_T3}, s{S_TAG}
            s_cselect_b32 s{S_T2}, s{S_T2}, 0
            s_cmp_lg_u32 s{S_T2}, 0
            s_cbranch_scc1 L_got{u}
            s_sub_u32 s{S_CNT}, s{S_CNT}, 1
            s_cmp_eq_u32 s{S_CNT}, 0
            s_cbranch_scc1 L_got{u}
            s_sleep 1
            buffer_load_dwordx2 v[2:3], v{VT+2}, {sr(S_WS,4)}, s{S_KA} offen sc1
            s_branch L_poll{u}
            L_got{u}:
            s_add_u32 s{S_DA}, s{S_KVB}, {(u*16384 - 32768) & 0xffffffff}
            s_lshl_b32 s{S_DB}, s{S_HH}, 15
            s_add_u32 s{S_DB}, s{S_DB}, {R_PREV + u*16384}
            """)
            qs = list(a.q); stamp("got"); a.q = qs
        def landed_b():
            a(f"""
            v_mov_b32 v2, s{S_NON}
            v_mov_b32 v3, s{S_TAG}
            s_lshl_b32 s{S_T2}, s{S_HH}, 3
            s_add_u32 s{S_T2}, s{S_T2}, {R_Q + 24576}
            v_mov_b32 v{VFL}, s{S_T2}
            """)
            a.wait_vm_all()
            a.lds(f"ds_write_b64 v{VFL}, v[2:3]", "fw")
        def wait_b():
            a(f"""
            s_lshl_b32 s{S_T2}, s{S_HH}, 3
            s_add_u32 s{S_T2}, s{S_T2}, {R_Q + 24576}
            v_mov_b32 v{VFL}, s{S_T2}
            """)
            a.wait_lds_all()
            wait_landed(0, "b")
        def landed():
            a.wait_lds("qa")
            a(f"""
            v_mov_b32 v2, s{S_NON}
            v_mov_b32 v3, s{S_TAG}
            s_waitcnt vmcnt(0)
            """)
            a.lds(f"ds_write_b64 v{VFL}, v[2:3] offset:{qa*2048}", "fw")
        def wait_landed(th, tag):
            assert not a.q
            a(f"""
            s_mov_b32 s{S_CNT}, 0x400000
            L_wl{u}{tag}:
            ds_read_b64 v[2:3], v{VFL} offset:{th*2048}
            s_waitcnt lgkmcnt(0)
            v_readfirstlane_b32 s{S_T2}, v2
            v_readfirstlane_b32 s{S_T3}, v3
            s_cmp_eq_u32 s{S_T2}, s{S_NON}
            s_cselect_b32 s{S_T2}, 1, 0
            s_cmp_eq_u32 s{S_T3}, s{S_TAG}
            s_cselect_b32 s{S_T2}, s{S_T2}, 0
            s_cmp_lg_u32 s{S_T2}, 0
            s_cbranch_scc1 L_wd{u}{tag}
            s_sub_u32 s{S_CNT}, s{S_CNT}, 1
            s_cmp_eq_u32 s{S_CNT}, 0
            s_cbranch_scc1 L_wd{u}{tag}
            s_sleep 1
            s_branch L_wl{u}{tag}
            L_wd{u}{tag}:
            """)
        if u == 1:
            c1 = opts.get("c1", 1)
            H(0, poll_issue); H(c1, poll_check)
            for j in range(4): H(c1 + j // 2, kv_dma(j))
            H(opts.get("l1", 4), landed)
        if u == 0:
            stores[:] = list(deferred)
            nd = len(deferred); spt = opts.get("spt", 2)
            for j in range(nd): H(j // spt, lambda: kv_store(VL))
            pub = opts.get("pub_at", 3)
            H(pub, lambda: publish(VT)); H(pub, poll_issue)
            c0_ = opts.get("c0", 6)
            H(c0_, poll_check)
            for j in range(4): H(c0_ + j // 2, kv_dma(j))
        ft = {"A", "B"}
        run_tasks(own("B", qb), hooks, ft)
        a.wait_lds_all()
        stamp(4)
        a(f"s_cmp_eq_u32 s{S_C}, 0")
        a(f"s_cbranch_scc1 L_z{u}")
        wait_landed(1, "a")
        a.vq = []
        hooks = {}
        nB = 8 - qb
        qbx = f"s_mov_b32 s{S_QB}, {qb}"
        n23 = nB + qa + 1
        H(nB + 1, lambda: finalize("B", qbx))
        fl = nB + 1 + opts.get("ofl", 2)
        if fl <= n23: H(fl, lambda: o_flag("B", qbx))
        run_tasks(prv("B", qb) + own("A", qa), hooks, ft)
        vq23 = list(a.vq)
        a(f"s_branch L_w{u}")
        a(f"L_z{u}:")
        a.vq = []
        a("s_nop 7")
        finalize("B", qbx)
        run_tasks(own("A", qa), {}, {"A"})
        if fl <= n23: o_flag("B", qbx)
        a.vq = vq23
        a(f"L_w{u}:")
        a.wait_lds_all()
        if u < 2: a("s_setprio 0")
        a("s_barrier")
        stamp(5)
        hooks = {}
        if fl > n23: H(max(fl - n23 - 1, 0), lambda: o_flag("B", qbx))
        nA = 8 - qa
        w0 = max(fl - n23 - 1, 0)
        sts = list(range(11))
        wpt = opts.get("wpt", 3)
        if u == 0:
            H(opts.get("lb", 1), landed_b); w0 = max(w0, opts.get("lb", 1))
        for t in range(w0, nA - 1):
            k = wpt if t < nA - 2 else 12
            for st in sts[:k]: H(t, (lambda s_: (lambda: wo_dma(s_)))(st))
            sts = sts[k:]
        assert not sts
        hooks_c0 = {t: list(v) for t, v in hooks.items()}
        if u: H(2, wait_b)
        H(nA - 1, p3_pre); hooks_c0.setdefault(nA - 1, []).append(p3_pre)
        a(f"s_cmp_eq_u32 s{S_C}, 0")
        a(f"s_cbranch_scc1 L_y{u}")
        vq4 = list(a.vq)
        run_tasks(prv("A", qa)[::-1], hooks, set())
        stamp(7)
        a(f"s_mov_b32 s{S_QB}, {qa}")
        a("s_nop 7")
        a("s_branch L_last")
        a(f"L_y{u}:")
        a.vq = vq4
        for t in sorted(hooks_c0):
            for h in hooks_c0[t]: h()
        a.wait_lds_all()
        stamp(7)
        a(f"s_mov_b32 s{S_QB}, {qa}")
        if u < 3: a("s_branch L_last")
    a("L_last:")
    a.vq = ["old"]
    finalize("A", "")
    a.wait_vm("old")
    flags_ok()
    a("s_cbranch_scc0 L_late")
    for g in range(OPRE): o_load(g, CT)
    o_flag("A", "")
    a("s_branch L_p3")
    a("L_late:")
    vq_keep = list(a.vq)
    a.vq = ["oA", "oA"]
    o_flag("A", "")
    a.vm(f"buffer_load_dwordx2 v[2:3], v7, {sr(S_WS,4)}, s{S_KB} offen offset:1024 sc1", "pl")
    poll("1", 1024, 7)
    for g in range(OPRE): o_load(g, CT)
    a("s_waitcnt vmcnt(0)")
    a.vq = vq_keep
    a("L_p3:")
    a(f"""
    v_bfe_u32 v5, v0, 2, 2
    v_bfe_u32 v6, v0, 4, 1
    v_lshl_add_u32 v5, v6, 2, v5
    v_lshlrev_b32 v{VR}, 7, v5
    v_bfe_u32 v6, v5, 1, 2
    v_lshl_add_u32 v{VR}, v6, 5, v{VR}
    v_and_b32 v6, 3, v0
    v_lshl_add_u32 v{VR}, v6, 3, v{VR}
    v_lshrrev_b32 v6, 5, v0
    v_lshl_add_u32 v{VR}, v6, 11, v{VR}
    s_lshl_b32 s{S_T0}, s{S_TH}, 12
    v_add_u32 v{VR}, s{S_T0}, v{VR}
    v_xor_b32 v{VR+1}, 32, v{VR}
    v_xor_b32 v{VR+2}, 64, v{VR}
    v_xor_b32 v{VR+3}, 0x60, v{VR}
    v_mov_b32 v{VPL}, v7
    v_mov_b32 v{VL2}, v{CT}
    v_mov_b32 v7, v{VW}
    """)
    a("s_barrier")
    stamp(9)
    for st in range(11, 16): wo_dma(st, 7)
    a(f"""
    v_and_b32 v{VOUT}, 15, v0
    v_lshlrev_b32 v{VOUT}, 12, v{VOUT}
    v_bfe_u32 v6, v0, 4, 1
    v_lshl_add_u32 v{VOUT}, v6, 5, v{VOUT}
    v_lshrrev_b32 v6, 5, v0
    v_lshl_add_u32 v{VOUT}, v6, 4, v{VOUT}
    s_lshl_b32 s{S_T0}, s{S_OC}, 8
    s_lshl_b32 s{S_T1}, s{S_DB}, 5
    s_add_u32 s{S_T0}, s{S_T0}, s{S_T1}
    s_lshl_b32 s{S_T0}, s{S_T0}, 12
    s_lshl_b32 s{S_T1}, s{S_P}, 11
    s_add_u32 s{S_T0}, s{S_T0}, s{S_T1}
    s_lshl_b32 s{S_T1}, s{S_OJ}, 7
    s_add_u32 s{S_T0}, s{S_T0}, s{S_T1}
    s_lshl_b32 s{S_T1}, s{S_TH}, 6
    s_add_u32 s{S_DA}, s{S_T0}, s{S_T1}
    s_lshl_b32 s{S_T0}, s{S_WID}, 12
    s_add_u32 s{S_T0}, s{S_T0}, {R_RED}
    v_add_u32 v{VRD}, s{S_T0}, v{VL}
    s_xor_b32 s{S_T0}, s{S_T0}, 0x4000
    v_add_u32 v4, s{S_T0}, v{VL}
    s_cmp_eq_u32 s{S_TH}, 0
    s_cselect_b64 s[{S_CODE}:{S_CODE+1}], -1, 0
    """)
    cur_base = [0]
    def rdWo(g, nb):
        slot = wo_slot(g % 16)
        assert slot & ~0xffff == cur_base[0], (g, nb)
        w = WFR + 16 * (g % 2) + 4 * nb
        for h in range(2):
            a.lds(f"ds_read_b64_tr_b16 {vr(w+2*h,2)}, v{VR+nb} offset:{(slot & 0xffff) + h*1024}", f"w{g%2}_{nb}")
    def rebase(g):
        base = wo_slot(g % 16) & ~0xffff
        if base != cur_base[0]:
            d = (base - cur_base[0]) & 0xffffffff
            for q in range(4): a(f"v_add_u32 v{VR+q}, {d:#x}, v{VR+q}")
            cur_base[0] = base
    def ac(sl, nb, tb): return ACB[sl] + (nb*2 + tb)*4
    KEEP = f"s[{S_CODE}:{S_CODE+1}]"
    def red_send(sl):
        lo, hi = ac(sl, 0, 0), ac(sl, 2, 0)
        o = []
        for r in range(16):
            o.append(f"v_cndmask_b32 v{TMP+r}, v{lo+r}, v{hi+r}, {KEEP}")
        for r in range(16):
            o.append(f"v_cndmask_b32 v{lo+r}, v{hi+r}, v{lo+r}, {KEEP}")
        for i in range(4):
            o.append(("lds", f"ds_write_b128 v{VRD}, {vr(TMP+4*i,4)} offset:{1024*i}", "rw"))
        return o
    def red_recv(sl):
        lo = ac(sl, 0, 0)
        o = [("lds", f"ds_read_b128 {vr(TMP+4*i,4)}, v4 offset:{1024*i}", f"rr{i}") for i in range(4)]
        for i in range(4):
            o.append(("wait", f"rr{i}"))
            for r in range(4): o.append(f"v_add_f32 v{lo+4*i+r}, v{lo+4*i+r}, v{TMP+4*i+r}")
        for tb in range(2):
            ra, rb_, t = lo + 4*tb, lo + 8 + 4*tb, TMP + 4*tb
            o += [f"v_cvt_pk_bf16_f32 v{t}, v{ra}, v{ra+1}", f"v_cvt_pk_bf16_f32 v{t+1}, v{ra+2}, v{ra+3}",
                  f"v_cvt_pk_bf16_f32 v{t+2}, v{rb_}, v{rb_+1}", f"v_cvt_pk_bf16_f32 v{t+3}, v{rb_+2}, v{rb_+3}"]
        o += [f"s_add_u32 s{S_T0}, s{S_DA}, {(1-sl)*128*4096}", f"s_add_u32 s{S_T1}, s{S_T0}, 0x10000"]
        for tb in range(2): o += swap(TMP + 4*tb)
        o.append("s_nop 0")
        for tb in range(2):
            o.append(("vm", f"buffer_store_dwordx4 {vr(TMP+4*tb,4)}, v{VOUT}, {sr(S_OUT,4)}, s{S_T1 if tb else S_T0} offen{['', ' sc1', ' nt', ' sc0 sc1'][opts.get('outsc', 1)]}", "st"))
        return o
    def emit(x):
        if isinstance(x, str): a(x)
        elif x[0] == "lds": a.lds(x[1], x[2])
        elif x[0] == "vm": a.vm(x[1], x[2])
        else: a.wait_lds(x[1])
    for nb in range(4): rdWo(0, nb)
    side = []
    P2C = opts.get("p2c", 11)
    issued = set()
    def issue_step(x): return max(x - OAH, P2C) if x >= 16 else x - OAH
    for g in range(32):
        sl, st = divmod(g, 16)
        if g == 9:
            a.wait_vm("d15"); a("s_barrier")
        if g == P2C - 2:
            a.vm(f"buffer_load_dwordx2 v[2:3], v{VPL}, {sr(S_WS,4)}, s{S_KB} offen sc1", "pl")
        if g == P2C: poll("0", 0, VPL)
        if g == 16:
            qsave = list(a.q); stamp("mm1"); a.q = qsave
        if g == 17: side = red_send(0)
        if g == 20:
            assert not side
            a.wait_lds("rw"); a("s_barrier"); side = red_recv(0)
        if g == 27:
            assert not side
            a("s_barrier")
        a.wait_vm(f"o{g}")
        if g < 31: rebase(g + 1)
        for nb in range(4):
            a.wait_lds(f"w{g%2}_{nb}")
            for tb in range(2):
                d = vr(ac(sl, nb, tb), 4)
                a(f"v_mfma_f32_16x16x32_bf16 {d}, {vr(WFR+16*(g%2)+4*nb,4)}, {vr(ofr(g)+4*tb,4)}, {d if st else '0'}")
                for _ in range(2):
                    if side: emit(side.pop(0))
            if g < 31: rdWo(g + 1, nb)
            if nb in (1, 3):
                due = [x for x in range(OPRE, 32) if x not in issued and issue_step(x) <= g]
                if due:
                    o_load(due[0]); issued.add(due[0])
    stamp(10)
    a("s_nop 7")
    for x in red_send(1): emit(x)
    a.wait_lds_all()
    a("s_barrier")
    for x in red_recv(1): emit(x)
    if stamps:
        a("s_waitcnt vmcnt(0)")
        stamp(11)
        a(f"""
        s_lshl_b32 s{S_T0}, s2, 3
        s_add_u32 s{S_T0}, s{S_T0}, s{S_WID}
        s_lshl_b32 s{S_T0}, s{S_T0}, 6
        s_add_u32 s{S_T0}, s{S_T0}, {WS_STAMP}
        v_mov_b32 v7, 0
        """)
        for i in range(16): a(f"v_mov_b32 v{8+i}, s{4+i}")
        a(f"""
        s_mov_b64 exec, 1
        buffer_store_dwordx4 v[8:11], v7, {sr(S_WS,4)}, s{S_T0} offen
        buffer_store_dwordx4 v[12:15], v7, {sr(S_WS,4)}, s{S_T0} offen offset:16
        buffer_store_dwordx4 v[16:19], v7, {sr(S_WS,4)}, s{S_T0} offen offset:32
        buffer_store_dwordx4 v[20:23], v7, {sr(S_WS,4)}, s{S_T0} offen offset:48
        s_mov_b64 exec, -1
        """)
    a(f"""
    s_cmp_lg_u32 s{S_WID}, 0
    s_cbranch_scc1 L_end
    v_mov_b32 v4, 1
    v_mov_b32 v7, 0
    s_mov_b64 exec, 1
    buffer_atomic_add v4, v7, {sr(S_DBG,4)}, 0 offen sc0
    s_waitcnt vmcnt(0)
    v_readfirstlane_b32 s{S_T0}, v4
    s_cmp_lg_u32 s{S_T0}, 255
    s_cbranch_scc1 L_end
    v_mov_b32 v4, s{S_NON}
    s_mov_b32 s{S_T0}, {WS_FLAG}
    buffer_store_dword v4, v7, {sr(S_WS,4)}, s{S_T0} offen sc1
    L_end:
    s_endpgm
    """)
    for U, O, Ls, Q in (("A", OA, LA, QA), ("B", OB, LB, QB)):
        S = 64; P = 112; K2 = 120; V2 = 160; M = 168; NB = 169; AK = 170; AT = 171
        if U == "A":
            S = SS[0]; P = PP[0]; K2 = KF; V2 = VF; M = SS[1]; NB = M + 1; AK = M + 2; AT = M + 3
        a(f"""
        L_slow{U}:
        v_and_b32 v{AK}, 0x33, v0
        v_bfe_u32 v{AT}, v0, 2, 1
        v_lshl_or_b32 v{AK}, v{AT}, 3, v{AK}
        v_bfe_u32 v{AT}, v0, 3, 1
        v_lshl_or_b32 v{AK}, v{AT}, 2, v{AK}
        v_lshlrev_b32 v{AK}, 4, v{AK}
        v_mov_b32 v{M}, 0xff800000
        s_mov_b32 s{S_U0}, 0
        L_sp{U}:
        s_mov_b32 s{S_U1}, 0
        s_cmp_eq_u32 s{S_C}, 0
        s_cbranch_scc0 L_st{U}
        s_sub_u32 s{S_U1}, 8, s{S_QB}
        L_st{U}:
        s_add_u32 s{S_U2}, s{S_U1}, s{S_QB}
        s_lshl_b32 s{S_U2}, s{S_U2}, 12
        s_add_u32 s{S_U2}, s{S_U2}, s{S_KVB}
        s_sub_u32 s{S_U2}, s{S_U2}, 0x8000
        buffer_load_dwordx4 {vr(K2,4)}, v{AK}, {sr(S_WS,4)}, s{S_U2} offen sc1
        buffer_load_dwordx4 {vr(K2+4,4)}, v{AK}, {sr(S_WS,4)}, s{S_U2} offen offset:1024 sc1
        buffer_load_dwordx4 {vr(V2,4)}, v{VL}, {sr(S_WS,4)}, s{S_U2} offen offset:2048 sc1
        buffer_load_dwordx4 {vr(V2+4,4)}, v{VL}, {sr(S_WS,4)}, s{S_U2} offen offset:3072 sc1
        s_waitcnt vmcnt(0)
        s_cmp_eq_u32 s{S_U1}, 0
        s_cbranch_scc1 L_sf{U}
        s_cmp_eq_u32 s{S_U1}, 8
        s_cbranch_scc1 L_sd{U}
        v_mfma_f32_32x32x16_bf16 {vr(S,16)}, {vr(K2,4)}, {vr(Q,4)}, 0
        s_branch L_sj{U}
        L_sf{U}:
        v_mfma_f32_32x32x16_bf16 {vr(S,16)}, {vr(K2,4)}, {vr(Q,4)}, {vr(BF,16)}
        s_branch L_sj{U}
        L_sd{U}:
        v_mfma_f32_32x32x16_bf16 {vr(S,16)}, {vr(K2,4)}, {vr(Q,4)}, {vr(BD,16)}
        L_sj{U}:
        v_mfma_f32_32x32x16_bf16 {vr(S,16)}, {vr(K2+4,4)}, {vr(Q+4,4)}, {vr(S,16)}
        s_nop 7
        s_nop 7
        s_cmp_eq_u32 s{S_U0}, 0
        s_cbranch_scc0 L_s2{U}
        """)
        for r in range(16): a(f"v_max_f32 v{M}, v{M}, v{S+r}")
        a(f"s_branch L_sn{U}")
        a(f"L_s2{U}:")
        for r in range(16): a(f"v_sub_f32 v{S+r}, v{S+r}, v{M}")
        for r in range(16): a(f"v_exp_f32 v{S+r}, v{S+r}")
        a("s_nop 0")
        for j in range(8): a(f"v_cvt_pk_bf16_f32 v{P+j}, v{S+2*j}, v{S+2*j+1}")
        a("s_nop 1")
        for f in range(2):
            a(f"v_mfma_f32_32x32x16_bf16 {vr(O,16)}, {vr(V2+4*f,4)}, {vr(P+4*f,4)}, {vr(O,16)}")
        for f in range(2):
            a(f"v_mfma_f32_16x16x32_bf16 {vr(Ls,4)}, {vr(ON,4)}, {vr(P+4*f,4)}, {vr(Ls,4)}")
        a(f"""
        s_nop 7
        s_nop 7
        L_sn{U}:
        s_add_u32 s{S_U1}, s{S_U1}, 1
        s_cmp_le_u32 s{S_U1}, 8
        s_cbranch_scc1 L_st{U}
        s_cmp_eq_u32 s{S_U0}, 0
        s_cbranch_scc0 L_sx{U}
        v_mov_b32 v{NB}, v{M}
        s_nop 1
        v_permlane32_swap_b32 v{NB}, v{M}
        s_nop 1
        v_max_f32 v{M}, v{M}, v{NB}
        """)
        for r in range(16): a(f"v_mov_b32 v{O+r}, 0")
        for r in range(4): a(f"v_mov_b32 v{Ls+r}, 0")
        a(f"""
        s_mov_b32 s{S_U0}, 1
        s_branch L_sp{U}
        L_sx{U}:
        s_setpc_b64 s[{S_RET}:{S_RET+1}]
        """)
    a("L_codeend:")
    hdr = open("concat_heads__sliding_block__sliding_block__prompt.s.ref").read().split("; Override launch")[0]
    head = hdr + f"""; @launch grid=(256,1,1) block=(512,1,1) lds={LDS_BYTES}
.amdgcn_target "amdgcn-amd-amdhsa--gfx950"
.text
.globl {name}
.p2align 8
.type {name},@function
{name}:
"""
    tail = f"""
.section .rodata,"a"
.p2align 6
.amdhsa_kernel {name}
  .amdhsa_next_free_vgpr 256
  .amdhsa_next_free_sgpr 102
  .amdhsa_accum_offset 256
  .amdhsa_group_segment_fixed_size 0
  .amdhsa_kernarg_size 72
  .amdhsa_user_sgpr_count 2
  .amdhsa_user_sgpr_kernarg_segment_ptr 1
  .amdhsa_system_sgpr_workgroup_id_x 1
.end_amdhsa_kernel
"""
    return head + a.text().replace("CODE_END_BYTES", "(L_codeend - L_pcref)") + tail

if __name__ == "__main__":
    stamps = "--stamps" in sys.argv
    opts = {}
    for x in sys.argv[2:]:
        if "=" in x:
            k, v = x.split("="); opts[k] = int(v)
    open(sys.argv[1], "w").write(gen(stamps, opts=opts))
```

```python
import sys, struct

class Asm:
    def __init__(self):
        self.l = []
        self.q = []
        self.vq = []
    def __call__(self, s):
        for x in s.strip("\n").split("\n"):
            x = x.strip()
            if not x: continue
            self.l.append(x if x.endswith(":") else "    " + x)
    def text(self):
        return "\n".join(self.l) + "\n"
    def lds(self, s, tag):
        self(s); self.q.append(tag)
    def wait_lds(self, *tags):
        idx = [i for i, t in enumerate(self.q) if t in tags]
        if not idx: return
        last = max(idx); n = min(len(self.q) - 1 - last, 15)
        self(f"s_waitcnt lgkmcnt({n})")
        self.q = self.q[len(self.q)-n:] if n else []
    def wait_lds_all(self):
        self("s_waitcnt lgkmcnt(0)"); self.q = []
    def vm(self, s, tag):
        self(s); self.vq.append(tag)
    def wait_vm(self, *tags):
        idx = [i for i, t in enumerate(self.vq) if t in tags]
        if not idx: return
        last = max(idx); n = len(self.vq) - 1 - last
        assert n <= 63, n
        self(f"s_waitcnt vmcnt({n})")
        self.vq = self.vq[last+1:]
    def wait_vm_all(self):
        self("s_waitcnt vmcnt(0)"); self.vq = []

def vr(a, n): return f"v[{a}:{a+n-1}]"
def sr(a, n): return f"s[{a}:{a+n-1}]"
def f32bits(x): return struct.unpack("<I", struct.pack("<f", x))[0]
def L(s): return [x.strip() for x in s.strip().split("\n") if x.strip()]

WS_KV = 0
WS_O = 16 << 20
WS_FLAG = 24 << 20
WS_FKV = WS_FLAG + 4096
WS_FO = WS_FLAG + 65536
WS_STAMP = 25 << 20
WS_BYTES = 26 << 20
TAGX = 0x5bd1e995

A_SLOT = 32768; B_BASE = 3 * A_SLOT; B_SLOT = 12288
LDS_BYTES = 160 * 1024
R_V = 0; R_PREV = 32768; R_K = 98304; R_Q = 131072; R_RED = 65536
def wo_slot(st): return [R_V, R_K, R_Q, R_PREV][st // 4] + (st % 4) * 8192

S_X = 36; S_W = 40; S_WS = 44; S_WO = 48; S_OUT = 52; S_DBG = 56
S_P = 60; S_C = 61; S_HP = 62; S_WID = 63
S_T0 = 64; S_T1 = 65; S_T2 = 66; S_T3 = 67
S_ASL = 68; S_BSL = 69; S_KA = 70; S_KB = 71; S_CNT = 72
S_TH = 73; S_HH = 74; S_DA = 75; S_DB = 76
S_NON = 77; S_KVB = 78; S_OC = 79; S_OJ = 80; S_TAG = 81
S_LA = 82; S_LB = 83
S_M0 = 84; S_M1 = 86
S_QB = 88; S_OB = 89
S_RET = 90; S_CODE = 92
S_FO = 96; S_U0 = 97; S_U1 = 98; S_U2 = 99
S_LO = 34; S_HI = 35

QSCALE = 0.17677669529663687 * 1.4426950408889634
CODE_LINES = 512

def gen(stamps=False, name="concat_heads__sliding_block__sliding_block__prompt_kernel", opts=None):
    opts = opts or {}
    a = Asm()
    SN = ["start", "bar0", "main", "kv", "qend", "pub", "barA", "p1end", "barC", "p2end", "got", "barE", "mm1", "mm", "end", "ofl"]
    def stamp(i):
        if isinstance(i, str): i = SN.index(i)
        else: i = SN.index({0: "start", 1: "bar0", 2: "kv", 3: "barA", 4: "p1end", 5: "barC", 7: "p2end", 9: "barE", 10: "mm", 11: "end"}.get(i, "none")) if i not in (6, 8) else None
        if i is None: return
        if stamps:
            a(f"s_memtime s[100:101]" if opts.get("cyc") else f"s_memrealtime s[100:101]")
            a(f"s_waitcnt lgkmcnt(0)")
            a(f"s_mov_b32 s{4+i}, s100")
            a.q = []
    a(f"""
    s_cmp_ge_u32 s2, 256
    s_cbranch_scc1 L_end
    s_load_dwordx16 s[16:31], s[0:1], 0
    s_load_dwordx2 s[32:33], s[0:1], 64
    """)
    stamp(0)
    a(f"""
    v_lshrrev_b32 v1, 6, v0
    v_and_b32 v0, 63, v0
    s_and_b32 s{S_T0}, s2, 7
    v_readfirstlane_b32 s{S_WID}, v1
    s_lshr_b32 s{S_T1}, s2, 3
    s_lshr_b32 s{S_P}, s{S_T0}, 2
    s_and_b32 s{S_T2}, s{S_T0}, 3              ; hq
    s_lshr_b32 s{S_C}, s{S_T1}, 2              ; chunk
    s_and_b32 s{S_T3}, s{S_T1}, 3
    s_lshl_b32 s{S_HP}, s{S_T2}, 2
    s_add_u32 s{S_HP}, s{S_HP}, s{S_T3}
    s_lshr_b32 s{S_OC}, s{S_T1}, 4
    s_lshl_b32 s{S_T3}, s{S_T2}, 1
    s_add_u32 s{S_OC}, s{S_OC}, s{S_T3}
    s_and_b32 s{S_OJ}, s{S_T1}, 15
    s_and_b32 s{S_HH}, s{S_WID}, 1
    s_waitcnt lgkmcnt(0)
    s_cmp_eq_u32 s{S_P}, 0
    s_cselect_b32 s{S_X}, s16, s22
    s_cselect_b32 s{S_X+1}, s17, s23
    s_cselect_b32 s{S_W}, s18, s24
    s_cselect_b32 s{S_W+1}, s19, s25
    s_cselect_b32 s{S_WO}, s20, s26
    s_cselect_b32 s{S_WO+1}, s21, s27
    s_lshl_b32 s{S_T0}, s{S_C}, 19
    s_add_u32 s{S_X}, s{S_X}, s{S_T0}
    s_addc_u32 s{S_X+1}, s{S_X+1}, 0
    s_mov_b32 s{S_X+2}, 0x80000
    s_mov_b32 s{S_X+3}, 0x20000
    s_mov_b32 s{S_W+2}, 0x600000
    s_mov_b32 s{S_W+3}, 0x20000
    s_cmp_ge_u32 s{S_WID}, 4
    s_cbranch_scc1 L_loader
    """)
    def common_setup():
        a(f"""
        s_add_u32 s{S_T0}, s32, {WS_FLAG}
        s_addc_u32 s{S_T1}, s33, 0
        s_load_dword s{S_NON}, s[{S_T0}:{S_T1}], 0
        s_mov_b32 s{S_WS}, s32
        s_mov_b32 s{S_WS+1}, s33
        s_mov_b32 s{S_WS+2}, {WS_BYTES}
        s_mov_b32 s{S_WS+3}, 0x20000
        s_mov_b32 s{S_WO+2}, 0x200000
        s_mov_b32 s{S_WO+3}, 0x20000
        s_mov_b32 s{S_OUT}, s28
        s_mov_b32 s{S_OUT+1}, s29
        s_mov_b32 s{S_OUT+2}, 0x800000
        s_mov_b32 s{S_OUT+3}, 0x20000
        s_mov_b32 s{S_DBG}, s30
        s_mov_b32 s{S_DBG+1}, s31
        s_mov_b32 s{S_DBG+2}, 256
        s_mov_b32 s{S_DBG+3}, 0x20000
        s_lshl_b32 s{S_T3}, s{S_HP}, 1
        s_add_u32 s{S_T3}, s{S_T3}, s{S_HH}        ; head
        s_lshl_b32 s{S_T2}, s{S_P}, 5
        s_add_u32 s{S_T2}, s{S_T2}, s{S_T3}        ; p*32+head
        s_lshl_b32 s{S_T2}, s{S_T2}, 6
        s_lshl_b32 s{S_KVB}, s{S_C}, 3
        s_add_u32 s{S_T2}, s{S_T2}, s{S_KVB}
        s_lshl_b32 s{S_KVB}, s{S_T2}, 12
        s_lshl_b32 s{S_T2}, s{S_P}, 3
        s_add_u32 s{S_T2}, s{S_T2}, s{S_C}         ; p*8+c
        s_lshl_b32 s{S_OB}, s{S_T2}, 19
        s_lshl_b32 s{S_FO}, s{S_T3}, 10
        s_add_u32 s{S_OB}, s{S_OB}, s{S_FO}
        s_add_u32 s{S_OB}, s{S_OB}, {WS_O}
        s_lshl_b32 s{S_FO}, s{S_T2}, 11
        s_lshl_b32 s{S_T3}, s{S_T3}, 3
        s_add_u32 s{S_FO}, s{S_FO}, s{S_T3}
        s_add_u32 s{S_FO}, s{S_FO}, {WS_FO}
        s_mov_b32 s{S_LO}, {f32bits(2.0**-60)}
        s_mov_b32 s{S_HI}, {f32bits(2.0**60)}
        s_waitcnt lgkmcnt(0)
        s_add_u32 s{S_NON}, s{S_NON}, 1
        s_xor_b32 s{S_TAG}, s{S_NON}, {TAGX}
        """)
    BD = 88; BF = 136; ON = 184; VW = 188; VO = 189; VK = 190; VV = 191; CT = 192; VW2 = 195; VKP = 196; VVP = 197; VFL = 198
    QA = 8; QB = 16; OA = 24; OB = 40; LA = 56; LB = 60; KF = 80; VF = 104; SS = [224, 240]; PP = [128, 152]
    VLS = 194
    def attn_consts0(vl):
        return L(f"""
        v_and_b32 v{CT}, 0x33, v0
        v_bfe_u32 v{CT+1}, v0, 2, 1
        v_lshl_or_b32 v{CT}, v{CT+1}, 3, v{CT}
        v_bfe_u32 v{CT+1}, v0, 3, 1
        v_lshl_or_b32 v{CT}, v{CT+1}, 2, v{CT}
        s_lshl_b32 s{S_T0}, s{S_HH}, 14
        v_lshlrev_b32 v{VK}, 4, v{CT}
        v_add_u32 v{VV}, s{S_T0}, v{vl}
        s_add_u32 s{S_T0}, s{S_T0}, {R_K}
        v_add_u32 v{VK}, s{S_T0}, v{VK}
        s_lshl_b32 s{S_T0}, s{S_HH}, 14
        s_add_u32 s{S_T1}, s{S_T0}, {(R_PREV - R_K) & 0xffffffff:#x}
        v_add_u32 v{VKP}, s{S_T1}, v{VK}
        s_add_u32 s{S_T1}, s{S_T0}, {R_PREV + 2048}
        v_add_u32 v{VVP}, s{S_T1}, v{VV}
        s_add_u32 s{S_T1}, s{S_T0}, {R_Q}
        v_mov_b32 v{VFL}, s{S_T1}
        v_lshrrev_b32 v{CT}, 2, v0
        v_lshrrev_b32 v{CT+1}, 4, v0
        v_xor_b32 v{CT}, v{CT}, v{CT+1}
        v_and_b32 v{CT}, 1, v{CT}
        v_subrev_u32 v{CT}, 1, v{CT}
        v_and_b32 v{ON}, 0x3f803f80, v{CT}
        v_mov_b32 v{ON+1}, v{ON}
        v_mov_b32 v{ON+2}, v{ON}
        v_mov_b32 v{ON+3}, v{ON}
        """)
    def attn_consts1():
        c = L(f"""
        v_and_b32 v{CT}, 31, v0
        v_lshrrev_b32 v{BD}, 5, v0
        v_lshlrev_b32 v{BD}, 3, v{BD}
        v_sub_u32 v{CT}, v{CT}, v{BD}
        s_mov_b32 s{S_T1}, 0xff800000
        """)
        for r in range(16):
            f, u_, e = r >> 3, (r >> 2) & 1, r & 3
            kc = 16*f + 4*u_ + e
            c += [f"v_subrev_u32 v{BD+r}, {kc}, v{CT}", f"v_ashrrev_i32 v{BD+r}, 31, v{BD+r}", f"v_and_b32 v{BD+r}, s{S_T1}, v{BD+r}"]
        return c
    def attn_consts2():
        c = [f"s_mov_b32 s{S_T1}, 0xff800000"]
        c += [f"v_xor_b32 v{BF+r}, s{S_T1}, v{BD+r}" for r in range(16)]
        c += L(f"""
        v_lshrrev_b32 v{CT}, 3, v0
        v_and_b32 v{VW}, 7, v0
        v_bfe_u32 v{VO}, v0, 4, 2
        v_lshlrev_b32 v{VO}, 1, v{VO}
        v_xor_b32 v{VW}, v{VW}, v{VO}
        s_lshr_b32 s{S_T0}, s{S_WID}, 2
        s_lshl_b32 s{S_T0}, s{S_T0}, 20
        s_and_b32 s{S_T1}, s{S_WID}, 3
        s_lshl_b32 s{S_T1}, s{S_T1}, 14
        s_add_u32 s{S_T0}, s{S_T0}, s{S_T1}
        s_lshl_b32 s{S_T1}, s{S_OJ}, 7
        s_add_u32 s{S_T0}, s{S_T0}, s{S_T1}
        v_lshlrev_b32 v{CT}, 11, v{CT}
        v_add_u32 v{CT}, s{S_T0}, v{CT}
        v_lshl_add_u32 v{VW}, v{VW}, 4, v{CT}
        v_xor_b32 v{VW2}, 0x100000, v{VW}
        s_lshl_b32 s{S_LA}, s{S_WID}, 10
        v_and_b32 v{VO}, 15, v0
        v_lshrrev_b32 v{CT}, 5, v0
        v_lshl_add_u32 v{VO}, v{CT}, 4, v{VO}
        v_lshlrev_b32 v{VO}, 4, v{VO}
        v_bfe_u32 v{CT}, v0, 4, 1
        v_lshl_add_u32 v{VO}, v{CT}, 15, v{VO}
        """)
        return c
    D = opts.get("D", 3); MB = 16 - D
    KVS = B_BASE; QS = B_BASE + 32768; A4 = KVS
    qorder = [15, 14, 13] + list(range(12, MB - 1, -1))
    qorder = qorder[:D]
    aslot_q = {}
    for i, b in enumerate(qorder):
        aslot_q[b] = (b % 3) * A_SLOT if b >= 13 else [A4, 0, 2 * A_SLOT, A_SLOT][(i - 3) % 4]
    nst = 32 + D
    items = []
    for u in range(32):
        b, kk = divmod(u, 2)
        if kk == 0:
            for hf in range(2): items.append(dict(need=u, kind="A", blk=b, hf=hf, lds=(b % 3)*A_SLOT + hf*16384, size=16384,
                                                  free=(u + 2) if b < 13 or b not in qorder else 32 + qorder.index(b) + 2))
        if u <= 2*MB: items.append(dict(need=u, kind="B", u=u, lds=B_BASE + (u % 5)*B_SLOT, size=B_SLOT, free=u + 1))
        else: items.append(dict(need=u, kind="KV", u=u, lds=None, size=8192, free=u + 1))
    for i, b in enumerate(qorder):
        if b < 13:
            for hf in range(2): items.append(dict(need=32 + i, kind="A", blk=b, hf=hf, lds=aslot_q[b] + hf*16384, size=16384, free=32 + i + 2))
        for kk in range(2): items.append(dict(need=32 + i, kind="Q", u=2*b + kk, qi=(i, kk), lds=None, size=4096, free=32 + i + 2))
    def after_of(n, lo, size):
        r = -1
        for pv_ in items[:n]:
            if pv_["lds"] < lo + size and lo < pv_["lds"] + pv_["size"]: r = max(r, pv_["free"])
        return r
    for n, it in enumerate(items):
        if it["lds"] is None:
            lo_lim = B_BASE if it["kind"] == "KV" else QS
            cands = range(lo_lim, LDS_BYTES - 8192 - it["size"] + 1, 4096)
            it["lds"] = min(cands, key=lambda lo: (max(after_of(n, lo, it["size"]), it["need"] - 5), lo))
        it["after"] = after_of(n, it["lds"], it["size"])
        assert it["after"] < it["need"], it
        it["n"] = {"A": 4, "B": 3, "KV": 2, "Q": 1}[it["kind"]]
    def kvslot(u): return [it["lds"] for it in items if it["kind"] == "KV" and it["u"] == u][0]
    def qslot(i, kk): return [it["lds"] for it in items if it["kind"] == "Q" and it["qi"] == (i, kk)][0]
    VA = 1; VB = 3; VT = 5
    XF = 8; WF = 40; ACC = 64
    SEG = [1, 1, 2, 2, 0, 0]
    def acc(rb, col): return ACC + (rb * 6 + col) * 4
    def xf(rb): return XF + 4 * rb
    def wf(sl): return WF + 4 * sl
    a(f"""
    s_lshr_b32 s{S_TH}, s{S_WID}, 1
    v_and_b32 v{VT}, 15, v0
    v_lshrrev_b32 v{VT+1}, 4, v0
    v_bfe_u32 v{VT+2}, v0, 1, 3
    v_xor_b32 v{VT+2}, v{VT+2}, v{VT+1}
    v_lshlrev_b32 v{VT+2}, 4, v{VT+2}
    v_lshl_add_u32 v{VT+2}, v{VT}, 7, v{VT+2}
    s_lshl_b32 s{S_T0}, s{S_TH}, 14
    v_add_u32 v{VA}, s{S_T0}, v{VT+2}
    v_xor_b32 v{VA+1}, 64, v{VA}
    v_bfe_u32 v{VT}, v0, 2, 2
    v_lshlrev_b32 v{VB}, 7, v{VT}
    v_and_b32 v{VT}, 3, v0
    v_lshl_add_u32 v{VB}, v{VT}, 3, v{VB}
    v_mul_u32_u24 v{VT}, 3072, v{VT+1}
    v_add_u32 v{VB}, v{VB}, v{VT}
    v_bfe_u32 v{VT}, v0, 3, 2
    s_lshl_b32 s{S_T0}, s{S_HH}, 1
    v_xor_b32 v{VT}, s{S_T0}, v{VT}
    v_lshl_add_u32 v{VB}, v{VT}, 5, v{VB}
    v_add_u32 v{VB}, {B_BASE}, v{VB}
    v_xor_b32 v{VB+1}, 32, v{VB}
    """)
    LOOK = opts.get("look", 4)
    a(f"""
    s_and_b32 s{S_T0}, s{S_HP}, 3
    s_lshl_b32 s{S_T0}, s{S_T0}, 6
    s_lshl_b32 s{S_T1}, s{S_WID}, 4
    s_add_u32 s{S_T0}, s{S_T0}, s{S_T1}
    s_lshl_b32 s{S_T0}, s{S_T0}, 11
    v_lshlrev_b32 v5, 11, v0
    v_add_u32 v5, s{S_T0}, v5
    v_mov_b32 v11, 0x7f000000
    v_cmp_lt_u32 vcc, 15, v0
    v_and_b32 v9, 1, v0
    v_lshrrev_b32 v10, 1, v0
    v_cndmask_b32 v5, v5, v11, vcc
    s_lshl_b32 s{S_T0}, s{S_C}, 3
    s_lshl_b32 s{S_T1}, s{S_WID}, 1
    s_add_u32 s{S_T0}, s{S_T0}, s{S_T1}
    v_add_u32 v6, s{S_T0}, v9
    v_mul_u32_u24 v6, 6144, v6
    v_lshl_add_u32 v6, v10, 11, v6
    s_lshl_b32 s{S_T0}, s{S_HP}, 7
    v_add_u32 v6, s{S_T0}, v6
    v_cmp_lt_u32 vcc, 5, v0
    s_movk_i32 s{S_KA}, {128*LOOK}
    s_mov_b32 s{S_KB}, {64*6144*LOOK}
    v_cndmask_b32 v6, v6, v11, vcc
    s_getpc_b64 s[{S_CODE}:{S_CODE+1}]
    s_mov_b32 s{S_CODE+2}, CODE_END_BYTES
    s_mov_b32 s{S_CODE+3}, 0x20000
    s_lshr_b32 s{S_T0}, s2, 3
    s_and_b32 s{S_T0}, s{S_T0}, 7
    s_lshl_b32 s{S_T0}, s{S_T0}, 2
    s_add_u32 s{S_T0}, s{S_T0}, s{S_WID}
    s_mul_i32 s{S_T0}, s{S_T0}, {CODE_LINES // 32 * 128}
    v_lshlrev_b32 v12, 7, v0
    v_add_u32 v12, s{S_T0}, v12
    v_cmp_lt_u32 vcc, 15, v0
    s_nop 1
    v_cndmask_b32 v12, v12, v11, vcc
    """)
    a(f"""
    s_and_b32 s{S_T0}, s{S_OC}, 1
    s_lshl_b32 s{S_T0}, s{S_T0}, 9
    s_mul_i32 s{S_T1}, s{S_WID}, 10
    s_add_u32 s{S_T0}, s{S_T0}, s{S_T1}
    s_lshl_b32 s{S_T0}, s{S_T0}, 11
    s_lshl_b32 s{S_T1}, s{S_OJ}, 7
    s_add_u32 s{S_QB}, s{S_T0}, s{S_T1}
    v_cmp_lt_u32 vcc, 9, v0
    v_lshlrev_b32 v0, 11, v0
    s_nop 0
    v_cndmask_b32 v0, v0, v11, vcc
    """)
    a("L_pcref:")
    common_setup()
    for r in range(ACC, 256):
        a(f"v_mov_b32 v{r}, 0")
    a(f"""
    s_mov_b32 s{S_ASL}, 0
    s_mov_b32 s{S_BSL}, 0
    s_mov_b32 s{S_CNT}, {MB}
    s_barrier
    """)
    stamp(1)
    VTOUCH = opts.get("vtouch", 0)
    for b in range(3, LOOK if VTOUCH else 0):
        a(f"s_mov_b32 s{S_T0}, {64*6144*b}")
        a(f"buffer_load_dword v7, v6, {sr(S_W,4)}, s{S_T0} offen")
        a(f"buffer_load_dword v7, v5, {sr(S_X,4)}, 0 offen offset:{128*b}")
    if opts.get("codetouch", 1):
        a(f"buffer_load_dword v7, v12, {sr(S_CODE,4)}, 0 offen")
    def rdX(rb, va, off=0):
        a.lds(f"ds_read_b128 {vr(xf(rb),4)}, v{va} offset:{2048*rb+off}", f"x{rb}")
    def rdW(sl, col, half, off=0):
        a.lds(f"ds_read_b64_tr_b16 {vr(wf(sl)+2*half,2)}, v{VB+(col&1)} offset:{off+SEG[col]*1024+half*512}", f"w{sl}")
    def mf(rb, col, sl):
        d = vr(acc(rb, col), 4)
        if col in (2, 3):
            a(f"v_mfma_f32_16x16x32_bf16 {d}, {vr(xf(rb),4)}, {vr(wf(sl),4)}, {d}")
        else:
            a(f"v_mfma_f32_16x16x32_bf16 {d}, {vr(wf(sl),4)}, {vr(xf(rb),4)}, {d}")
    for rb in range(8):
        if rb < 3:
            rdW(rb, rb, 0); rdW(rb, rb, 1)
        rdX(rb, VA)
    q0 = list(a.q)
    a("L_cloop:")
    for kk in range(2):
        fill = {}
        for i, (c, h) in enumerate([(c, h) for c in (3, 4, 5) for h in (0, 1)]):
            fill[i] = (lambda c=c, h=h: rdW(c, c, h))
        for i, x in enumerate(L(f"""
            s_add_u32 s{S_T0}, s{S_BSL}, {B_SLOT}
            s_cmp_eq_u32 s{S_T0}, {5*B_SLOT}
            s_cselect_b32 s{S_T0}, 0, s{S_T0}
            s_sub_u32 s{S_DB}, s{S_T0}, s{S_BSL}
            s_mov_b32 s{S_BSL}, s{S_T0}
            """)): fill[6 + i] = (lambda x=x: a(x))
        fill[12] = lambda: a(f"v_add_u32 v{VB}, s{S_DB}, v{VB}")
        fill[13] = lambda: a(f"v_add_u32 v{VB+1}, s{S_DB}, v{VB+1}")
        if kk == 1:
            for i, x in enumerate(L(f"""
                s_add_u32 s{S_T0}, s{S_ASL}, {A_SLOT}
                s_cmp_eq_u32 s{S_T0}, {3*A_SLOT}
                s_cselect_b32 s{S_T0}, 0, s{S_T0}
                s_sub_u32 s{S_DA}, s{S_T0}, s{S_ASL}
                s_mov_b32 s{S_ASL}, s{S_T0}
                v_add_u32 v{VA}, s{S_DA}, v{VA}
                v_add_u32 v{VA+1}, s{S_DA}, v{VA+1}
                """)): fill[14 + i] = (lambda x=x: a(x))
        m = 0
        for rb in range(8):
            if rb == 0: a.wait_lds("w0", "w1", "w2", "x3")
            if rb == 4: a.wait_lds("x7")
            for c in range(3):
                mf(rb, c, c)
                if m in fill: fill[m]()
                m += 1
        a.wait_lds_all()
        if not opts.get("x_nobar"): a("s_barrier")
        pend = [(c, h) for c in (0, 1, 2) for h in (0, 1)]
        m = 0
        for rb in range(8):
            for c in range(3, 6):
                mf(rb, c, c)
                if c == 5: rdX(rb, VA + (kk ^ 1))
                elif pend:
                    cc, h = pend.pop(0); rdW(cc, cc, h)
                elif kk == 1 and m == 18: a(f"s_sub_u32 s{S_CNT}, s{S_CNT}, 1")
                elif kk == 1 and m == 19: a(f"s_cmp_lg_u32 s{S_CNT}, 0")
                m += 1
        if kk == 0: qmid = list(a.q)
        else: assert a.q == qmid
    assert qmid == q0, (qmid, q0)
    a("s_cbranch_scc1 L_cloop")
    qsave = list(a.q); stamp("main"); a.q = qsave
    VAH = 56; VLN = 58; VG2 = 59; VQ = 60
    u0 = 2 * MB
    a(f"""
    v_mbcnt_lo_u32_b32 v0, -1, 0
    v_mbcnt_hi_u32_b32 v0, -1, v0
    v_add_u32 v{VA}, {(-(MB % 3)*A_SLOT) & 0xffffffff:#x}, v{VA}
    v_add_u32 v{VA+1}, {(-(MB % 3)*A_SLOT) & 0xffffffff:#x}, v{VA+1}
    v_add_u32 v{VB}, {(-(u0 % 5)*B_SLOT) & 0xffffffff:#x}, v{VB}
    v_add_u32 v{VB+1}, {(-(u0 % 5)*B_SLOT) & 0xffffffff:#x}, v{VB+1}
    """)
    def rdXs(rb, slot, kk):
        if slot < 65536: rdX(rb, VA + kk, slot)
        else: rdX(rb, VAH + kk, slot - 65536)
    def rdWkv(sl, col, half, u):
        a.lds(f"ds_read_b64_tr_b16 {vr(wf(sl)+2*half,2)}, v{VB+(col&1)} offset:{kvslot(u)-B_BASE+(col>>1)*1024+half*512}", f"w{sl}")
    def rdWq(sl, j, half, i, kk):
        a.lds(f"ds_read_b64_tr_b16 {vr(wf(sl)+2*half,2)}, v{VQ+j} offset:{qslot(i,kk)-B_BASE+half*512}", f"w{sl}")
    for u in range(u0, 32):
        blk, kk = divmod(u, 2)
        pend = [(3, 0), (3, 1)] if u == u0 else [(2, 0), (2, 1), (3, 0), (3, 1)]
        for rb in range(8):
            if rb == 0: a.wait_lds("w0", "w1", "x3")
            if rb == 4: a.wait_lds("x7")
            for c in range(2):
                mf(rb, c, c)
                if pend:
                    cc, h = pend.pop(0)
                    if u == u0: rdW(cc, cc, h, (u0 % 5) * B_SLOT)
                    else: rdWkv(cc, cc, h, u)
            if u == u0 and rb == 2:
                a(f"""
                v_add_u32 v{VAH}, 0x10000, v{VA}
                v_add_u32 v{VAH+1}, 0x10000, v{VA+1}
                v_lshrrev_b32 v{VG2}, 4, v0
                v_lshlrev_b32 v{VG2}, 10, v{VG2}
                v_sub_u32 v{VB}, v{VB}, v{VG2}
                v_sub_u32 v{VB+1}, v{VB+1}, v{VG2}
                v_sub_u32 v{VQ}, v{VB}, v{VG2}
                v_sub_u32 v{VQ+1}, v{VB+1}, v{VG2}
                v_lshlrev_b32 v{VLN}, 4, v0
                """)
            if kk == 0 and rb == 5 and blk + LOOK < 16 and VTOUCH:
                a(f"buffer_load_dword v7, v6, {sr(S_W,4)}, s{S_KB} offen")
                a(f"s_add_u32 s{S_KB}, s{S_KB}, {64*6144}")
            if kk == 0 and rb == 6 and blk + LOOK < 16 and VTOUCH:
                a(f"buffer_load_dword v7, v5, {sr(S_X,4)}, s{S_KA} offen")
                a(f"s_add_u32 s{S_KA}, s{S_KA}, 128")
        a.wait_lds_all()
        a("s_barrier")
        if u == 31: break
        for rb in range(8):
            for c in (2, 3):
                mf(rb, c, c)
                if rb < 4 and c == 2: rdWkv(rb >> 1, rb >> 1, rb & 1, u + 1)
            rdXs(rb, (((u + 1) // 2) % 3) * A_SLOT, (u + 1) % 2)
    S_G = S_ASL; S_LK = S_KB
    KVSC = ["", " sc1", " nt", " sc0"][opts.get("kvsc", 1)]
    def pack(rd, ra, rb_):
        return [f"v_cvt_pk_bf16_f32 v{rd}, v{ra}, v{ra+1}", f"v_cvt_pk_bf16_f32 v{rd+1}, v{ra+2}, v{ra+3}",
                f"v_cvt_pk_bf16_f32 v{rd+2}, v{rb_}, v{rb_+1}", f"v_cvt_pk_bf16_f32 v{rd+3}, v{rb_+2}, v{rb_+3}"]
    def swap(ra):
        return [f"v_permlane16_swap_b32 v{ra}, v{ra+2}", f"v_permlane16_swap_b32 v{ra+1}, v{ra+3}"]
    frs = []
    for tb in range(4):
        frs.append((acc(2*tb, 0), acc(2*tb, 0), acc(2*tb+1, 0), tb, 0))
        frs.append((acc(2*tb, 1), acc(2*tb, 1), acc(2*tb+1, 1), tb, 1))
        frs.append((acc(2*tb, 2), acc(2*tb, 2), acc(2*tb, 3), tb, 2))
        frs.append((acc(2*tb, 3), acc(2*tb+1, 2), acc(2*tb+1, 3), tb, 3))
    C_LDS = LDS_BYTES - 8192
    assert all(it["lds"] + it["size"] <= C_LDS for it in items if it["free"] > 31)
    assert D == 3
    qfr = [(acc(2*tb, 4+f), acc(2*tb+1, 4+f), tb, f) for tb in range(4) for f in range(2)]
    order = [i for i in range(16) if frs[i][4] < 2] + [i for i in range(16) if frs[i][4] >= 2]
    NSQ = opts.get("nsq", 12)
    stores = []
    def kv_store(vl):
        rd, _, _, tb, sl = frs[stores.pop(0)]
        a(f"s_add_u32 s{S_T3}, s{S_G}, {tb*4096}")
        a(f"buffer_store_dwordx4 {vr(rd,4)}, v{vl}, {sr(S_WS,4)}, s{S_T3} offen offset:{sl*1024}{KVSC}")
    def publish(vt):
        a(f"""
        s_lshl_b32 s{S_U0}, s{S_P}, 7
        s_lshl_b32 s{S_U1}, s{S_HP}, 3
        s_add_u32 s{S_U0}, s{S_U0}, s{S_U1}
        s_add_u32 s{S_U0}, s{S_U0}, s{S_C}
        s_lshl_b32 s{S_U0}, s{S_U0}, 7
        s_lshl_b32 s{S_U1}, s{S_WID}, 3
        s_add_u32 s{S_U0}, s{S_U0}, s{S_U1}
        s_add_u32 s{S_U0}, s{S_U0}, {WS_FKV}
        v_mov_b32 v{vt}, s{S_NON}
        v_mov_b32 v{vt+1}, s{S_TAG}
        v_mov_b32 v{vt+2}, 0
        s_sub_u32 s{S_KA}, s{S_U0}, 128
        s_waitcnt vmcnt(0)
        s_mov_b64 exec, 1
        buffer_store_dwordx2 v[{vt}:{vt+1}], v{vt+2}, {sr(S_WS,4)}, s{S_U0} offen sc1
        s_mov_b64 exec, -1
        s_nop 3
        """)
        qs = list(a.q); stamp("pub"); a.q = qs
    def qpass(th):
        side = L(f"""
        s_add_u32 s{S_G}, s{S_KVB}, {th << 14}
        s_lshl_b32 s{S_LK}, s{S_HH}, 14
        s_add_u32 s{S_LK}, s{S_LK}, {th << 13}
        v_add_u32 v{VG2}, s{S_LK}, v{VLN}
        v_add_u32 v{VG2+3}, {R_K}, v{VG2}
        """)
        for n, i in enumerate(order + [None]):
            if n == 8: side.append(("vwait",))
            if i is not None: side += pack(frs[i][0], frs[i][1], frs[i][2])
            else: side += ["s_nop 1"]
            if n >= 1: side += swap(frs[order[n-1]][0]) + [("ready", order[n-1])]
        side += L(f"""
        s_mov_b32 s{S_M0}, {f32bits(QSCALE)}
        s_mov_b32 s{S_M0+1}, {f32bits(QSCALE)}
        v_add_u32 v{VG2+4}, {LDS_BYTES - 8192}, v{VLN}
        """) + attn_consts0(VLN) + attn_consts2()[17:]
        cread = [f"ds_read_b128 {vr((BD if i < 4 else BF) + 4*(i%4), 4)}, v{VG2+4} offset:{1024*i}" for i in range(8)]
        ready = set()
        stores[:] = list(order)
        done = [-16]
        def emit_side(n):
            while side and n > 0:
                x = side[0]
                if x == ("vwait",):
                    if done[0] < 4: return
                    side.pop(0); continue
                side.pop(0)
                if isinstance(x, tuple): ready.add(x[1])
                else: a(x); n -= 1
        nm = 32 * D
        st_first, st_mid, st_last = opts.get("st0", -6), opts.get("stm", 40), nm - opts.get("st1", 8)
        st_pub = opts.get("stp", 76)
        kw = order[:8]; vw = order[8:]
        def stage(lst):
            rd, _, _, tb, sl = frs[lst.pop(0)]
            a.lds(f"ds_write_b128 v{VG2 if sl >= 2 else VG2+3}, {vr(rd,4)} offset:{tb*2048+(sl&1)*1024}", "kw")
        def after_mfma(j, last):
            done[0] += 1
            d = done[0]
            emit_side(opts.get("spm", 2))
            nd = 16 - len(stores)
            if th == 1:
                if stores and stores[0] in ready and d >= st_first + (st_mid - st_first) * nd // 16: kv_store(VLN)
                if d == st_pub: publish(4)
            elif nd < NSQ and stores[0] in ready and d >= st_mid + (st_last - st_mid) * nd // NSQ: kv_store(VLN)
            if j == 1 and kw and kw[0] in ready: stage(kw)
            if j == 1 and last and vw and not kw: stage(vw)
            if j == 0 and last and cread and order[-1] in ready and not side: a.lds(cread.pop(0), "cr")
        for rb in range(8):
            for c in (2, 3):
                mf(rb, c, c)
                if rb < 4 and c == 2: rdWq(rb >> 1, rb >> 1, rb & 1, 0, 0)
                after_mfma(c - 2, False)
            rdXs(rb, aslot_q[qorder[0]], 0)
        qsave = list(a.q); stamp(2); a.q = qsave
        for i, b in enumerate(qorder):
            last = (i == D - 1)
            for kk in range(2):
                cur = (0, 1) if kk == 0 else (2, 3)
                if kk == 0: pend = [(2, 0, 0), (2, 0, 1), (3, 1, 0), (3, 1, 1)]
                else: pend = [] if last else [(0, 0, 0), (0, 0, 1), (1, 1, 0), (1, 1, 1)]
                if kk == 1 and not last: a("s_barrier")
                for rb in range(8):
                    if rb == 0: a.wait_lds(f"w{cur[0]}", f"w{cur[1]}", "x3")
                    if rb == 4: a.wait_lds("x7")
                    for j in range(2):
                        mf(rb, 4 + j, cur[j])
                        if pend:
                            sl, jj, h = pend.pop(0)
                            rdWq(sl, jj, h, i, 1) if kk == 0 else rdWq(sl, jj, h, i + 1, 0)
                        after_mfma(j, last)
                    if kk == 0: rdXs(rb, aslot_q[b], 1)
                    elif not last: rdXs(rb, aslot_q[qorder[i+1]], 0)
                    if last and kk == 1 and rb >= 3 and rb % 2 == 1:
                        a("s_nop 1")
                        for f in range(2):
                            ra, rb_, _, _ = qfr[(rb - 3) + f]
                            for r in (ra, ra+2, rb_, rb_+2):
                                a(f"v_pk_mul_f32 v[{r}:{r+1}], v[{r}:{r+1}], s[{S_M0}:{S_M0+1}]")
                            for x in pack(ra, ra, rb_): a(x)
                        a("s_nop 0")
                        for f in range(2):
                            for x in swap(qfr[(rb - 3) + f][0]): a(x)
        assert not cread and not side and not kw and not vw and len(stores) == (0 if th else 16 - NSQ), (len(side), stores, kw, vw, cread)
        a.wait_lds_all()
    assert not a.q
    a(f"s_cmp_eq_u32 s{S_TH}, 1")
    a("s_cbranch_scc1 L_q1")
    qpass(0)
    deferred = list(stores)
    a("s_branch L_qe")
    a("L_q1:")
    qpass(1)
    a("L_qe:")
    stamp("qend")
    a("s_barrier")
    a(f"v_add_u32 v{VG2+1}, {R_Q}, v{VG2}")
    for f in range(2):
        ra, rb_, _, _ = qfr[6 + f]
        for r in (ra, ra+2, rb_, rb_+2):
            a(f"v_pk_mul_f32 v[{r}:{r+1}], v[{r}:{r+1}], s[{S_M0}:{S_M0+1}]")
        for x in pack(ra, ra, rb_): a(x)
    for i in range(6):
        r, _, tb, f = qfr[i]
        a(f"ds_write_b128 v{VG2+1}, {vr(r,4)} offset:{tb*2048+f*1024}")
    for f in range(2):
        for x in swap(qfr[6 + f][0]): a(x)
    a(f"v_mov_b32 v1, v{VLN}")
    for i in (6, 7):
        r, _, tb, f = qfr[i]
        a(f"ds_write_b128 v{VG2+1}, {vr(r,4)} offset:{tb*2048+f*1024}")
    a("s_setprio 1")
    a("s_branch L_attn")
    a("L_loader:")
    if stamps: a("\n".join(f"s_mov_b32 s{r}, s4" for r in [5, 6, 7, 8, 9, 14]))
    VOA = 2; VOB = 6
    a(f"""
    s_sub_u32 s{S_T3}, s{S_WID}, 4
    v_lshrrev_b32 v10, 3, v0
    v_and_b32 v11, 7, v0
    v_lshrrev_b32 v12, 1, v10
    v_xor_b32 v13, v11, v12
    v_xor_b32 v14, 4, v13
    s_lshl_b32 s{S_T0}, s{S_T3}, 16
    v_lshlrev_b32 v15, 11, v10
    v_add_u32 v15, s{S_T0}, v15
    v_lshl_add_u32 v{VOA}, v13, 4, v15
    v_lshl_add_u32 v{VOA+1}, v14, 4, v15
    v_add_u32 v{VOA+1}, {16384-1024}, v{VOA+1}
    v_add_u32 v{VOA+2}, {2*(16384-1024)}, v{VOA}
    v_add_u32 v{VOA+3}, {2*(16384-1024)}, v{VOA+1}
    s_lshl_b32 s{S_LA}, s{S_T3}, 12
    """)
    def issue(it, tag):
        k = it["kind"]
        if opts.get("x_noload") and 4 <= it["need"] < 2*MB: return
        if k == "A":
            a(f"s_mov_b32 s{S_KA}, {it['hf']*128*2048 + it['blk']*128}")
            a(f"s_add_u32 m0, s{S_LA}, {it['lds']}")
            a("s_nop 0")
            for i in range(4): a.vm(f"buffer_load_dwordx4 v{VOA+i}, {sr(S_X,4)}, s{S_KA} offen offset:{1024*i} lds", tag)
        elif k == "B":
            a(f"s_mov_b32 s{S_KB}, {it['u']*32*6144}")
            a(f"s_add_u32 m0, s{S_LB}, {it['lds']}")
            a("s_nop 0")
            for i in range(3): a.vm(f"buffer_load_dwordx4 v{VOB+i}, {sr(S_W,4)}, s{S_KB} offen offset:{1024*i} lds", tag)
        elif k == "KV":
            a(f"s_mov_b32 s{S_KB}, {it['u']*32*6144 + 1024}")
            a(f"s_add_u32 m0, s{S_ASL}, {it['lds']}")
            a("s_nop 0")
            for i in range(2): a.vm(f"buffer_load_dwordx4 v{VOB+1+i}, {sr(S_W,4)}, s{S_KB} offen offset:{1024*i} lds", tag)
        else:
            a(f"s_mov_b32 s{S_KB}, {it['u']*32*6144}")
            a(f"s_add_u32 m0, s{S_BSL}, {it['lds']}")
            a("s_nop 0")
            a.vm(f"buffer_load_dwordx4 v{VOB}, {sr(S_W,4)}, s{S_KB} offen lds", tag)
    a.vq = []
    issue(items[0], "n0")
    a(f"""
    v_and_b32 v12, 1, v12
    s_and_b32 s{S_T0}, s{S_T3}, 1
    s_lshl_b32 s{S_T0}, s{S_T0}, 1
    v_or_b32 v12, s{S_T0}, v12
    v_lshlrev_b32 v12, 1, v12
    v_xor_b32 v13, v11, v12
    s_mul_i32 s{S_T0}, s{S_T3}, {8*6144}
    s_lshl_b32 s{S_T1}, s{S_HP}, 7
    s_add_u32 s{S_T0}, s{S_T0}, s{S_T1}
    v_mul_u32_u24 v15, 6144, v10
    v_add_u32 v15, s{S_T0}, v15
    v_lshl_add_u32 v{VOB}, v13, 4, v15
    v_add_u32 v{VOB+1}, {2048-1024}, v{VOB}
    v_add_u32 v{VOB+2}, {2*(2048-1024)}, v{VOB}
    s_mul_i32 s{S_LB}, s{S_T3}, 3072
    s_lshl_b32 s{S_ASL}, s{S_T3}, 11
    s_lshl_b32 s{S_BSL}, s{S_T3}, 10
    """)
    st_sched = {}
    def ST(k, x):
        st_sched.setdefault(k, []).append(x)
        if x.startswith("s_load") and opts.get("s2", 1):
            head, off = x.rsplit(", ", 1)
            st_sched[k].append(f"{head}, {int(off) + 64}")
    TW, TX, TO, TO2 = 16, 18, 20, 24
    if opts.get("stouch", 1):
        lead = opts.get("slead", 8)
        for i in range(8):
            k = max(4*i - lead, i)
            for seg in range(3): ST(k, f"s_load_dword s22, s[{TW}:{TW+1}], {seg*2048}")
            ST(k, f"s_add_u32 s{TW}, s{TW}, {128*6144}"); ST(k, f"s_addc_u32 s{TW+1}, s{TW+1}, 0")
        for j in range(16): ST(j // 8, f"s_load_dword s22, s[{TX}:{TX+1}], {j*2048 + 3*128}")
        for j in range(16): ST(opts.get("sx11", 6) + j // 2, f"s_load_dword s22, s[{TX}:{TX+1}], {j*2048 + 11*128}")
        for j in range(16): ST(opts.get("swo", 14) + j // 2, f"s_load_dword s22, s[{TO}:{TO+1}], {(j//2)*2048 + (3 + 8*(j&1))*128}")
        woa = opts.get("woa", 16)
        if woa < 16:
            R = (16 - woa) * 32 // 128
            lst = [(kh, j, l) for kh in range(2) for j in range(R) for l in range(16) if l % 8 != 3]
            k0, k1 = opts.get("wk0", 14), opts.get("wk1", 31)
            for i, (kh, j, l) in enumerate(lst):
                ST(k0 + i * (k1 - k0) // len(lst), f"s_load_dword s22, s[{TO2}:{TO2+1}], {kh*512*2048 + j*2048 + l*128 - 0x80000}")
    def st_setup():
        a(f"""
        s_lshr_b32 s{S_T0}, s2, 3
        s_lshl_b32 s{S_T0}, s{S_T0}, 2
        s_add_u32 s{S_T0}, s{S_T0}, s{S_WID}
        s_sub_u32 s{S_T0}, s{S_T0}, 4              ; n = slot*4 + w
        s_mul_i32 s{S_T1}, s{S_T0}, 6144
        s_or_b32 s{S_T2}, s{S_HP}, 3
        s_lshl_b32 s{S_T2}, s{S_T2}, 7
        s_add_u32 s{S_T1}, s{S_T1}, s{S_T2}
        s_add_u32 s{TW}, s{S_W}, s{S_T1}
        s_addc_u32 s{TW+1}, s{S_W+1}, 0
        s_lshl_b32 s{S_T1}, s{S_T0}, 15
        s_lshl_b32 s{S_T2}, s{S_C}, 19
        s_sub_u32 s{TX}, s{S_X}, s{S_T2}
        s_subb_u32 s{TX+1}, s{S_X+1}, 0
        s_add_u32 s{TX}, s{TX}, s{S_T1}
        s_addc_u32 s{TX+1}, s{TX+1}, 0
        s_lshl_b32 s{S_T1}, s{S_T0}, 14
        s_add_u32 s{TO}, s{S_WO}, s{S_T1}
        s_addc_u32 s{TO+1}, s{S_WO+1}, 0
        s_mul_i32 s{S_T1}, s{S_T0}, {(16 - opts.get("woa", 16)) * 32 // 128 * 2048}
        s_add_u32 s{S_T1}, s{S_T1}, {32 * opts.get("woa", 16) * 2048 + 0x80000}
        s_add_u32 s{TO2}, s{S_WO}, s{S_T1}
        s_addc_u32 s{TO2+1}, s{S_WO+1}, 0
        """)
    pendq = items[1:]
    for k in range(-1, nst):
        budget = opts.get("pro", 14) if k < 0 else (opts.get("bud0", 10) if k < 4 else (opts.get("bud", 7) if k < 31 else 10))
        for it in list(pendq):
            if it["after"] <= k and it["need"] <= k + 6 and (budget >= it["n"] or it["need"] <= k + 2):
                pendq.remove(it); issue(it, f"n{it['need']}"); budget -= it["n"]
        if k == -1:
            common_setup(); st_setup()
        for x in st_sched.get(k, []): a(x)
        if k == opts.get("wvt", 99):
            a(f"""
            s_and_b32 s{S_T0}, s{S_OC}, 1
            s_lshl_b32 s{S_T0}, s{S_T0}, 2
            s_add_u32 s{S_T0}, s{S_T0}, s{S_WID}
            s_sub_u32 s{S_T0}, s{S_T0}, 4
            s_lshl_b32 s{S_T0}, s{S_T0}, 18
            s_lshl_b32 s{S_T1}, s{S_OJ}, 7
            s_add_u32 s{S_T0}, s{S_T0}, s{S_T1}
            v_lshlrev_b32 v9, 11, v0
            s_add_u32 s{S_T1}, s{S_T0}, 0x20000
            """)
            a.vm(f"buffer_load_dword v10, v9, {sr(S_WO,4)}, s{S_T0} offen", "wt")
            a.vm(f"buffer_load_dword v10, v9, {sr(S_WO,4)}, s{S_T1} offen", "wt")
        if 18 <= k < 28:
            if k == 18:
                a("v_lshlrev_b32 v1, 4, v0")
                lc = [x for x in attn_consts0(1) + attn_consts1() + attn_consts2() if not x.startswith(f"s_lshl_b32 s{S_LA},")]
                lc.append(f"v_add_u32 v{CT}, {LDS_BYTES - 8192}, v1")
                lc = [x.replace(f"s{S_T0}", "s26").replace(f"s{S_T1}", "s27") for x in lc]
                per = -(-len(lc) // 10)
            for x in lc[(k-18)*per:(k-17)*per]: a(x)
        if k == 32:
            a(f"s_lshl_b32 s{S_LA}, s{S_WID}, 10")
            for i in range(8): a(f"ds_write_b128 v{CT}, {vr((BD if i < 4 else BF) + 4*(i%4), 4)} offset:{1024*i}")
            a("s_waitcnt lgkmcnt(0)")
        if k + 1 < nst:
            assert not any(it["need"] <= k + 1 for it in pendq), k
            a.wait_vm(*[f"n{j}" for j in range(k + 2)])
            if not (opts.get("x_nobar") and 0 <= k < 2*MB): a("s_barrier")
            elif opts.get("x_nobar") == 2: a("s_sleep 10")
    assert not pendq and set(a.vq) <= {"wt"}, (pendq, a.vq)
    a("s_barrier")
    VL = 1; VT = 4
    a("L_attn:")
    a(f"""
    s_lshr_b32 s{S_T0}, s{S_WID}, 1
    s_waitcnt lgkmcnt(0)
    s_barrier
    """)
    stamp(3)
    a(f"""
    s_cmp_eq_u32 s{S_T0}, 1
    s_cbranch_scc1 L_u1
    s_cmp_eq_u32 s{S_T0}, 2
    s_cbranch_scc1 L_u2
    s_cmp_eq_u32 s{S_T0}, 3
    s_cbranch_scc1 L_u3
    """)
    def wo_dma(step, vw=VW, both=False):
        a(f"s_add_u32 m0, s{S_LA}, {wo_slot(step)}")
        a(f"s_mov_b32 s{S_T3}, {step*32*2048}")
        a.vm(f"buffer_load_dwordx4 v{vw}, {sr(S_WO,4)}, s{S_T3} offen lds", f"d{step}")
        if both:
            a(f"s_xor_b32 s{S_T2}, s{S_LA}, 4096")
            a(f"s_add_u32 m0, s{S_T2}, {wo_slot(step)}")
            a("s_nop 0")
            a.vm(f"buffer_load_dwordx4 v{VW2}, {sr(S_WO,4)}, s{S_T3} offen lds", f"d{step}")
    def run_tasks(tasks, hooks, first_touch):
        n = len(tasks)
        def rdK(i):
            for f in range(2):
                a.lds(f"ds_read_b128 {vr(KF+4*f,4)}, v{VKP if tasks[i][4] else VK} offset:{tasks[i][1]+1024*f}", f"k{f}")
        def rdV(i):
            for f in range(2):
                a.lds(f"ds_read_b128 {vr(VF+4*f,4)}, v{VVP if tasks[i][4] else VV} offset:{tasks[i][2]+1024*f}", f"v{f}")
        def qk(i, f):
            u, _, _, bias, _ = tasks[i]
            q = QA if u == "A" else QB
            s = vr(SS[i % 2], 16)
            c = s if f else (vr(bias, 16) if bias is not None else "0")
            a.wait_lds(f"k{f}")
            a(f"v_mfma_f32_32x32x16_bf16 {s}, {vr(KF+4*f,4)}, {vr(q+4*f,4)}, {c}")
        def pv(i, f):
            u = tasks[i][0]
            o = vr(OA if u == "A" else OB, 16)
            c = "0" if (u in first_touch and f == 0) else o
            a.wait_lds(f"v{f}")
            a(f"v_mfma_f32_32x32x16_bf16 {o}, {vr(VF+4*f,4)}, {vr(PP[i%2]+4*f,4)}, {c}")
        def sm(i, f):
            u = tasks[i][0]
            l = vr(LA if u == "A" else LB, 4)
            c = l
            if u in first_touch and f == 0:
                c = "0"; first_touch.discard(u)
            a(f"v_mfma_f32_16x16x32_bf16 {l}, {vr(ON,4)}, {vr(PP[i%2]+4*f,4)}, {c}")
        rdK(0)
        qk(0, 0); qk(0, 1)
        if n > 1: rdK(1)
        for i in range(n + 1):
            for h in hooks.get(i, []): h()
            s = SS[i % 2]; p = PP[i % 2]
            ex = [f"v_exp_f32 v{s+r}, v{s+r}" for r in range(16)] if i < n else []
            cv = [f"v_cvt_pk_bf16_f32 v{p+j}, v{s+2*j}, v{s+2*j+1}" for j in range(8)] if i < n else []
            def E(k):
                for _ in range(k):
                    if ex: a(ex.pop(0))
            def C(k):
                for _ in range(k):
                    if cv: a(cv.pop(0))
            if i + 1 < n: qk(i+1, 0)
            if i == 0: a("s_nop 7"); a("s_nop 3")
            if i == n: a("s_nop 1")
            E(3)
            if i >= 1: pv(i-1, 0)
            E(3)
            if i + 1 < n:
                qk(i+1, 1)
                if i + 2 < n: rdK(i+2)
            E(3)
            if i >= 1: pv(i-1, 1)
            if i < n: rdV(i)
            E(3); C(2)
            if i >= 1: sm(i-1, 0)
            E(4); C(1)
            if i >= 1: sm(i-1, 1)
            C(5)
    uid = [0]
    def finalize(U, qb_expr):
        O, Ls = (OA, LA) if U == "A" else (OB, LB)
        uid[0] += 1
        a(f"""
        {qb_expr}
        s_nop 3
        v_cmp_le_f32 s[{S_M0}:{S_M0+1}], s{S_LO}, v{Ls}
        v_cmp_ge_f32 s[{S_M1}:{S_M1+1}], s{S_HI}, v{Ls}
        s_lshl_b32 s{S_T0}, s{S_QB}, 16
        s_add_u32 s{S_T0}, s{S_T0}, s{S_OB}
        s_and_b64 s[{S_M0}:{S_M0+1}], s[{S_M0}:{S_M0+1}], s[{S_M1}:{S_M1+1}]
        s_cmp_eq_u64 s[{S_M0}:{S_M0+1}], -1
        s_cbranch_scc1 L_ok{uid[0]}
        s_call_b64 s[{S_RET}:{S_RET+1}], L_slow{U}
        L_ok{uid[0]}:
        v_rcp_f32 v{Ls+1}, v{Ls}
        s_nop 0
        """)
        for r in range(16): a(f"v_mul_f32 v{O+r}, v{O+r}, v{Ls+1}")
        for j in range(8): a(f"v_cvt_pk_bf16_f32 v{O+j}, v{O+2*j}, v{O+2*j+1}")
        a.vm(f"buffer_store_dwordx4 {vr(O,4)}, v{VO}, {sr(S_WS,4)}, s{S_T0} offen sc1", "o" + U)
        a.vm(f"buffer_store_dwordx4 {vr(O+4,4)}, v{VO}, {sr(S_WS,4)}, s{S_T0} offen offset:512 sc1", "o" + U)
    def o_flag(U, qb_expr, alt=None):
        VT = 4 if alt is None else 48
        a(f"""
        {qb_expr}
        s_lshl_b32 s{S_T0}, s{S_QB}, 8
        s_add_u32 s{S_T0}, s{S_T0}, s{S_FO}
        v_mov_b32 v{VT}, s{S_NON}
        v_mov_b32 v{VT+1}, s{S_TAG}
        v_mov_b32 v{VT+2}, 0
        """)
        a.wait_vm("o" + U)
        a("s_mov_b64 exec, 1")
        a.vm(f"buffer_store_dwordx2 v[{VT}:{VT+1}], v{VT+2}, {sr(S_WS,4)}, s{S_T0} offen sc1", "fl")
        a("s_mov_b64 exec, -1")
        a("s_nop 3")
        if U == "B":
            qs = list(a.q); stamp("ofl"); a.q = qs
    VR = 8; VPL = 12; VOUT = 13; VL2 = 14; VRD = 15
    WFR = 16; TMP = 48; ACB = [224, 128]
    ORING = [64, 72, 112, 120, 160, 168, 176, 200, 208, 216]
    OSC = " sc1"
    OPRE = opts.get("opre", 6)
    OAH = opts.get("oahead", 8)
    def ofr(g): return ORING[g % 10]
    def p3_pre():
        a(f"""
        s_lshr_b32 s{S_TH}, s{S_WID}, 2
        s_and_b32 s{S_DB}, s{S_WID}, 3
        s_lshl_b32 s{S_T0}, s{S_P}, 3
        s_add_u32 s{S_T0}, s{S_T0}, s{S_OC}
        s_lshl_b32 s{S_T1}, s{S_T0}, 3
        s_add_u32 s{S_T1}, s{S_T1}, s{S_DB}
        s_lshl_b32 s{S_KB}, s{S_T1}, 8
        s_lshl_b32 s{S_T2}, s{S_TH}, 7
        s_add_u32 s{S_KB}, s{S_KB}, s{S_T2}
        s_add_u32 s{S_KB}, s{S_KB}, {WS_FO}
        v_and_b32 v7, 15, v0
        v_lshlrev_b32 v7, 3, v7
        s_lshl_b32 s{S_KA}, s{S_T1}, 16
        s_lshl_b32 s{S_T2}, s{S_TH}, 14
        s_add_u32 s{S_KA}, s{S_KA}, s{S_T2}
        s_add_u32 s{S_KA}, s{S_KA}, {WS_O + 4*65536}
        v_add_u32 v{CT}, 0x8000, v{VL}
        s_and_b32 s{S_T2}, s{S_OJ}, {opts.get("x_rot", 0)}
        s_lshl_b32 s{S_T2}, s{S_T2}, 10
        s_add_u32 s{S_KA}, s{S_KA}, s{S_T2}
        """)
        a.vm(f"buffer_load_dwordx2 v[2:3], v7, {sr(S_WS,4)}, s{S_KB} offen offset:1024 sc1", "pl")
    def flags_ok():
        a(f"""
        v_cmp_eq_u32 s[{S_M0}:{S_M0+1}], s{S_NON}, v2
        v_cmp_eq_u32 s[{S_M1}:{S_M1+1}], s{S_TAG}, v3
        s_nop 1
        s_and_b64 s[{S_M0}:{S_M0+1}], s[{S_M0}:{S_M0+1}], s[{S_M1}:{S_M1+1}]
        s_cmp_eq_u64 s[{S_M0}:{S_M0+1}], -1
        """)
    def poll(tag, off, vpl):
        a.wait_vm("pl")
        a(f"s_mov_b32 s{S_CNT}, 0x40000")
        a(f"L_op{tag}:")
        flags_ok()
        a(f"""
        s_cbranch_scc1 L_og{tag}
        s_sub_u32 s{S_CNT}, s{S_CNT}, 1
        s_cmp_eq_u32 s{S_CNT}, 0
        s_cbranch_scc1 L_og{tag}
        s_sleep 1
        buffer_load_dwordx2 v[2:3], v{vpl}, {sr(S_WS,4)}, s{S_KB} offen offset:{off} sc1
        s_waitcnt vmcnt(0)
        s_branch L_op{tag}
        L_og{tag}:
        """)
    def o_load(g, vl2=VL2):
        i = g % 16
        if g == 16: a(f"s_sub_u32 s{S_KA}, s{S_KA}, {4*65536 + 3*4096}")
        elif i % 4 == 0 and i: a(f"s_add_u32 s{S_KA}, s{S_KA}, 4096")
        r = ofr(g)
        a.vm(f"buffer_load_dwordx4 {vr(r,4)}, v{VL}, {sr(S_WS,4)}, s{S_KA} offen offset:{(i%4)*1024}{OSC}", f"o{g}")
        a.vm(f"buffer_load_dwordx4 {vr(r+4,4)}, v{vl2}, {sr(S_WS,4)}, s{S_KA} offen offset:{(i%4)*1024}{OSC}", f"o{g}")
    for u in range(4):
        if u: a(f"L_u{u}:")
        qa, qb = u, 7 - u
        a(f"v_add_u32 v{VT}, v{VFL}, v{VL}")
        for f in range(2):
            a.lds(f"ds_read_b128 {vr(QB+4*f,4)}, v{VT} offset:{qb*2048+f*1024}", "q")
        for f in range(2):
            a.lds(f"ds_read_b128 {vr(QA+4*f,4)}, v{VT} offset:{qa*2048+f*1024}", "qa")
        a.wait_lds("q")
        own = lambda U, q: [(U, t*2048, t*2048, None, 0) for t in range(q)] + [(U, q*2048, q*2048, BD, 0)]
        prv = lambda U, q: [(U, q*4096, q*4096, BF, 1)] + [(U, t*4096, t*4096, None, 1) for t in range(q+1, 8)]
        hooks = {}
        def H(i, f): hooks.setdefault(i, []).append(f)
        def poll_issue():
            a(f"""
            s_cmp_eq_u32 s{S_C}, 0
            s_cbranch_scc1 L_np{u}
            v_mov_b32 v{VT+2}, 0
            buffer_load_dwordx2 v[2:3], v{VT+2}, {sr(S_WS,4)}, s{S_KA} offen sc1
            L_np{u}:
            """)
        def kv_dma(j):
            def f():
                a(f"""
                s_cmp_eq_u32 s{S_C}, 0
                s_cbranch_scc1 L_nd{u}_{j}
                s_add_u32 m0, s{S_DB}, {4096*j}
                s_add_u32 s{S_T2}, s{S_DA}, {4096*j}
                """)
                for k in range(4):
                    a(f"buffer_load_dwordx4 v{VL}, {sr(S_WS,4)}, s{S_T2} offen offset:{1024*k} sc1 lds")
                a(f"L_nd{u}_{j}:")
            return f
        def poll_check():
            a(f"""
            s_cmp_eq_u32 s{S_C}, 0
            s_cbranch_scc1 L_got{u}
            s_mov_b32 s{S_CNT}, 0x40000
            L_poll{u}:
            s_waitcnt vmcnt(0)
            v_readfirstlane_b32 s{S_T2}, v2
            v_readfirstlane_b32 s{S_T3}, v3
            s_cmp_eq_u32 s{S_T2}, s{S_NON}
            s_cselect_b32 s{S_T2}, 1, 0
            s_cmp_eq_u32 s{S_T3}, s{S_TAG}
            s_cselect_b32 s{S_T2}, s{S_T2}, 0
            s_cmp_lg_u32 s{S_T2}, 0
            s_cbranch_scc1 L_got{u}
            s_sub_u32 s{S_CNT}, s{S_CNT}, 1
            s_cmp_eq_u32 s{S_CNT}, 0
            s_cbranch_scc1 L_got{u}
            s_sleep 1
            buffer_load_dwordx2 v[2:3], v{VT+2}, {sr(S_WS,4)}, s{S_KA} offen sc1
            s_branch L_poll{u}
            L_got{u}:
            s_add_u32 s{S_DA}, s{S_KVB}, {(u*16384 - 32768) & 0xffffffff}
            s_lshl_b32 s{S_DB}, s{S_HH}, 15
            s_add_u32 s{S_DB}, s{S_DB}, {R_PREV + u*16384}
            """)
            qs = list(a.q); stamp("got"); a.q = qs
        def landed_b():
            a(f"""
            v_mov_b32 v2, s{S_NON}
            v_mov_b32 v3, s{S_TAG}
            s_lshl_b32 s{S_T2}, s{S_HH}, 3
            s_add_u32 s{S_T2}, s{S_T2}, {R_Q + 24576}
            v_mov_b32 v{VFL}, s{S_T2}
            """)
            a.wait_vm_all()
            a.lds(f"ds_write_b64 v{VFL}, v[2:3]", "fw")
        def wait_b():
            a(f"""
            s_lshl_b32 s{S_T2}, s{S_HH}, 3
            s_add_u32 s{S_T2}, s{S_T2}, {R_Q + 24576}
            v_mov_b32 v{VFL}, s{S_T2}
            """)
            a.wait_lds_all()
            wait_landed(0, "b")
        def landed():
            a.wait_lds("qa")
            a(f"""
            v_mov_b32 v2, s{S_NON}
            v_mov_b32 v3, s{S_TAG}
            s_waitcnt vmcnt(0)
            """)
            a.lds(f"ds_write_b64 v{VFL}, v[2:3] offset:{qa*2048}", "fw")
        def wait_landed(th, tag):
            assert not a.q
            a(f"""
            s_mov_b32 s{S_CNT}, 0x400000
            L_wl{u}{tag}:
            ds_read_b64 v[2:3], v{VFL} offset:{th*2048}
            s_waitcnt lgkmcnt(0)
            v_readfirstlane_b32 s{S_T2}, v2
            v_readfirstlane_b32 s{S_T3}, v3
            s_cmp_eq_u32 s{S_T2}, s{S_NON}
            s_cselect_b32 s{S_T2}, 1, 0
            s_cmp_eq_u32 s{S_T3}, s{S_TAG}
            s_cselect_b32 s{S_T2}, s{S_T2}, 0
            s_cmp_lg_u32 s{S_T2}, 0
            s_cbranch_scc1 L_wd{u}{tag}
            s_sub_u32 s{S_CNT}, s{S_CNT}, 1
            s_cmp_eq_u32 s{S_CNT}, 0
            s_cbranch_scc1 L_wd{u}{tag}
            s_sleep 1
            s_branch L_wl{u}{tag}
            L_wd{u}{tag}:
            """)
        if u == 1:
            c1 = opts.get("c1", 1)
            H(0, poll_issue); H(c1, poll_check)
            for j in range(4): H(c1 + j // 2, kv_dma(j))
            H(opts.get("l1", 4), landed)
        if u == 0:
            stores[:] = list(deferred)
            nd = len(deferred); spt = opts.get("spt", 2)
            for j in range(nd): H(j // spt, lambda: kv_store(VL))
            pub = opts.get("pub_at", 3)
            H(pub, lambda: publish(VT)); H(pub, poll_issue)
            c0_ = opts.get("c0", 6)
            H(c0_, poll_check)
            for j in range(4): H(c0_ + j // 2, kv_dma(j))
        ft = {"A", "B"}
        run_tasks(own("B", qb), hooks, ft)
        a.wait_lds_all()
        stamp(4)
        a(f"s_cmp_eq_u32 s{S_C}, 0")
        a(f"s_cbranch_scc1 L_z{u}")
        wait_landed(1, "a")
        a.vq = []
        hooks = {}
        nB = 8 - qb
        qbx = f"s_mov_b32 s{S_QB}, {qb}"
        n23 = nB + qa + 1
        H(nB + 1, lambda: finalize("B", qbx))
        fl = nB + 1 + opts.get("ofl", 2)
        if fl <= n23: H(fl, lambda: o_flag("B", qbx))
        run_tasks(prv("B", qb) + own("A", qa), hooks, ft)
        vq23 = list(a.vq)
        a(f"s_branch L_w{u}")
        a(f"L_z{u}:")
        a.vq = []
        a("s_nop 7")
        finalize("B", qbx)
        run_tasks(own("A", qa), {}, {"A"})
        if fl <= n23: o_flag("B", qbx)
        a.vq = vq23
        a(f"L_w{u}:")
        a.wait_lds_all()
        if u < 2: a("s_setprio 0")
        a("s_barrier")
        stamp(5)
        hooks = {}
        if fl > n23: H(max(fl - n23 - 1, 0), lambda: o_flag("B", qbx))
        nA = 8 - qa
        w0 = max(fl - n23 - 1, 0)
        sts = list(range(11))
        wpt = opts.get("wpt", 3)
        if u == 0:
            H(opts.get("lb", 1), landed_b); w0 = max(w0, opts.get("lb", 1))
        for t in range(w0, nA - 1):
            k = wpt if t < nA - 2 else 12
            for st in sts[:k]: H(t, (lambda s_: (lambda: wo_dma(s_)))(st))
            sts = sts[k:]
        assert not sts
        hooks_c0 = {t: list(v) for t, v in hooks.items()}
        if u: H(2, wait_b)
        H(nA - 1, p3_pre); hooks_c0.setdefault(nA - 1, []).append(p3_pre)
        a(f"s_cmp_eq_u32 s{S_C}, 0")
        a(f"s_cbranch_scc1 L_y{u}")
        vq4 = list(a.vq)
        run_tasks(prv("A", qa)[::-1], hooks, set())
        stamp(7)
        a(f"s_mov_b32 s{S_QB}, {qa}")
        a("s_nop 7")
        a("s_branch L_last")
        a(f"L_y{u}:")
        a.vq = vq4
        for t in sorted(hooks_c0):
            for h in hooks_c0[t]: h()
        a.wait_lds_all()
        stamp(7)
        a(f"s_mov_b32 s{S_QB}, {qa}")
        if u < 3: a("s_branch L_last")
    a("L_last:")
    a.vq = ["old"]
    finalize("A", "")
    a.wait_vm("old")
    flags_ok()
    a("s_cbranch_scc0 L_late")
    for g in range(OPRE): o_load(g, CT)
    o_flag("A", "")
    a("s_branch L_p3")
    a("L_late:")
    vq_keep = list(a.vq)
    a.vq = ["oA", "oA"]
    o_flag("A", "")
    a.vm(f"buffer_load_dwordx2 v[2:3], v7, {sr(S_WS,4)}, s{S_KB} offen offset:1024 sc1", "pl")
    poll("1", 1024, 7)
    for g in range(OPRE): o_load(g, CT)
    a("s_waitcnt vmcnt(0)")
    a.vq = vq_keep
    a("L_p3:")
    a(f"""
    v_bfe_u32 v5, v0, 2, 2
    v_bfe_u32 v6, v0, 4, 1
    v_lshl_add_u32 v5, v6, 2, v5
    v_lshlrev_b32 v{VR}, 7, v5
    v_bfe_u32 v6, v5, 1, 2
    v_lshl_add_u32 v{VR}, v6, 5, v{VR}
    v_and_b32 v6, 3, v0
    v_lshl_add_u32 v{VR}, v6, 3, v{VR}
    v_lshrrev_b32 v6, 5, v0
    v_lshl_add_u32 v{VR}, v6, 11, v{VR}
    s_lshl_b32 s{S_T0}, s{S_TH}, 12
    v_add_u32 v{VR}, s{S_T0}, v{VR}
    s_lshl_b32 s{S_T0}, s{S_TH}, 6
    v_xor_b32 v{VR}, s{S_T0}, v{VR}
    v_xor_b32 v{VR+1}, 32, v{VR}
    v_xor_b32 v{VR+2}, 64, v{VR}
    v_xor_b32 v{VR+3}, 0x60, v{VR}
    v_mov_b32 v{VPL}, v7
    v_mov_b32 v{VL2}, v{CT}
    v_mov_b32 v7, v{VW}
    """)
    a("s_barrier")
    stamp(9)
    for st in range(11, 16): wo_dma(st, 7)
    a(f"""
    v_and_b32 v{VOUT}, 15, v0
    v_lshlrev_b32 v{VOUT}, 12, v{VOUT}
    v_bfe_u32 v6, v0, 4, 1
    v_lshl_add_u32 v{VOUT}, v6, 5, v{VOUT}
    v_lshrrev_b32 v6, 5, v0
    v_lshl_add_u32 v{VOUT}, v6, 4, v{VOUT}
    s_lshl_b32 s{S_T0}, s{S_OC}, 8
    s_lshl_b32 s{S_T1}, s{S_DB}, 5
    s_add_u32 s{S_T0}, s{S_T0}, s{S_T1}
    s_lshl_b32 s{S_T0}, s{S_T0}, 12
    s_lshl_b32 s{S_T1}, s{S_P}, 11
    s_add_u32 s{S_T0}, s{S_T0}, s{S_T1}
    s_lshl_b32 s{S_T1}, s{S_OJ}, 7
    s_add_u32 s{S_T0}, s{S_T0}, s{S_T1}
    s_lshl_b32 s{S_T1}, s{S_TH}, 6
    s_add_u32 s{S_DA}, s{S_T0}, s{S_T1}
    s_lshl_b32 s{S_T0}, s{S_WID}, 12
    s_add_u32 s{S_T0}, s{S_T0}, {R_RED}
    v_add_u32 v{VRD}, s{S_T0}, v{VL}
    s_xor_b32 s{S_T0}, s{S_T0}, 0x4000
    v_add_u32 v4, s{S_T0}, v{VL}
    """)
    cur_base = [0]
    def rdWo(g, nb, hh_=None):
        slot = wo_slot(g % 16)
        assert slot & ~0xffff == cur_base[0], (g, nb)
        w = WFR + 16 * (g % 2) + 4 * nb
        for h in (range(2) if hh_ is None else [hh_]):
            a.lds(f"ds_read_b64_tr_b16 {vr(w+2*h,2)}, v{VR+nb} offset:{(slot & 0xffff) + h*1024}", f"w{g%2}_{nb}")
    def rebase(g):
        base = wo_slot(g % 16) & ~0xffff
        if base != cur_base[0]:
            d = (base - cur_base[0]) & 0xffffffff
            for q in range(4): a(f"v_add_u32 v{VR+q}, {d:#x}, v{VR+q}")
            cur_base[0] = base
    def ac(sl, nb, tb): return ACB[sl] + (nb*2 + tb)*4
    KEEP = f"s[{S_CODE}:{S_CODE+1}]"
    def red_send(sl):
        hi = ac(sl, 2, 0)
        return [("lds", f"ds_write_b128 v{VRD}, {vr(hi+4*i,4)} offset:{1024*i}", "rw") for i in range(4)]
    def red_recv(sl):
        lo = ac(sl, 0, 0)
        o = [("lds", f"ds_read_b128 {vr(TMP+4*i,4)}, v4 offset:{1024*i}", f"rr{i}") for i in range(4)]
        for i in range(4):
            o.append(("wait", f"rr{i}"))
            for r in range(4): o.append(f"v_add_f32 v{lo+4*i+r}, v{lo+4*i+r}, v{TMP+4*i+r}")
        for tb in range(2):
            ra, rb_, t = lo + 4*tb, lo + 8 + 4*tb, TMP + 4*tb
            o += [f"v_cvt_pk_bf16_f32 v{t}, v{ra}, v{ra+1}", f"v_cvt_pk_bf16_f32 v{t+1}, v{ra+2}, v{ra+3}",
                  f"v_cvt_pk_bf16_f32 v{t+2}, v{rb_}, v{rb_+1}", f"v_cvt_pk_bf16_f32 v{t+3}, v{rb_+2}, v{rb_+3}"]
        o += [f"s_add_u32 s{S_T0}, s{S_DA}, {(1-sl)*128*4096}", f"s_add_u32 s{S_T1}, s{S_T0}, 0x10000"]
        for tb in range(2): o += swap(TMP + 4*tb)
        o.append("s_nop 0")
        for tb in range(2):
            o.append(("vm", f"buffer_store_dwordx4 {vr(TMP+4*tb,4)}, v{VOUT}, {sr(S_OUT,4)}, s{S_T1 if tb else S_T0} offen{['', ' sc1', ' nt', ' sc0 sc1'][opts.get('outsc', 1)]}", "st"))
        return o
    def emit(x):
        if isinstance(x, str): a(x)
        elif x[0] == "lds": a.lds(x[1], x[2])
        elif x[0] == "vm": a.vm(x[1], x[2])
        else: a.wait_lds(x[1])
    for nb in range(4): rdWo(0, nb)
    side = []
    P2C = opts.get("p2c", 11)
    issued = set()
    def issue_step(x): return max(x - OAH, P2C) if x >= 16 else x - OAH
    for g in range(32):
        sl, st = divmod(g, 16)
        if g == 9:
            a.wait_vm("d15"); a("s_barrier")
        if g == P2C - 2:
            a.vm(f"buffer_load_dwordx2 v[2:3], v{VPL}, {sr(S_WS,4)}, s{S_KB} offen sc1", "pl")
        if g == P2C: poll("0", 0, VPL)
        if g == 16:
            qsave = list(a.q); stamp("mm1"); a.q = qsave
        if g == 17: side = red_send(0)
        if g == 19:
            assert not side
            a.wait_lds("rw"); a("s_barrier"); side = red_recv(0)
        if g == 27:
            assert not side
            a("s_barrier")
        a.wait_vm(f"o{g}")
        if g < 31: rebase(g + 1)
        a.wait_lds(*[f"w{g%2}_{nb}" for nb in range(4)])
        for nb in range(4):
            for tb in range(2):
                d = vr(ac(sl, nb, tb), 4)
                a(f"v_mfma_f32_16x16x32_bf16 {d}, {vr(WFR+16*(g%2)+4*nb,4)}, {vr(ofr(g)+4*tb,4)}, {d if st else '0'}")
                if g < 31: rdWo(g + 1, nb, tb)
                for _ in range(2):
                    if side: emit(side.pop(0))
            if nb in (1, 3):
                due = [x for x in range(OPRE, 32) if x not in issued and issue_step(x) <= g]
                if due:
                    o_load(due[0]); issued.add(due[0])
    stamp(10)
    a("s_nop 7")
    for x in red_send(1): emit(x)
    a.wait_lds_all()
    a("s_barrier")
    for x in red_recv(1): emit(x)
    if stamps:
        a("s_waitcnt vmcnt(0)")
        stamp(11)
        a(f"""
        s_lshl_b32 s{S_T0}, s2, 3
        s_add_u32 s{S_T0}, s{S_T0}, s{S_WID}
        s_lshl_b32 s{S_T0}, s{S_T0}, 6
        s_add_u32 s{S_T0}, s{S_T0}, {WS_STAMP}
        v_mov_b32 v7, 0
        """)
        for i in range(16): a(f"v_mov_b32 v{8+i}, s{4+i}")
        a(f"""
        s_mov_b64 exec, 1
        buffer_store_dwordx4 v[8:11], v7, {sr(S_WS,4)}, s{S_T0} offen
        buffer_store_dwordx4 v[12:15], v7, {sr(S_WS,4)}, s{S_T0} offen offset:16
        buffer_store_dwordx4 v[16:19], v7, {sr(S_WS,4)}, s{S_T0} offen offset:32
        buffer_store_dwordx4 v[20:23], v7, {sr(S_WS,4)}, s{S_T0} offen offset:48
        s_mov_b64 exec, -1
        """)
    a(f"""
    s_cmp_lg_u32 s{S_WID}, 0
    s_cbranch_scc1 L_end
    v_mov_b32 v4, 1
    v_mov_b32 v7, 0
    s_mov_b64 exec, 1
    buffer_atomic_add v4, v7, {sr(S_DBG,4)}, 0 offen sc0
    s_waitcnt vmcnt(0)
    v_readfirstlane_b32 s{S_T0}, v4
    s_cmp_lg_u32 s{S_T0}, 255
    s_cbranch_scc1 L_end
    v_mov_b32 v4, s{S_NON}
    s_mov_b32 s{S_T1}, {WS_FLAG}
    buffer_store_dword v4, v7, {sr(S_WS,4)}, s{S_T1} offen sc1
    L_end:
    s_endpgm
    """)
    for U, O, Ls, Q in (("A", OA, LA, QA), ("B", OB, LB, QB)):
        S = 64; P = 112; K2 = 120; V2 = 160; M = 168; NB = 169; AK = 170; AT = 171
        if U == "A":
            S = SS[0]; P = PP[0]; K2 = KF; V2 = VF; M = SS[1]; NB = M + 1; AK = M + 2; AT = M + 3
        a(f"""
        L_slow{U}:
        v_and_b32 v{AK}, 0x33, v0
        v_bfe_u32 v{AT}, v0, 2, 1
        v_lshl_or_b32 v{AK}, v{AT}, 3, v{AK}
        v_bfe_u32 v{AT}, v0, 3, 1
        v_lshl_or_b32 v{AK}, v{AT}, 2, v{AK}
        v_lshlrev_b32 v{AK}, 4, v{AK}
        v_mov_b32 v{M}, 0xff800000
        s_mov_b32 s{S_U0}, 0
        L_sp{U}:
        s_mov_b32 s{S_U1}, 0
        s_cmp_eq_u32 s{S_C}, 0
        s_cbranch_scc0 L_st{U}
        s_sub_u32 s{S_U1}, 8, s{S_QB}
        L_st{U}:
        s_add_u32 s{S_U2}, s{S_U1}, s{S_QB}
        s_lshl_b32 s{S_U2}, s{S_U2}, 12
        s_add_u32 s{S_U2}, s{S_U2}, s{S_KVB}
        s_sub_u32 s{S_U2}, s{S_U2}, 0x8000
        buffer_load_dwordx4 {vr(K2,4)}, v{AK}, {sr(S_WS,4)}, s{S_U2} offen sc1
        buffer_load_dwordx4 {vr(K2+4,4)}, v{AK}, {sr(S_WS,4)}, s{S_U2} offen offset:1024 sc1
        buffer_load_dwordx4 {vr(V2,4)}, v{VL}, {sr(S_WS,4)}, s{S_U2} offen offset:2048 sc1
        buffer_load_dwordx4 {vr(V2+4,4)}, v{VL}, {sr(S_WS,4)}, s{S_U2} offen offset:3072 sc1
        s_waitcnt vmcnt(0)
        s_cmp_eq_u32 s{S_U1}, 0
        s_cbranch_scc1 L_sf{U}
        s_cmp_eq_u32 s{S_U1}, 8
        s_cbranch_scc1 L_sd{U}
        v_mfma_f32_32x32x16_bf16 {vr(S,16)}, {vr(K2,4)}, {vr(Q,4)}, 0
        s_branch L_sj{U}
        L_sf{U}:
        v_mfma_f32_32x32x16_bf16 {vr(S,16)}, {vr(K2,4)}, {vr(Q,4)}, {vr(BF,16)}
        s_branch L_sj{U}
        L_sd{U}:
        v_mfma_f32_32x32x16_bf16 {vr(S,16)}, {vr(K2,4)}, {vr(Q,4)}, {vr(BD,16)}
        L_sj{U}:
        v_mfma_f32_32x32x16_bf16 {vr(S,16)}, {vr(K2+4,4)}, {vr(Q+4,4)}, {vr(S,16)}
        s_nop 7
        s_nop 7
        s_cmp_eq_u32 s{S_U0}, 0
        s_cbranch_scc0 L_s2{U}
        """)
        for r in range(16): a(f"v_max_f32 v{M}, v{M}, v{S+r}")
        a(f"s_branch L_sn{U}")
        a(f"L_s2{U}:")
        for r in range(16): a(f"v_sub_f32 v{S+r}, v{S+r}, v{M}")
        for r in range(16): a(f"v_exp_f32 v{S+r}, v{S+r}")
        a("s_nop 0")
        for j in range(8): a(f"v_cvt_pk_bf16_f32 v{P+j}, v{S+2*j}, v{S+2*j+1}")
        a("s_nop 1")
        for f in range(2):
            a(f"v_mfma_f32_32x32x16_bf16 {vr(O,16)}, {vr(V2+4*f,4)}, {vr(P+4*f,4)}, {vr(O,16)}")
        for f in range(2):
            a(f"v_mfma_f32_16x16x32_bf16 {vr(Ls,4)}, {vr(ON,4)}, {vr(P+4*f,4)}, {vr(Ls,4)}")
        a(f"""
        s_nop 7
        s_nop 7
        L_sn{U}:
        s_add_u32 s{S_U1}, s{S_U1}, 1
        s_cmp_le_u32 s{S_U1}, 8
        s_cbranch_scc1 L_st{U}
        s_cmp_eq_u32 s{S_U0}, 0
        s_cbranch_scc0 L_sx{U}
        v_mov_b32 v{NB}, v{M}
        s_nop 1
        v_permlane32_swap_b32 v{NB}, v{M}
        s_nop 1
        v_max_f32 v{M}, v{M}, v{NB}
        """)
        for r in range(16): a(f"v_mov_b32 v{O+r}, 0")
        for r in range(4): a(f"v_mov_b32 v{Ls+r}, 0")
        a(f"""
        s_mov_b32 s{S_U0}, 1
        s_branch L_sp{U}
        L_sx{U}:
        s_setpc_b64 s[{S_RET}:{S_RET+1}]
        """)
    a("L_codeend:")
    hdr = open("concat_heads__sliding_block__sliding_block__prompt.s.ref").read().split("; Override launch")[0]
    head = hdr + f"""; @launch grid=(256,1,1) block=(512,1,1) lds={LDS_BYTES}
.amdgcn_target "amdgcn-amd-amdhsa--gfx950"
.text
.globl {name}
.p2align 8
.type {name},@function
{name}:
"""
    tail = f"""
.section .rodata,"a"
.p2align 6
.amdhsa_kernel {name}
  .amdhsa_next_free_vgpr 256
  .amdhsa_next_free_sgpr 102
  .amdhsa_accum_offset 256
  .amdhsa_group_segment_fixed_size 0
  .amdhsa_kernarg_size 72
  .amdhsa_user_sgpr_count 2
  .amdhsa_user_sgpr_kernarg_segment_ptr 1
  .amdhsa_system_sgpr_workgroup_id_x 1
.end_amdhsa_kernel
"""
    return head + a.text().replace("CODE_END_BYTES", "(L_codeend - L_pcref)") + tail

if __name__ == "__main__":
    stamps = "--stamps" in sys.argv
    opts = {}
    for x in sys.argv[2:]:
        if "=" in x:
            k, v = x.split("="); opts[k] = int(v)
    open(sys.argv[1], "w").write(gen(stamps, opts=opts))
```

```python
import sys, struct

class Asm:
    def __init__(self):
        self.l = []
        self.q = []
        self.vq = []
    def __call__(self, s):
        for x in s.strip("\n").split("\n"):
            x = x.strip()
            if not x: continue
            self.l.append(x if x.endswith(":") else "    " + x)
    def text(self):
        return "\n".join(self.l) + "\n"
    def lds(self, s, tag):
        self(s); self.q.append(tag)
    def wait_lds(self, *tags):
        idx = [i for i, t in enumerate(self.q) if t in tags]
        if not idx: return
        last = max(idx); n = min(len(self.q) - 1 - last, 15)
        self(f"s_waitcnt lgkmcnt({n})")
        self.q = self.q[len(self.q)-n:] if n else []
    def wait_lds_all(self):
        self("s_waitcnt lgkmcnt(0)"); self.q = []
    def vm(self, s, tag):
        self(s); self.vq.append(tag)
    def wait_vm(self, *tags):
        idx = [i for i, t in enumerate(self.vq) if t in tags]
        if not idx: return
        last = max(idx); n = len(self.vq) - 1 - last
        assert n <= 63, n
        self(f"s_waitcnt vmcnt({n})")
        self.vq = self.vq[last+1:]
    def wait_vm_all(self):
        self("s_waitcnt vmcnt(0)"); self.vq = []

def vr(a, n): return f"v[{a}:{a+n-1}]"
def sr(a, n): return f"s[{a}:{a+n-1}]"
def f32bits(x): return struct.unpack("<I", struct.pack("<f", x))[0]
def L(s): return [x.strip() for x in s.strip().split("\n") if x.strip()]

WS_KV = 0
WS_O = 16 << 20
WS_FLAG = 24 << 20
WS_FKV = WS_FLAG + 4096
WS_FO = WS_FLAG + 65536
WS_STAMP = 25 << 20
WS_BYTES = 26 << 20
TAGX = 0x5bd1e995

A_SLOT = 32768; B_BASE = 3 * A_SLOT; B_SLOT = 12288
LDS_BYTES = 160 * 1024
R_V = 0; R_PREV = 32768; R_K = 98304; R_Q = 131072; R_RED = 65536
def wo_slot(st): return [R_V, R_K, R_Q, R_PREV][st // 4] + (st % 4) * 8192

S_X = 36; S_W = 40; S_WS = 44; S_WO = 48; S_OUT = 52; S_DBG = 56
S_P = 60; S_C = 61; S_HP = 62; S_WID = 63
S_T0 = 64; S_T1 = 65; S_T2 = 66; S_T3 = 67
S_ASL = 68; S_BSL = 69; S_KA = 70; S_KB = 71; S_CNT = 72
S_TH = 73; S_HH = 74; S_DA = 75; S_DB = 76
S_NON = 77; S_KVB = 78; S_OC = 79; S_OJ = 80; S_TAG = 81
S_LA = 82; S_LB = 83
S_M0 = 84; S_M1 = 86
S_QB = 88; S_OB = 89
S_RET = 90; S_CODE = 92
S_FO = 96; S_U0 = 97; S_U1 = 98; S_U2 = 99
S_LO = 34; S_HI = 35

QSCALE = 0.17677669529663687 * 1.4426950408889634
CODE_LINES = 512

def gen(stamps=False, name="concat_heads__sliding_block__sliding_block__prompt_kernel", opts=None):
    opts = opts or {}
    a = Asm()
    SN = ["start", "bar0", "main", "kv", "qend", "pub", "barA", "p1end", "barC", "p2end", "got", "barE", "mm1", "mm", "end", "ofl"]
    def stamp(i):
        if isinstance(i, str): i = SN.index(i)
        else: i = SN.index({0: "start", 1: "bar0", 2: "kv", 3: "barA", 4: "p1end", 5: "barC", 7: "p2end", 9: "barE", 10: "mm", 11: "end"}.get(i, "none")) if i not in (6, 8) else None
        if i is None: return
        if stamps:
            a(f"s_memtime s[100:101]" if opts.get("cyc") else f"s_memrealtime s[100:101]")
            a(f"s_waitcnt lgkmcnt(0)")
            a(f"s_mov_b32 s{4+i}, s100")
            a.q = []
    a(f"""
    s_cmp_ge_u32 s2, 256
    s_cbranch_scc1 L_end
    s_load_dwordx16 s[16:31], s[0:1], 0
    s_load_dwordx2 s[32:33], s[0:1], 64
    """)
    stamp(0)
    a(f"""
    v_lshrrev_b32 v1, 6, v0
    v_and_b32 v0, 63, v0
    s_and_b32 s{S_T0}, s2, 7
    v_readfirstlane_b32 s{S_WID}, v1
    s_lshr_b32 s{S_T1}, s2, 3
    s_lshr_b32 s{S_P}, s{S_T0}, 2
    s_and_b32 s{S_T2}, s{S_T0}, 3              ; hq
    s_lshr_b32 s{S_C}, s{S_T1}, 2              ; chunk
    s_and_b32 s{S_T3}, s{S_T1}, 3
    s_lshl_b32 s{S_HP}, s{S_T2}, 2
    s_add_u32 s{S_HP}, s{S_HP}, s{S_T3}
    s_lshr_b32 s{S_OC}, s{S_T1}, 4
    s_lshl_b32 s{S_T3}, s{S_T2}, 1
    s_add_u32 s{S_OC}, s{S_OC}, s{S_T3}
    s_and_b32 s{S_OJ}, s{S_T1}, 15
    s_and_b32 s{S_HH}, s{S_WID}, 1
    s_waitcnt lgkmcnt(0)
    s_cmp_eq_u32 s{S_P}, 0
    s_cselect_b32 s{S_X}, s16, s22
    s_cselect_b32 s{S_X+1}, s17, s23
    s_cselect_b32 s{S_W}, s18, s24
    s_cselect_b32 s{S_W+1}, s19, s25
    s_cselect_b32 s{S_WO}, s20, s26
    s_cselect_b32 s{S_WO+1}, s21, s27
    s_lshl_b32 s{S_T0}, s{S_C}, 19
    s_add_u32 s{S_X}, s{S_X}, s{S_T0}
    s_addc_u32 s{S_X+1}, s{S_X+1}, 0
    s_mov_b32 s{S_X+2}, 0x80000
    s_mov_b32 s{S_X+3}, 0x20000
    s_mov_b32 s{S_W+2}, 0x600000
    s_mov_b32 s{S_W+3}, 0x20000
    s_cmp_ge_u32 s{S_WID}, 4
    s_cbranch_scc1 L_loader
    """)
    def common_setup():
        a(f"""
        s_add_u32 s{S_T0}, s32, {WS_FLAG}
        s_addc_u32 s{S_T1}, s33, 0
        s_load_dword s{S_NON}, s[{S_T0}:{S_T1}], 0
        s_mov_b32 s{S_WS}, s32
        s_mov_b32 s{S_WS+1}, s33
        s_mov_b32 s{S_WS+2}, {WS_BYTES}
        s_mov_b32 s{S_WS+3}, 0x20000
        s_mov_b32 s{S_WO+2}, 0x200000
        s_mov_b32 s{S_WO+3}, 0x20000
        s_mov_b32 s{S_OUT}, s28
        s_mov_b32 s{S_OUT+1}, s29
        s_mov_b32 s{S_OUT+2}, 0x800000
        s_mov_b32 s{S_OUT+3}, 0x20000
        s_mov_b32 s{S_DBG}, s30
        s_mov_b32 s{S_DBG+1}, s31
        s_mov_b32 s{S_DBG+2}, 256
        s_mov_b32 s{S_DBG+3}, 0x20000
        s_lshl_b32 s{S_T3}, s{S_HP}, 1
        s_add_u32 s{S_T3}, s{S_T3}, s{S_HH}        ; head
        s_lshl_b32 s{S_T2}, s{S_P}, 5
        s_add_u32 s{S_T2}, s{S_T2}, s{S_T3}        ; p*32+head
        s_lshl_b32 s{S_T2}, s{S_T2}, 6
        s_lshl_b32 s{S_KVB}, s{S_C}, 3
        s_add_u32 s{S_T2}, s{S_T2}, s{S_KVB}
        s_lshl_b32 s{S_KVB}, s{S_T2}, 12
        s_lshl_b32 s{S_T2}, s{S_P}, 3
        s_add_u32 s{S_T2}, s{S_T2}, s{S_C}         ; p*8+c
        s_lshl_b32 s{S_OB}, s{S_T2}, 19
        s_lshl_b32 s{S_FO}, s{S_T3}, 10
        s_add_u32 s{S_OB}, s{S_OB}, s{S_FO}
        s_add_u32 s{S_OB}, s{S_OB}, {WS_O}
        s_lshl_b32 s{S_FO}, s{S_T2}, 11
        s_lshl_b32 s{S_T3}, s{S_T3}, 3
        s_add_u32 s{S_FO}, s{S_FO}, s{S_T3}
        s_add_u32 s{S_FO}, s{S_FO}, {WS_FO}
        s_mov_b32 s{S_LO}, {f32bits(2.0**-60)}
        s_mov_b32 s{S_HI}, {f32bits(2.0**60)}
        s_waitcnt lgkmcnt(0)
        s_add_u32 s{S_NON}, s{S_NON}, 1
        s_xor_b32 s{S_TAG}, s{S_NON}, {TAGX}
        """)
    BD = 88; BF = 136; ON = 184; VW = 188; VO = 189; VK = 190; VV = 191; CT = 192; VW2 = 195; VKP = 196; VVP = 197; VFL = 198
    QA = 8; QB = 16; OA = 24; OB = 40; LA = 56; LB = 60; KF = 80; VF = 104; SS = [224, 240]; PP = [128, 152]
    VLS = 194
    def attn_consts0(vl):
        return L(f"""
        v_and_b32 v{CT}, 0x33, v0
        v_bfe_u32 v{CT+1}, v0, 2, 1
        v_lshl_or_b32 v{CT}, v{CT+1}, 3, v{CT}
        v_bfe_u32 v{CT+1}, v0, 3, 1
        v_lshl_or_b32 v{CT}, v{CT+1}, 2, v{CT}
        s_lshl_b32 s{S_T0}, s{S_HH}, 14
        v_lshlrev_b32 v{VK}, 4, v{CT}
        v_add_u32 v{VV}, s{S_T0}, v{vl}
        s_add_u32 s{S_T0}, s{S_T0}, {R_K}
        v_add_u32 v{VK}, s{S_T0}, v{VK}
        s_lshl_b32 s{S_T0}, s{S_HH}, 14
        s_add_u32 s{S_T1}, s{S_T0}, {(R_PREV - R_K) & 0xffffffff:#x}
        v_add_u32 v{VKP}, s{S_T1}, v{VK}
        s_add_u32 s{S_T1}, s{S_T0}, {R_PREV + 2048}
        v_add_u32 v{VVP}, s{S_T1}, v{VV}
        s_add_u32 s{S_T1}, s{S_T0}, {R_Q}
        v_mov_b32 v{VFL}, s{S_T1}
        v_lshrrev_b32 v{CT}, 2, v0
        v_lshrrev_b32 v{CT+1}, 4, v0
        v_xor_b32 v{CT}, v{CT}, v{CT+1}
        v_and_b32 v{CT}, 1, v{CT}
        v_subrev_u32 v{CT}, 1, v{CT}
        v_and_b32 v{ON}, 0x3f803f80, v{CT}
        v_mov_b32 v{ON+1}, v{ON}
        v_mov_b32 v{ON+2}, v{ON}
        v_mov_b32 v{ON+3}, v{ON}
        """)
    def attn_consts1():
        c = L(f"""
        v_and_b32 v{CT}, 31, v0
        v_lshrrev_b32 v{BD}, 5, v0
        v_lshlrev_b32 v{BD}, 3, v{BD}
        v_sub_u32 v{CT}, v{CT}, v{BD}
        s_mov_b32 s{S_T1}, 0xff800000
        """)
        for r in range(16):
            f, u_, e = r >> 3, (r >> 2) & 1, r & 3
            kc = 16*f + 4*u_ + e
            c += [f"v_subrev_u32 v{BD+r}, {kc}, v{CT}", f"v_ashrrev_i32 v{BD+r}, 31, v{BD+r}", f"v_and_b32 v{BD+r}, s{S_T1}, v{BD+r}"]
        return c
    def attn_consts2():
        c = [f"s_mov_b32 s{S_T1}, 0xff800000"]
        c += [f"v_xor_b32 v{BF+r}, s{S_T1}, v{BD+r}" for r in range(16)]
        c += L(f"""
        v_lshrrev_b32 v{CT}, 3, v0
        v_and_b32 v{VW}, 7, v0
        v_bfe_u32 v{VO}, v0, 4, 2
        v_lshlrev_b32 v{VO}, 1, v{VO}
        v_xor_b32 v{VW}, v{VW}, v{VO}
        s_lshr_b32 s{S_T0}, s{S_WID}, 2
        s_lshl_b32 s{S_T0}, s{S_T0}, 20
        s_and_b32 s{S_T1}, s{S_WID}, 3
        s_lshl_b32 s{S_T1}, s{S_T1}, 14
        s_add_u32 s{S_T0}, s{S_T0}, s{S_T1}
        s_lshl_b32 s{S_T1}, s{S_OJ}, 7
        s_add_u32 s{S_T0}, s{S_T0}, s{S_T1}
        v_lshlrev_b32 v{CT}, 11, v{CT}
        v_add_u32 v{CT}, s{S_T0}, v{CT}
        v_lshl_add_u32 v{VW}, v{VW}, 4, v{CT}
        v_xor_b32 v{VW2}, 0x100000, v{VW}
        s_lshl_b32 s{S_LA}, s{S_WID}, 10
        v_and_b32 v{VO}, 15, v0
        v_lshrrev_b32 v{CT}, 5, v0
        v_lshl_add_u32 v{VO}, v{CT}, 4, v{VO}
        v_lshlrev_b32 v{VO}, 4, v{VO}
        v_bfe_u32 v{CT}, v0, 4, 1
        v_lshl_add_u32 v{VO}, v{CT}, 15, v{VO}
        """)
        return c
    D = opts.get("D", 3); MB = 16 - D
    KVS = B_BASE; QS = B_BASE + 32768; A4 = KVS
    qorder = [15, 14, 13] + list(range(12, MB - 1, -1))
    qorder = qorder[:D]
    aslot_q = {}
    for i, b in enumerate(qorder):
        aslot_q[b] = (b % 3) * A_SLOT if b >= 13 else [A4, 0, 2 * A_SLOT, A_SLOT][(i - 3) % 4]
    nst = 32 + D
    items = []
    for u in range(32):
        b, kk = divmod(u, 2)
        if kk == 0:
            for hf in range(2): items.append(dict(need=u, kind="A", blk=b, hf=hf, lds=(b % 3)*A_SLOT + hf*16384, size=16384,
                                                  free=(u + 2) if b < 13 or b not in qorder else 32 + qorder.index(b) + 2))
        if u <= 2*MB: items.append(dict(need=u, kind="B", u=u, lds=B_BASE + (u % 5)*B_SLOT, size=B_SLOT, free=u + 1))
        else: items.append(dict(need=u, kind="KV", u=u, lds=None, size=8192, free=u + 1))
    for i, b in enumerate(qorder):
        if b < 13:
            for hf in range(2): items.append(dict(need=32 + i, kind="A", blk=b, hf=hf, lds=aslot_q[b] + hf*16384, size=16384, free=32 + i + 2))
        for kk in range(2): items.append(dict(need=32 + i, kind="Q", u=2*b + kk, qi=(i, kk), lds=None, size=4096, free=32 + i + 2))
    def after_of(n, lo, size):
        r = -1
        for pv_ in items[:n]:
            if pv_["lds"] < lo + size and lo < pv_["lds"] + pv_["size"]: r = max(r, pv_["free"])
        return r
    for n, it in enumerate(items):
        if it["lds"] is None:
            lo_lim = B_BASE if it["kind"] == "KV" else QS
            cands = range(lo_lim, LDS_BYTES - 8192 - it["size"] + 1, 4096)
            it["lds"] = min(cands, key=lambda lo: (max(after_of(n, lo, it["size"]), it["need"] - 5), lo))
        it["after"] = after_of(n, it["lds"], it["size"])
        assert it["after"] < it["need"], it
        it["n"] = {"A": 4, "B": 3, "KV": 2, "Q": 1}[it["kind"]]
    def kvslot(u): return [it["lds"] for it in items if it["kind"] == "KV" and it["u"] == u][0]
    def qslot(i, kk): return [it["lds"] for it in items if it["kind"] == "Q" and it["qi"] == (i, kk)][0]
    VA = 1; VB = 3; VT = 5
    XF = 8; WF = 40; ACC = 64
    SEG = [1, 1, 2, 2, 0, 0]
    def acc(rb, col): return ACC + (rb * 6 + col) * 4
    def xf(rb): return XF + 4 * rb
    def wf(sl): return WF + 4 * sl
    a(f"""
    s_lshr_b32 s{S_TH}, s{S_WID}, 1
    v_and_b32 v{VT}, 15, v0
    v_lshrrev_b32 v{VT+1}, 4, v0
    v_bfe_u32 v{VT+2}, v0, 1, 3
    v_xor_b32 v{VT+2}, v{VT+2}, v{VT+1}
    v_lshlrev_b32 v{VT+2}, 4, v{VT+2}
    v_lshl_add_u32 v{VT+2}, v{VT}, 7, v{VT+2}
    s_lshl_b32 s{S_T0}, s{S_TH}, 14
    v_add_u32 v{VA}, s{S_T0}, v{VT+2}
    v_xor_b32 v{VA+1}, 64, v{VA}
    v_bfe_u32 v{VT}, v0, 2, 2
    v_lshlrev_b32 v{VB}, 7, v{VT}
    v_and_b32 v{VT}, 3, v0
    v_lshl_add_u32 v{VB}, v{VT}, 3, v{VB}
    v_mul_u32_u24 v{VT}, 3072, v{VT+1}
    v_add_u32 v{VB}, v{VB}, v{VT}
    v_bfe_u32 v{VT}, v0, 3, 2
    s_lshl_b32 s{S_T0}, s{S_HH}, 1
    v_xor_b32 v{VT}, s{S_T0}, v{VT}
    v_lshl_add_u32 v{VB}, v{VT}, 5, v{VB}
    v_add_u32 v{VB}, {B_BASE}, v{VB}
    v_xor_b32 v{VB+1}, 32, v{VB}
    """)
    LOOK = opts.get("look", 4)
    a(f"""
    s_and_b32 s{S_T0}, s{S_HP}, 3
    s_lshl_b32 s{S_T0}, s{S_T0}, 6
    s_lshl_b32 s{S_T1}, s{S_WID}, 4
    s_add_u32 s{S_T0}, s{S_T0}, s{S_T1}
    s_lshl_b32 s{S_T0}, s{S_T0}, 11
    v_lshlrev_b32 v5, 11, v0
    v_add_u32 v5, s{S_T0}, v5
    v_mov_b32 v11, 0x7f000000
    v_cmp_lt_u32 vcc, 15, v0
    v_and_b32 v9, 1, v0
    v_lshrrev_b32 v10, 1, v0
    v_cndmask_b32 v5, v5, v11, vcc
    s_lshl_b32 s{S_T0}, s{S_C}, 3
    s_lshl_b32 s{S_T1}, s{S_WID}, 1
    s_add_u32 s{S_T0}, s{S_T0}, s{S_T1}
    v_add_u32 v6, s{S_T0}, v9
    v_mul_u32_u24 v6, 6144, v6
    v_lshl_add_u32 v6, v10, 11, v6
    s_lshl_b32 s{S_T0}, s{S_HP}, 7
    v_add_u32 v6, s{S_T0}, v6
    v_cmp_lt_u32 vcc, 5, v0
    s_movk_i32 s{S_KA}, {128*LOOK}
    s_mov_b32 s{S_KB}, {64*6144*LOOK}
    v_cndmask_b32 v6, v6, v11, vcc
    s_getpc_b64 s[{S_CODE}:{S_CODE+1}]
    s_mov_b32 s{S_CODE+2}, CODE_END_BYTES
    s_mov_b32 s{S_CODE+3}, 0x20000
    s_lshr_b32 s{S_T0}, s2, 3
    s_and_b32 s{S_T0}, s{S_T0}, 7
    s_lshl_b32 s{S_T0}, s{S_T0}, 2
    s_add_u32 s{S_T0}, s{S_T0}, s{S_WID}
    s_mul_i32 s{S_T0}, s{S_T0}, {CODE_LINES // 32 * 128}
    v_lshlrev_b32 v12, 7, v0
    v_add_u32 v12, s{S_T0}, v12
    v_cmp_lt_u32 vcc, 15, v0
    s_nop 1
    v_cndmask_b32 v12, v12, v11, vcc
    """)
    a(f"""
    s_and_b32 s{S_T0}, s{S_OC}, 1
    s_lshl_b32 s{S_T0}, s{S_T0}, 9
    s_mul_i32 s{S_T1}, s{S_WID}, 10
    s_add_u32 s{S_T0}, s{S_T0}, s{S_T1}
    s_lshl_b32 s{S_T0}, s{S_T0}, 11
    s_lshl_b32 s{S_T1}, s{S_OJ}, 7
    s_add_u32 s{S_QB}, s{S_T0}, s{S_T1}
    v_cmp_lt_u32 vcc, 9, v0
    v_lshlrev_b32 v0, 11, v0
    s_nop 0
    v_cndmask_b32 v0, v0, v11, vcc
    """)
    a("L_pcref:")
    common_setup()
    for r in range(ACC, 256):
        a(f"v_mov_b32 v{r}, 0")
    a(f"""
    s_mov_b32 s{S_ASL}, 0
    s_mov_b32 s{S_BSL}, 0
    s_mov_b32 s{S_CNT}, {MB}
    s_barrier
    """)
    stamp(1)
    VTOUCH = opts.get("vtouch", 0)
    for b in range(3, LOOK if VTOUCH else 0):
        a(f"s_mov_b32 s{S_T0}, {64*6144*b}")
        a(f"buffer_load_dword v7, v6, {sr(S_W,4)}, s{S_T0} offen")
        a(f"buffer_load_dword v7, v5, {sr(S_X,4)}, 0 offen offset:{128*b}")
    if opts.get("codetouch", 1):
        a(f"buffer_load_dword v7, v12, {sr(S_CODE,4)}, 0 offen")
    def rdX(rb, va, off=0):
        a.lds(f"ds_read_b128 {vr(xf(rb),4)}, v{va} offset:{2048*rb+off}", f"x{rb}")
    def rdW(sl, col, half, off=0):
        a.lds(f"ds_read_b64_tr_b16 {vr(wf(sl)+2*half,2)}, v{VB+(col&1)} offset:{off+SEG[col]*1024+half*512}", f"w{sl}")
    def mf(rb, col, sl):
        d = vr(acc(rb, col), 4)
        if col in (2, 3):
            a(f"v_mfma_f32_16x16x32_bf16 {d}, {vr(xf(rb),4)}, {vr(wf(sl),4)}, {d}")
        else:
            a(f"v_mfma_f32_16x16x32_bf16 {d}, {vr(wf(sl),4)}, {vr(xf(rb),4)}, {d}")
    for rb in range(8):
        if rb < 3:
            rdW(rb, rb, 0); rdW(rb, rb, 1)
        rdX(rb, VA)
    q0 = list(a.q)
    a("L_cloop:")
    for kk in range(2):
        fill = {}
        for i, (c, h) in enumerate([(c, h) for c in (3, 4, 5) for h in (0, 1)]):
            fill[i] = (lambda c=c, h=h: rdW(c, c, h))
        for i, x in enumerate(L(f"""
            s_add_u32 s{S_T0}, s{S_BSL}, {B_SLOT}
            s_cmp_eq_u32 s{S_T0}, {5*B_SLOT}
            s_cselect_b32 s{S_T0}, 0, s{S_T0}
            s_sub_u32 s{S_DB}, s{S_T0}, s{S_BSL}
            s_mov_b32 s{S_BSL}, s{S_T0}
            """)): fill[6 + i] = (lambda x=x: a(x))
        fill[12] = lambda: a(f"v_add_u32 v{VB}, s{S_DB}, v{VB}")
        fill[13] = lambda: a(f"v_add_u32 v{VB+1}, s{S_DB}, v{VB+1}")
        if kk == 1:
            for i, x in enumerate(L(f"""
                s_add_u32 s{S_T0}, s{S_ASL}, {A_SLOT}
                s_cmp_eq_u32 s{S_T0}, {3*A_SLOT}
                s_cselect_b32 s{S_T0}, 0, s{S_T0}
                s_sub_u32 s{S_DA}, s{S_T0}, s{S_ASL}
                s_mov_b32 s{S_ASL}, s{S_T0}
                v_add_u32 v{VA}, s{S_DA}, v{VA}
                v_add_u32 v{VA+1}, s{S_DA}, v{VA+1}
                """)): fill[14 + i] = (lambda x=x: a(x))
        m = 0
        for rb in range(8):
            if rb == 0: a.wait_lds("w0", "w1", "w2", "x3")
            if rb == 4: a.wait_lds("x7")
            for c in range(3):
                mf(rb, c, c)
                if m in fill: fill[m]()
                m += 1
        a.wait_lds_all()
        if not opts.get("x_nobar"): a("s_barrier")
        pend = [(c, h) for c in (0, 1, 2) for h in (0, 1)]
        m = 0
        for rb in range(8):
            for c in range(3, 6):
                mf(rb, c, c)
                if c == 5: rdX(rb, VA + (kk ^ 1))
                elif pend:
                    cc, h = pend.pop(0); rdW(cc, cc, h)
                elif kk == 1 and m == 18: a(f"s_sub_u32 s{S_CNT}, s{S_CNT}, 1")
                elif kk == 1 and m == 19: a(f"s_cmp_lg_u32 s{S_CNT}, 0")
                m += 1
        if kk == 0: qmid = list(a.q)
        else: assert a.q == qmid
    assert qmid == q0, (qmid, q0)
    a("s_cbranch_scc1 L_cloop")
    qsave = list(a.q); stamp("main"); a.q = qsave
    VAH = 56; VLN = 58; VG2 = 59; VQ = 60
    u0 = 2 * MB
    a(f"""
    v_mbcnt_lo_u32_b32 v0, -1, 0
    v_mbcnt_hi_u32_b32 v0, -1, v0
    v_add_u32 v{VA}, {(-(MB % 3)*A_SLOT) & 0xffffffff:#x}, v{VA}
    v_add_u32 v{VA+1}, {(-(MB % 3)*A_SLOT) & 0xffffffff:#x}, v{VA+1}
    v_add_u32 v{VB}, {(-(u0 % 5)*B_SLOT) & 0xffffffff:#x}, v{VB}
    v_add_u32 v{VB+1}, {(-(u0 % 5)*B_SLOT) & 0xffffffff:#x}, v{VB+1}
    """)
    def rdXs(rb, slot, kk):
        if slot < 65536: rdX(rb, VA + kk, slot)
        else: rdX(rb, VAH + kk, slot - 65536)
    def rdWkv(sl, col, half, u):
        a.lds(f"ds_read_b64_tr_b16 {vr(wf(sl)+2*half,2)}, v{VB+(col&1)} offset:{kvslot(u)-B_BASE+(col>>1)*1024+half*512}", f"w{sl}")
    def rdWq(sl, j, half, i, kk):
        a.lds(f"ds_read_b64_tr_b16 {vr(wf(sl)+2*half,2)}, v{VQ+j} offset:{qslot(i,kk)-B_BASE+half*512}", f"w{sl}")
    for u in range(u0, 32):
        blk, kk = divmod(u, 2)
        pend = [(3, 0), (3, 1)] if u == u0 else [(2, 0), (2, 1), (3, 0), (3, 1)]
        for rb in range(8):
            if rb == 0: a.wait_lds("w0", "w1", "x3")
            if rb == 4: a.wait_lds("x7")
            for c in range(2):
                mf(rb, c, c)
                if pend:
                    cc, h = pend.pop(0)
                    if u == u0: rdW(cc, cc, h, (u0 % 5) * B_SLOT)
                    else: rdWkv(cc, cc, h, u)
            if u == u0 and rb == 2:
                a(f"""
                v_add_u32 v{VAH}, 0x10000, v{VA}
                v_add_u32 v{VAH+1}, 0x10000, v{VA+1}
                v_lshrrev_b32 v{VG2}, 4, v0
                v_lshlrev_b32 v{VG2}, 10, v{VG2}
                v_sub_u32 v{VB}, v{VB}, v{VG2}
                v_sub_u32 v{VB+1}, v{VB+1}, v{VG2}
                v_sub_u32 v{VQ}, v{VB}, v{VG2}
                v_sub_u32 v{VQ+1}, v{VB+1}, v{VG2}
                v_lshlrev_b32 v{VLN}, 4, v0
                """)
            if kk == 0 and rb == 5 and blk + LOOK < 16 and VTOUCH:
                a(f"buffer_load_dword v7, v6, {sr(S_W,4)}, s{S_KB} offen")
                a(f"s_add_u32 s{S_KB}, s{S_KB}, {64*6144}")
            if kk == 0 and rb == 6 and blk + LOOK < 16 and VTOUCH:
                a(f"buffer_load_dword v7, v5, {sr(S_X,4)}, s{S_KA} offen")
                a(f"s_add_u32 s{S_KA}, s{S_KA}, 128")
        a.wait_lds_all()
        a("s_barrier")
        if u == 31: break
        for rb in range(8):
            for c in (2, 3):
                mf(rb, c, c)
                if rb < 4 and c == 2: rdWkv(rb >> 1, rb >> 1, rb & 1, u + 1)
            rdXs(rb, (((u + 1) // 2) % 3) * A_SLOT, (u + 1) % 2)
    S_G = S_ASL; S_LK = S_KB
    KVSC = ["", " sc1", " nt", " sc0"][opts.get("kvsc", 1)]
    def pack(rd, ra, rb_):
        return [f"v_cvt_pk_bf16_f32 v{rd}, v{ra}, v{ra+1}", f"v_cvt_pk_bf16_f32 v{rd+1}, v{ra+2}, v{ra+3}",
                f"v_cvt_pk_bf16_f32 v{rd+2}, v{rb_}, v{rb_+1}", f"v_cvt_pk_bf16_f32 v{rd+3}, v{rb_+2}, v{rb_+3}"]
    def swap(ra):
        return [f"v_permlane16_swap_b32 v{ra}, v{ra+2}", f"v_permlane16_swap_b32 v{ra+1}, v{ra+3}"]
    frs = []
    for tb in range(4):
        frs.append((acc(2*tb, 0), acc(2*tb, 0), acc(2*tb+1, 0), tb, 0))
        frs.append((acc(2*tb, 1), acc(2*tb, 1), acc(2*tb+1, 1), tb, 1))
        frs.append((acc(2*tb, 2), acc(2*tb, 2), acc(2*tb, 3), tb, 2))
        frs.append((acc(2*tb, 3), acc(2*tb+1, 2), acc(2*tb+1, 3), tb, 3))
    C_LDS = LDS_BYTES - 8192
    assert all(it["lds"] + it["size"] <= C_LDS for it in items if it["free"] > 31)
    assert D == 3
    qfr = [(acc(2*tb, 4+f), acc(2*tb+1, 4+f), tb, f) for tb in range(4) for f in range(2)]
    order = [i for i in range(16) if frs[i][4] < 2] + [i for i in range(16) if frs[i][4] >= 2]
    NSQ = opts.get("nsq", 12)
    stores = []
    def kv_store(vl):
        rd, _, _, tb, sl = frs[stores.pop(0)]
        a(f"s_add_u32 s{S_T3}, s{S_G}, {tb*4096}")
        a(f"buffer_store_dwordx4 {vr(rd,4)}, v{vl}, {sr(S_WS,4)}, s{S_T3} offen offset:{sl*1024}{KVSC}")
    def publish(vt):
        a(f"""
        s_lshl_b32 s{S_U0}, s{S_P}, 7
        s_lshl_b32 s{S_U1}, s{S_HP}, 3
        s_add_u32 s{S_U0}, s{S_U0}, s{S_U1}
        s_add_u32 s{S_U0}, s{S_U0}, s{S_C}
        s_lshl_b32 s{S_U0}, s{S_U0}, 7
        s_lshl_b32 s{S_U1}, s{S_WID}, 3
        s_add_u32 s{S_U0}, s{S_U0}, s{S_U1}
        s_add_u32 s{S_U0}, s{S_U0}, {WS_FKV}
        v_mov_b32 v{vt}, s{S_NON}
        v_mov_b32 v{vt+1}, s{S_TAG}
        v_mov_b32 v{vt+2}, 0
        s_sub_u32 s{S_KA}, s{S_U0}, 128
        s_waitcnt vmcnt(0)
        s_mov_b64 exec, 1
        buffer_store_dwordx2 v[{vt}:{vt+1}], v{vt+2}, {sr(S_WS,4)}, s{S_U0} offen sc1
        s_mov_b64 exec, -1
        s_nop 3
        """)
        qs = list(a.q); stamp("pub"); a.q = qs
    def qpass(th):
        side = L(f"""
        s_add_u32 s{S_G}, s{S_KVB}, {th << 14}
        s_lshl_b32 s{S_LK}, s{S_HH}, 14
        s_add_u32 s{S_LK}, s{S_LK}, {th << 13}
        v_add_u32 v{VG2}, s{S_LK}, v{VLN}
        v_add_u32 v{VG2+3}, {R_K}, v{VG2}
        """)
        for n, i in enumerate(order + [None]):
            if n == 8: side.append(("vwait",))
            if i is not None: side += pack(frs[i][0], frs[i][1], frs[i][2])
            else: side += ["s_nop 1"]
            if n >= 1: side += swap(frs[order[n-1]][0]) + [("ready", order[n-1])]
        side += L(f"""
        s_mov_b32 s{S_M0}, {f32bits(QSCALE)}
        s_mov_b32 s{S_M0+1}, {f32bits(QSCALE)}
        v_add_u32 v{VG2+4}, {LDS_BYTES - 8192}, v{VLN}
        """) + attn_consts0(VLN) + attn_consts2()[17:]
        cread = [f"ds_read_b128 {vr((BD if i < 4 else BF) + 4*(i%4), 4)}, v{VG2+4} offset:{1024*i}" for i in range(8)]
        ready = set()
        stores[:] = list(order)
        done = [-16]
        def emit_side(n):
            while side and n > 0:
                x = side[0]
                if x == ("vwait",):
                    if done[0] < 4: return
                    side.pop(0); continue
                side.pop(0)
                if isinstance(x, tuple): ready.add(x[1])
                else: a(x); n -= 1
        nm = 32 * D
        st_first, st_mid, st_last = opts.get("st0", -6), opts.get("stm", 40), nm - opts.get("st1", 8)
        st_pub = opts.get("stp", 76)
        kw = order[:8]; vw = order[8:]
        def stage(lst):
            rd, _, _, tb, sl = frs[lst.pop(0)]
            a.lds(f"ds_write_b128 v{VG2 if sl >= 2 else VG2+3}, {vr(rd,4)} offset:{tb*2048+(sl&1)*1024}", "kw")
        def after_mfma(j, last):
            done[0] += 1
            d = done[0]
            emit_side(opts.get("spm", 2))
            nd = 16 - len(stores)
            if th == 1:
                if stores and stores[0] in ready and d >= st_first + (st_mid - st_first) * nd // 16: kv_store(VLN)
                if d == st_pub: publish(4)
            elif nd < NSQ and stores[0] in ready and d >= st_mid + (st_last - st_mid) * nd // NSQ: kv_store(VLN)
            if j == 1 and kw and kw[0] in ready: stage(kw)
            if j == 1 and last and vw and not kw: stage(vw)
            if j == 0 and last and cread and order[-1] in ready and not side: a.lds(cread.pop(0), "cr")
        for rb in range(8):
            for c in (2, 3):
                mf(rb, c, c)
                if rb < 4 and c == 2: rdWq(rb >> 1, rb >> 1, rb & 1, 0, 0)
                after_mfma(c - 2, False)
            rdXs(rb, aslot_q[qorder[0]], 0)
        qsave = list(a.q); stamp(2); a.q = qsave
        for i, b in enumerate(qorder):
            last = (i == D - 1)
            for kk in range(2):
                cur = (0, 1) if kk == 0 else (2, 3)
                if kk == 0: pend = [(2, 0, 0), (2, 0, 1), (3, 1, 0), (3, 1, 1)]
                else: pend = [] if last else [(0, 0, 0), (0, 0, 1), (1, 1, 0), (1, 1, 1)]
                if kk == 1 and not last: a("s_barrier")
                for rb in range(8):
                    if rb == 0: a.wait_lds(f"w{cur[0]}", f"w{cur[1]}", "x3")
                    if rb == 4: a.wait_lds("x7")
                    for j in range(2):
                        mf(rb, 4 + j, cur[j])
                        if pend:
                            sl, jj, h = pend.pop(0)
                            rdWq(sl, jj, h, i, 1) if kk == 0 else rdWq(sl, jj, h, i + 1, 0)
                        after_mfma(j, last)
                    if kk == 0: rdXs(rb, aslot_q[b], 1)
                    elif not last: rdXs(rb, aslot_q[qorder[i+1]], 0)
                    if last and kk == 1 and rb >= 3 and rb % 2 == 1:
                        a("s_nop 1")
                        for f in range(2):
                            ra, rb_, _, _ = qfr[(rb - 3) + f]
                            for r in (ra, ra+2, rb_, rb_+2):
                                a(f"v_pk_mul_f32 v[{r}:{r+1}], v[{r}:{r+1}], s[{S_M0}:{S_M0+1}]")
                            for x in pack(ra, ra, rb_): a(x)
                        a("s_nop 0")
                        for f in range(2):
                            for x in swap(qfr[(rb - 3) + f][0]): a(x)
        assert not cread and not side and not kw and not vw and len(stores) == (0 if th else 16 - NSQ), (len(side), stores, kw, vw, cread)
        a.wait_lds_all()
    assert not a.q
    a(f"s_cmp_eq_u32 s{S_TH}, 1")
    a("s_cbranch_scc1 L_q1")
    qpass(0)
    deferred = list(stores)
    a("s_branch L_qe")
    a("L_q1:")
    qpass(1)
    a("L_qe:")
    stamp("qend")
    a("s_barrier")
    a(f"v_add_u32 v{VG2+1}, {R_Q}, v{VG2}")
    for f in range(2):
        ra, rb_, _, _ = qfr[6 + f]
        for r in (ra, ra+2, rb_, rb_+2):
            a(f"v_pk_mul_f32 v[{r}:{r+1}], v[{r}:{r+1}], s[{S_M0}:{S_M0+1}]")
        for x in pack(ra, ra, rb_): a(x)
    for i in range(6):
        r, _, tb, f = qfr[i]
        a(f"ds_write_b128 v{VG2+1}, {vr(r,4)} offset:{tb*2048+f*1024}")
    for f in range(2):
        for x in swap(qfr[6 + f][0]): a(x)
    a(f"v_mov_b32 v1, v{VLN}")
    for i in (6, 7):
        r, _, tb, f = qfr[i]
        a(f"ds_write_b128 v{VG2+1}, {vr(r,4)} offset:{tb*2048+f*1024}")
    a("s_setprio 1")
    a("s_branch L_attn")
    a("L_loader:")
    if stamps: a("\n".join(f"s_mov_b32 s{r}, s4" for r in [5, 6, 7, 8, 9, 14]))
    VOA = 2; VOB = 6
    a(f"""
    s_sub_u32 s{S_T3}, s{S_WID}, 4
    v_lshrrev_b32 v10, 3, v0
    v_and_b32 v11, 7, v0
    v_lshrrev_b32 v12, 1, v10
    v_xor_b32 v13, v11, v12
    v_xor_b32 v14, 4, v13
    s_lshl_b32 s{S_T0}, s{S_T3}, 16
    v_lshlrev_b32 v15, 11, v10
    v_add_u32 v15, s{S_T0}, v15
    v_lshl_add_u32 v{VOA}, v13, 4, v15
    v_lshl_add_u32 v{VOA+1}, v14, 4, v15
    v_add_u32 v{VOA+1}, {16384-1024}, v{VOA+1}
    v_add_u32 v{VOA+2}, {2*(16384-1024)}, v{VOA}
    v_add_u32 v{VOA+3}, {2*(16384-1024)}, v{VOA+1}
    s_lshl_b32 s{S_LA}, s{S_T3}, 12
    """)
    def issue(it, tag):
        k = it["kind"]
        if opts.get("x_noload") and 4 <= it["need"] < 2*MB: return
        if k == "A":
            a(f"s_mov_b32 s{S_KA}, {it['hf']*128*2048 + it['blk']*128}")
            a(f"s_add_u32 m0, s{S_LA}, {it['lds']}")
            a("s_nop 0")
            for i in range(4): a.vm(f"buffer_load_dwordx4 v{VOA+i}, {sr(S_X,4)}, s{S_KA} offen offset:{1024*i} lds", tag)
        elif k == "B":
            a(f"s_mov_b32 s{S_KB}, {it['u']*32*6144}")
            a(f"s_add_u32 m0, s{S_LB}, {it['lds']}")
            a("s_nop 0")
            for i in range(3): a.vm(f"buffer_load_dwordx4 v{VOB+i}, {sr(S_W,4)}, s{S_KB} offen offset:{1024*i} lds", tag)
        elif k == "KV":
            a(f"s_mov_b32 s{S_KB}, {it['u']*32*6144 + 1024}")
            a(f"s_add_u32 m0, s{S_ASL}, {it['lds']}")
            a("s_nop 0")
            for i in range(2): a.vm(f"buffer_load_dwordx4 v{VOB+1+i}, {sr(S_W,4)}, s{S_KB} offen offset:{1024*i} lds", tag)
        else:
            a(f"s_mov_b32 s{S_KB}, {it['u']*32*6144}")
            a(f"s_add_u32 m0, s{S_BSL}, {it['lds']}")
            a("s_nop 0")
            a.vm(f"buffer_load_dwordx4 v{VOB}, {sr(S_W,4)}, s{S_KB} offen lds", tag)
    a.vq = []
    issue(items[0], "n0")
    a(f"""
    v_and_b32 v12, 1, v12
    s_and_b32 s{S_T0}, s{S_T3}, 1
    s_lshl_b32 s{S_T0}, s{S_T0}, 1
    v_or_b32 v12, s{S_T0}, v12
    v_lshlrev_b32 v12, 1, v12
    v_xor_b32 v13, v11, v12
    s_mul_i32 s{S_T0}, s{S_T3}, {8*6144}
    s_lshl_b32 s{S_T1}, s{S_HP}, 7
    s_add_u32 s{S_T0}, s{S_T0}, s{S_T1}
    v_mul_u32_u24 v15, 6144, v10
    v_add_u32 v15, s{S_T0}, v15
    v_lshl_add_u32 v{VOB}, v13, 4, v15
    v_add_u32 v{VOB+1}, {2048-1024}, v{VOB}
    v_add_u32 v{VOB+2}, {2*(2048-1024)}, v{VOB}
    s_mul_i32 s{S_LB}, s{S_T3}, 3072
    s_lshl_b32 s{S_ASL}, s{S_T3}, 11
    s_lshl_b32 s{S_BSL}, s{S_T3}, 10
    """)
    st_sched = {}
    def ST(k, x):
        st_sched.setdefault(k, []).append(x)
        if x.startswith("s_load") and opts.get("s2", 1):
            head, off = x.rsplit(", ", 1)
            st_sched[k].append(f"{head}, {int(off) + 64}")
    TW, TX, TO, TO2 = 16, 18, 20, 24
    if opts.get("stouch", 1):
        lead = opts.get("slead", 8)
        for i in range(8):
            k = max(4*i - lead, i)
            for seg in range(3): ST(k, f"s_load_dword s22, s[{TW}:{TW+1}], {seg*2048}")
            ST(k, f"s_add_u32 s{TW}, s{TW}, {128*6144}"); ST(k, f"s_addc_u32 s{TW+1}, s{TW+1}, 0")
        for j in range(16): ST(j // 8, f"s_load_dword s22, s[{TX}:{TX+1}], {j*2048 + 3*128}")
        for j in range(16): ST(opts.get("sx11", 6) + j // 2, f"s_load_dword s22, s[{TX}:{TX+1}], {j*2048 + 11*128}")
        for j in range(16): ST(opts.get("swo", 14) + j // 2, f"s_load_dword s22, s[{TO}:{TO+1}], {(j//2)*2048 + (3 + 8*(j&1))*128}")
        woa = opts.get("woa", 16)
        if woa < 16:
            R = (16 - woa) * 32 // 128
            lst = [(kh, j, l) for kh in range(2) for j in range(R) for l in range(16) if l % 8 != 3]
            k0, k1 = opts.get("wk0", 14), opts.get("wk1", 31)
            for i, (kh, j, l) in enumerate(lst):
                ST(k0 + i * (k1 - k0) // len(lst), f"s_load_dword s22, s[{TO2}:{TO2+1}], {kh*512*2048 + j*2048 + l*128 - 0x80000}")
    def st_setup():
        a(f"""
        s_lshr_b32 s{S_T0}, s2, 3
        s_lshl_b32 s{S_T0}, s{S_T0}, 2
        s_add_u32 s{S_T0}, s{S_T0}, s{S_WID}
        s_sub_u32 s{S_T0}, s{S_T0}, 4              ; n = slot*4 + w
        s_mul_i32 s{S_T1}, s{S_T0}, 6144
        s_or_b32 s{S_T2}, s{S_HP}, 3
        s_lshl_b32 s{S_T2}, s{S_T2}, 7
        s_add_u32 s{S_T1}, s{S_T1}, s{S_T2}
        s_add_u32 s{TW}, s{S_W}, s{S_T1}
        s_addc_u32 s{TW+1}, s{S_W+1}, 0
        s_lshl_b32 s{S_T1}, s{S_T0}, 15
        s_lshl_b32 s{S_T2}, s{S_C}, 19
        s_sub_u32 s{TX}, s{S_X}, s{S_T2}
        s_subb_u32 s{TX+1}, s{S_X+1}, 0
        s_add_u32 s{TX}, s{TX}, s{S_T1}
        s_addc_u32 s{TX+1}, s{TX+1}, 0
        s_lshl_b32 s{S_T1}, s{S_T0}, 14
        s_add_u32 s{TO}, s{S_WO}, s{S_T1}
        s_addc_u32 s{TO+1}, s{S_WO+1}, 0
        s_mul_i32 s{S_T1}, s{S_T0}, {(16 - opts.get("woa", 16)) * 32 // 128 * 2048}
        s_add_u32 s{S_T1}, s{S_T1}, {32 * opts.get("woa", 16) * 2048 + 0x80000}
        s_add_u32 s{TO2}, s{S_WO}, s{S_T1}
        s_addc_u32 s{TO2+1}, s{S_WO+1}, 0
        """)
    pendq = items[1:]
    for k in range(-1, nst):
        budget = opts.get("pro", 14) if k < 0 else (opts.get("bud0", 10) if k < 4 else (opts.get("bud", 7) if k < 31 else 10))
        for it in list(pendq):
            if it["after"] <= k and it["need"] <= k + 6 and (budget >= it["n"] or it["need"] <= k + 2):
                pendq.remove(it); issue(it, f"n{it['need']}"); budget -= it["n"]
        if k == -1:
            common_setup(); st_setup()
        for x in st_sched.get(k, []): a(x)
        if k == opts.get("wvt", 99):
            a(f"""
            s_and_b32 s{S_T0}, s{S_OC}, 1
            s_lshl_b32 s{S_T0}, s{S_T0}, 2
            s_add_u32 s{S_T0}, s{S_T0}, s{S_WID}
            s_sub_u32 s{S_T0}, s{S_T0}, 4
            s_lshl_b32 s{S_T0}, s{S_T0}, 18
            s_lshl_b32 s{S_T1}, s{S_OJ}, 7
            s_add_u32 s{S_T0}, s{S_T0}, s{S_T1}
            v_lshlrev_b32 v9, 11, v0
            s_add_u32 s{S_T1}, s{S_T0}, 0x20000
            """)
            a.vm(f"buffer_load_dword v10, v9, {sr(S_WO,4)}, s{S_T0} offen", "wt")
            a.vm(f"buffer_load_dword v10, v9, {sr(S_WO,4)}, s{S_T1} offen", "wt")
        if 18 <= k < 28:
            if k == 18:
                a("v_lshlrev_b32 v1, 4, v0")
                lc = [x for x in attn_consts0(1) + attn_consts1() + attn_consts2() if not x.startswith(f"s_lshl_b32 s{S_LA},")]
                lc.append(f"v_add_u32 v{CT}, {LDS_BYTES - 8192}, v1")
                lc = [x.replace(f"s{S_T0}", "s26").replace(f"s{S_T1}", "s27") for x in lc]
                per = -(-len(lc) // 10)
            for x in lc[(k-18)*per:(k-17)*per]: a(x)
        if k == 32:
            a(f"s_lshl_b32 s{S_LA}, s{S_WID}, 10")
            for i in range(8): a(f"ds_write_b128 v{CT}, {vr((BD if i < 4 else BF) + 4*(i%4), 4)} offset:{1024*i}")
            a("s_waitcnt lgkmcnt(0)")
        if k + 1 < nst:
            assert not any(it["need"] <= k + 1 for it in pendq), k
            a.wait_vm(*[f"n{j}" for j in range(k + 2)])
            if not (opts.get("x_nobar") and 0 <= k < 2*MB): a("s_barrier")
            elif opts.get("x_nobar") == 2: a("s_sleep 10")
    assert not pendq and set(a.vq) <= {"wt"}, (pendq, a.vq)
    a("s_barrier")
    VL = 1; VT = 4
    a("L_attn:")
    a(f"""
    s_lshr_b32 s{S_T0}, s{S_WID}, 1
    s_waitcnt lgkmcnt(0)
    s_barrier
    """)
    stamp(3)
    a(f"""
    s_cmp_eq_u32 s{S_T0}, 1
    s_cbranch_scc1 L_u1
    s_cmp_eq_u32 s{S_T0}, 2
    s_cbranch_scc1 L_u2
    s_cmp_eq_u32 s{S_T0}, 3
    s_cbranch_scc1 L_u3
    """)
    def wo_dma(step, vw=VW, both=False):
        a(f"s_add_u32 m0, s{S_LA}, {wo_slot(step)}")
        a(f"s_mov_b32 s{S_T3}, {step*32*2048}")
        a.vm(f"buffer_load_dwordx4 v{vw}, {sr(S_WO,4)}, s{S_T3} offen lds", f"d{step}")
        if both:
            a(f"s_xor_b32 s{S_T2}, s{S_LA}, 4096")
            a(f"s_add_u32 m0, s{S_T2}, {wo_slot(step)}")
            a("s_nop 0")
            a.vm(f"buffer_load_dwordx4 v{VW2}, {sr(S_WO,4)}, s{S_T3} offen lds", f"d{step}")
    def run_tasks(tasks, hooks, first_touch):
        n = len(tasks)
        def rdK(i):
            for f in range(2):
                a.lds(f"ds_read_b128 {vr(KF+4*f,4)}, v{VKP if tasks[i][4] else VK} offset:{tasks[i][1]+1024*f}", f"k{f}")
        def rdV(i):
            for f in range(2):
                a.lds(f"ds_read_b128 {vr(VF+4*f,4)}, v{VVP if tasks[i][4] else VV} offset:{tasks[i][2]+1024*f}", f"v{f}")
        def qk(i, f):
            u, _, _, bias, _ = tasks[i]
            q = QA if u == "A" else QB
            s = vr(SS[i % 2], 16)
            c = s if f else (vr(bias, 16) if bias is not None else "0")
            a.wait_lds(f"k{f}")
            a(f"v_mfma_f32_32x32x16_bf16 {s}, {vr(KF+4*f,4)}, {vr(q+4*f,4)}, {c}")
        def pv(i, f):
            u = tasks[i][0]
            o = vr(OA if u == "A" else OB, 16)
            c = "0" if (u in first_touch and f == 0) else o
            a.wait_lds(f"v{f}")
            a(f"v_mfma_f32_32x32x16_bf16 {o}, {vr(VF+4*f,4)}, {vr(PP[i%2]+4*f,4)}, {c}")
        def sm(i, f):
            u = tasks[i][0]
            l = vr(LA if u == "A" else LB, 4)
            c = l
            if u in first_touch and f == 0:
                c = "0"; first_touch.discard(u)
            a(f"v_mfma_f32_16x16x32_bf16 {l}, {vr(ON,4)}, {vr(PP[i%2]+4*f,4)}, {c}")
        rdK(0)
        qk(0, 0); qk(0, 1)
        if n > 1: rdK(1)
        for i in range(n + 1):
            for h in hooks.get(i, []): h()
            s = SS[i % 2]; p = PP[i % 2]
            ex = [f"v_exp_f32 v{s+r}, v{s+r}" for r in range(16)] if i < n else []
            cv = [f"v_cvt_pk_bf16_f32 v{p+j}, v{s+2*j}, v{s+2*j+1}" for j in range(8)] if i < n else []
            def E(k):
                for _ in range(k):
                    if ex: a(ex.pop(0))
            def C(k):
                for _ in range(k):
                    if cv: a(cv.pop(0))
            if i + 1 < n: qk(i+1, 0)
            if i == 0: a("s_nop 7"); a("s_nop 3")
            if i == n: a("s_nop 1")
            E(3)
            if i >= 1: pv(i-1, 0)
            E(3)
            if i + 1 < n:
                qk(i+1, 1)
                if i + 2 < n: rdK(i+2)
            E(3)
            if i >= 1: pv(i-1, 1)
            if i < n: rdV(i)
            E(3); C(2)
            if i >= 1: sm(i-1, 0)
            E(4); C(1)
            if i >= 1: sm(i-1, 1)
            C(5)
    uid = [0]
    def finalize(U, qb_expr):
        O, Ls = (OA, LA) if U == "A" else (OB, LB)
        uid[0] += 1
        a(f"""
        {qb_expr}
        s_nop 3
        v_cmp_le_f32 s[{S_M0}:{S_M0+1}], s{S_LO}, v{Ls}
        v_cmp_ge_f32 s[{S_M1}:{S_M1+1}], s{S_HI}, v{Ls}
        s_lshl_b32 s{S_T0}, s{S_QB}, 16
        s_add_u32 s{S_T0}, s{S_T0}, s{S_OB}
        s_and_b64 s[{S_M0}:{S_M0+1}], s[{S_M0}:{S_M0+1}], s[{S_M1}:{S_M1+1}]
        s_cmp_eq_u64 s[{S_M0}:{S_M0+1}], -1
        s_cbranch_scc1 L_ok{uid[0]}
        s_call_b64 s[{S_RET}:{S_RET+1}], L_slow{U}
        L_ok{uid[0]}:
        v_rcp_f32 v{Ls+1}, v{Ls}
        s_nop 0
        """)
        for r in range(16): a(f"v_mul_f32 v{O+r}, v{O+r}, v{Ls+1}")
        for j in range(8): a(f"v_cvt_pk_bf16_f32 v{O+j}, v{O+2*j}, v{O+2*j+1}")
        a.vm(f"buffer_store_dwordx4 {vr(O,4)}, v{VO}, {sr(S_WS,4)}, s{S_T0} offen sc1", "o" + U)
        a.vm(f"buffer_store_dwordx4 {vr(O+4,4)}, v{VO}, {sr(S_WS,4)}, s{S_T0} offen offset:512 sc1", "o" + U)
    def o_flag(U, qb_expr, alt=None):
        VT = 4 if alt is None else 48
        a(f"""
        {qb_expr}
        s_lshl_b32 s{S_T0}, s{S_QB}, 8
        s_add_u32 s{S_T0}, s{S_T0}, s{S_FO}
        v_mov_b32 v{VT}, s{S_NON}
        v_mov_b32 v{VT+1}, s{S_TAG}
        v_mov_b32 v{VT+2}, 0
        """)
        a.wait_vm("o" + U)
        a("s_mov_b64 exec, 1")
        a.vm(f"buffer_store_dwordx2 v[{VT}:{VT+1}], v{VT+2}, {sr(S_WS,4)}, s{S_T0} offen sc1", "fl")
        a("s_mov_b64 exec, -1")
        a("s_nop 3")
        if U == "B":
            qs = list(a.q); stamp("ofl"); a.q = qs
    VR = 8; VPL = 12; VOUT = 13; VL2 = 14; VRD = 15
    WFR = 16; TMP = 48; ACB = [224, 128]
    ORING = [64, 72, 112, 120, 160, 168, 176, 200, 208, 216]
    OSC = " sc1"
    OPRE = opts.get("opre", 6)
    OAH = opts.get("oahead", 8)
    def ofr(g): return ORING[g % 10]
    def p3_pre():
        a(f"""
        s_lshr_b32 s{S_TH}, s{S_WID}, 2
        s_and_b32 s{S_DB}, s{S_WID}, 3
        s_lshl_b32 s{S_T0}, s{S_P}, 3
        s_add_u32 s{S_T0}, s{S_T0}, s{S_OC}
        s_lshl_b32 s{S_T1}, s{S_T0}, 3
        s_add_u32 s{S_T1}, s{S_T1}, s{S_DB}
        s_lshl_b32 s{S_KB}, s{S_T1}, 8
        s_lshl_b32 s{S_T2}, s{S_TH}, 7
        s_add_u32 s{S_KB}, s{S_KB}, s{S_T2}
        s_add_u32 s{S_KB}, s{S_KB}, {WS_FO}
        v_and_b32 v7, 15, v0
        v_lshlrev_b32 v7, 3, v7
        s_lshl_b32 s{S_KA}, s{S_T1}, 16
        s_lshl_b32 s{S_T2}, s{S_TH}, 14
        s_add_u32 s{S_KA}, s{S_KA}, s{S_T2}
        s_add_u32 s{S_KA}, s{S_KA}, {WS_O + 4*65536}
        v_add_u32 v{CT}, 0x8000, v{VL}
        s_and_b32 s{S_T2}, s{S_OJ}, {opts.get("x_rot", 0)}
        s_lshl_b32 s{S_T2}, s{S_T2}, 10
        s_add_u32 s{S_KA}, s{S_KA}, s{S_T2}
        """)
        a.vm(f"buffer_load_dwordx2 v[2:3], v7, {sr(S_WS,4)}, s{S_KB} offen offset:1024 sc1", "pl")
    def flags_ok():
        a(f"""
        v_cmp_eq_u32 s[{S_M0}:{S_M0+1}], s{S_NON}, v2
        v_cmp_eq_u32 s[{S_M1}:{S_M1+1}], s{S_TAG}, v3
        s_nop 1
        s_and_b64 s[{S_M0}:{S_M0+1}], s[{S_M0}:{S_M0+1}], s[{S_M1}:{S_M1+1}]
        s_cmp_eq_u64 s[{S_M0}:{S_M0+1}], -1
        """)
    def poll(tag, off, vpl):
        a.wait_vm("pl")
        a(f"s_mov_b32 s{S_CNT}, 0x40000")
        a(f"L_op{tag}:")
        flags_ok()
        a(f"""
        s_cbranch_scc1 L_og{tag}
        s_sub_u32 s{S_CNT}, s{S_CNT}, 1
        s_cmp_eq_u32 s{S_CNT}, 0
        s_cbranch_scc1 L_og{tag}
        s_sleep 1
        buffer_load_dwordx2 v[2:3], v{vpl}, {sr(S_WS,4)}, s{S_KB} offen offset:{off} sc1
        s_waitcnt vmcnt(0)
        s_branch L_op{tag}
        L_og{tag}:
        """)
    def o_load(g, vl2=VL2):
        i = g % 16
        if g == 16: a(f"s_sub_u32 s{S_KA}, s{S_KA}, {4*65536 + 3*4096}")
        elif i % 4 == 0 and i: a(f"s_add_u32 s{S_KA}, s{S_KA}, 4096")
        r = ofr(g)
        a.vm(f"buffer_load_dwordx4 {vr(r,4)}, v{VL}, {sr(S_WS,4)}, s{S_KA} offen offset:{(i%4)*1024}{OSC}", f"o{g}")
        a.vm(f"buffer_load_dwordx4 {vr(r+4,4)}, v{vl2}, {sr(S_WS,4)}, s{S_KA} offen offset:{(i%4)*1024}{OSC}", f"o{g}")
    for u in range(4):
        if u: a(f"L_u{u}:")
        qa, qb = u, 7 - u
        a(f"v_add_u32 v{VT}, v{VFL}, v{VL}")
        for f in range(2):
            a.lds(f"ds_read_b128 {vr(QB+4*f,4)}, v{VT} offset:{qb*2048+f*1024}", "q")
        for f in range(2):
            a.lds(f"ds_read_b128 {vr(QA+4*f,4)}, v{VT} offset:{qa*2048+f*1024}", "qa")
        a.wait_lds("q")
        own = lambda U, q: [(U, t*2048, t*2048, None, 0) for t in range(q)] + [(U, q*2048, q*2048, BD, 0)]
        prv = lambda U, q: [(U, q*4096, q*4096, BF, 1)] + [(U, t*4096, t*4096, None, 1) for t in range(q+1, 8)]
        hooks = {}
        def H(i, f): hooks.setdefault(i, []).append(f)
        def poll_issue():
            a(f"""
            s_cmp_eq_u32 s{S_C}, 0
            s_cbranch_scc1 L_np{u}
            v_mov_b32 v{VT+2}, 0
            buffer_load_dwordx2 v[2:3], v{VT+2}, {sr(S_WS,4)}, s{S_KA} offen sc1
            L_np{u}:
            """)
        def kv_dma(j):
            def f():
                a(f"""
                s_cmp_eq_u32 s{S_C}, 0
                s_cbranch_scc1 L_nd{u}_{j}
                s_add_u32 m0, s{S_DB}, {4096*j}
                s_add_u32 s{S_T2}, s{S_DA}, {4096*j}
                """)
                for k in range(4):
                    a(f"buffer_load_dwordx4 v{VL}, {sr(S_WS,4)}, s{S_T2} offen offset:{1024*k} sc1 lds")
                a(f"L_nd{u}_{j}:")
            return f
        def poll_check():
            a(f"""
            s_cmp_eq_u32 s{S_C}, 0
            s_cbranch_scc1 L_got{u}
            s_mov_b32 s{S_CNT}, 0x40000
            L_poll{u}:
            s_waitcnt vmcnt(0)
            v_readfirstlane_b32 s{S_T2}, v2
            v_readfirstlane_b32 s{S_T3}, v3
            s_cmp_eq_u32 s{S_T2}, s{S_NON}
            s_cselect_b32 s{S_T2}, 1, 0
            s_cmp_eq_u32 s{S_T3}, s{S_TAG}
            s_cselect_b32 s{S_T2}, s{S_T2}, 0
            s_cmp_lg_u32 s{S_T2}, 0
            s_cbranch_scc1 L_got{u}
            s_sub_u32 s{S_CNT}, s{S_CNT}, 1
            s_cmp_eq_u32 s{S_CNT}, 0
            s_cbranch_scc1 L_got{u}
            s_sleep 1
            buffer_load_dwordx2 v[2:3], v{VT+2}, {sr(S_WS,4)}, s{S_KA} offen sc1
            s_branch L_poll{u}
            L_got{u}:
            s_add_u32 s{S_DA}, s{S_KVB}, {(u*16384 - 32768) & 0xffffffff}
            s_lshl_b32 s{S_DB}, s{S_HH}, 15
            s_add_u32 s{S_DB}, s{S_DB}, {R_PREV + u*16384}
            """)
            qs = list(a.q); stamp("got"); a.q = qs
        def landed_b():
            a(f"""
            v_mov_b32 v2, s{S_NON}
            v_mov_b32 v3, s{S_TAG}
            s_lshl_b32 s{S_T2}, s{S_HH}, 3
            s_add_u32 s{S_T2}, s{S_T2}, {R_Q + 24576}
            v_mov_b32 v{VFL}, s{S_T2}
            """)
            a.wait_vm_all()
            a.lds(f"ds_write_b64 v{VFL}, v[2:3]", "fw")
        def wait_b():
            a(f"""
            s_lshl_b32 s{S_T2}, s{S_HH}, 3
            s_add_u32 s{S_T2}, s{S_T2}, {R_Q + 24576}
            v_mov_b32 v{VFL}, s{S_T2}
            """)
            a.wait_lds_all()
            wait_landed(0, "b")
        def landed():
            a.wait_lds("qa")
            a(f"""
            v_mov_b32 v2, s{S_NON}
            v_mov_b32 v3, s{S_TAG}
            s_waitcnt vmcnt(0)
            """)
            a.lds(f"ds_write_b64 v{VFL}, v[2:3] offset:{qa*2048}", "fw")
        def wait_landed(th, tag):
            assert not a.q
            a(f"""
            s_mov_b32 s{S_CNT}, 0x400000
            L_wl{u}{tag}:
            ds_read_b64 v[2:3], v{VFL} offset:{th*2048}
            s_waitcnt lgkmcnt(0)
            v_readfirstlane_b32 s{S_T2}, v2
            v_readfirstlane_b32 s{S_T3}, v3
            s_cmp_eq_u32 s{S_T2}, s{S_NON}
            s_cselect_b32 s{S_T2}, 1, 0
            s_cmp_eq_u32 s{S_T3}, s{S_TAG}
            s_cselect_b32 s{S_T2}, s{S_T2}, 0
            s_cmp_lg_u32 s{S_T2}, 0
            s_cbranch_scc1 L_wd{u}{tag}
            s_sub_u32 s{S_CNT}, s{S_CNT}, 1
            s_cmp_eq_u32 s{S_CNT}, 0
            s_cbranch_scc1 L_wd{u}{tag}
            s_sleep 1
            s_branch L_wl{u}{tag}
            L_wd{u}{tag}:
            """)
        if u == 1:
            c1 = opts.get("c1", 1)
            H(0, poll_issue); H(c1, poll_check)
            for j in range(4): H(c1 + j // 2, kv_dma(j))
            H(opts.get("l1", 4), landed)
        if u == 0:
            stores[:] = list(deferred)
            nd = len(deferred); spt = opts.get("spt", 2)
            for j in range(nd): H(j // spt, lambda: kv_store(VL))
            pub = opts.get("pub_at", 3)
            H(pub, lambda: publish(VT)); H(pub, poll_issue)
            c0_ = opts.get("c0", 6)
            H(c0_, poll_check)
            for j in range(4): H(c0_ + j // 2, kv_dma(j))
        ft = {"A", "B"}
        run_tasks(own("B", qb), hooks, ft)
        a.wait_lds_all()
        stamp(4)
        a(f"s_cmp_eq_u32 s{S_C}, 0")
        a(f"s_cbranch_scc1 L_z{u}")
        wait_landed(1, "a")
        a.vq = []
        hooks = {}
        nB = 8 - qb
        qbx = f"s_mov_b32 s{S_QB}, {qb}"
        n23 = nB + qa + 1
        H(nB + 1, lambda: finalize("B", qbx))
        fl = nB + 1 + opts.get("ofl", 2)
        if fl <= n23: H(fl, lambda: o_flag("B", qbx))
        run_tasks(prv("B", qb) + own("A", qa), hooks, ft)
        vq23 = list(a.vq)
        a(f"s_branch L_w{u}")
        a(f"L_z{u}:")
        a.vq = []
        a("s_nop 7")
        finalize("B", qbx)
        run_tasks(own("A", qa), {}, {"A"})
        if fl <= n23: o_flag("B", qbx)
        a.vq = vq23
        a(f"L_w{u}:")
        a.wait_lds_all()
        if u < 2: a("s_setprio 0")
        a("s_barrier")
        stamp(5)
        hooks = {}
        if fl > n23: H(max(fl - n23 - 1, 0), lambda: o_flag("B", qbx))
        nA = 8 - qa
        w0 = max(fl - n23 - 1, 0)
        sts = list(range(11))
        wpt = opts.get("wpt", 3)
        if u == 0:
            H(opts.get("lb", 1), landed_b); w0 = max(w0, opts.get("lb", 1))
        for t in range(w0, nA - 1):
            k = wpt if t < nA - 2 else 12
            for st in sts[:k]: H(t, (lambda s_: (lambda: wo_dma(s_)))(st))
            sts = sts[k:]
        assert not sts
        hooks_c0 = {t: list(v) for t, v in hooks.items()}
        if u: H(2, wait_b)
        H(nA - 1, p3_pre); hooks_c0.setdefault(nA - 1, []).append(p3_pre)
        a(f"s_cmp_eq_u32 s{S_C}, 0")
        a(f"s_cbranch_scc1 L_y{u}")
        vq4 = list(a.vq)
        run_tasks(prv("A", qa)[::-1], hooks, set())
        stamp(7)
        a(f"s_mov_b32 s{S_QB}, {qa}")
        a("s_nop 7")
        a("s_branch L_last")
        a(f"L_y{u}:")
        a.vq = vq4
        for t in sorted(hooks_c0):
            for h in hooks_c0[t]: h()
        a.wait_lds_all()
        stamp(7)
        a(f"s_mov_b32 s{S_QB}, {qa}")
        if u < 3: a("s_branch L_last")
    a("L_last:")
    a.vq = ["old"]
    finalize("A", "")
    a.wait_vm("old")
    flags_ok()
    a("s_cbranch_scc0 L_late")
    for g in range(OPRE): o_load(g, CT)
    o_flag("A", "")
    a("s_branch L_p3")
    a("L_late:")
    vq_keep = list(a.vq)
    a.vq = ["oA", "oA"]
    o_flag("A", "")
    a.vm(f"buffer_load_dwordx2 v[2:3], v7, {sr(S_WS,4)}, s{S_KB} offen offset:1024 sc1", "pl")
    poll("1", 1024, 7)
    for g in range(OPRE): o_load(g, CT)
    a("s_waitcnt vmcnt(0)")
    a.vq = vq_keep
    a("L_p3:")
    a(f"""
    v_bfe_u32 v5, v0, 2, 2
    v_bfe_u32 v6, v0, 4, 1
    v_lshl_add_u32 v5, v6, 2, v5
    v_lshlrev_b32 v{VR}, 7, v5
    v_bfe_u32 v6, v5, 1, 2
    v_lshl_add_u32 v{VR}, v6, 5, v{VR}
    v_and_b32 v6, 3, v0
    v_lshl_add_u32 v{VR}, v6, 3, v{VR}
    v_lshrrev_b32 v6, 5, v0
    v_lshl_add_u32 v{VR}, v6, 11, v{VR}
    s_lshl_b32 s{S_T0}, s{S_TH}, 12
    v_add_u32 v{VR}, s{S_T0}, v{VR}
    s_lshl_b32 s{S_T0}, s{S_TH}, 6
    v_xor_b32 v{VR}, s{S_T0}, v{VR}
    v_xor_b32 v{VR+1}, 32, v{VR}
    v_xor_b32 v{VR+2}, 64, v{VR}
    v_xor_b32 v{VR+3}, 0x60, v{VR}
    v_mov_b32 v{VPL}, v7
    v_mov_b32 v{VL2}, v{CT}
    v_mov_b32 v7, v{VW}
    """)
    a("s_barrier")
    stamp(9)
    for st in range(11, 16): wo_dma(st, 7)
    a(f"""
    v_and_b32 v{VOUT}, 15, v0
    v_lshlrev_b32 v{VOUT}, 12, v{VOUT}
    v_bfe_u32 v6, v0, 4, 1
    v_lshl_add_u32 v{VOUT}, v6, 5, v{VOUT}
    v_lshrrev_b32 v6, 5, v0
    v_lshl_add_u32 v{VOUT}, v6, 4, v{VOUT}
    s_lshl_b32 s{S_T0}, s{S_OC}, 8
    s_lshl_b32 s{S_T1}, s{S_DB}, 5
    s_add_u32 s{S_T0}, s{S_T0}, s{S_T1}
    s_lshl_b32 s{S_T0}, s{S_T0}, 12
    s_lshl_b32 s{S_T1}, s{S_P}, 11
    s_add_u32 s{S_T0}, s{S_T0}, s{S_T1}
    s_lshl_b32 s{S_T1}, s{S_OJ}, 7
    s_add_u32 s{S_T0}, s{S_T0}, s{S_T1}
    s_lshl_b32 s{S_T1}, s{S_TH}, 6
    s_add_u32 s{S_DA}, s{S_T0}, s{S_T1}
    s_lshl_b32 s{S_T0}, s{S_WID}, 12
    s_add_u32 s{S_T0}, s{S_T0}, {R_RED}
    v_add_u32 v{VRD}, s{S_T0}, v{VL}
    s_xor_b32 s{S_T0}, s{S_T0}, 0x4000
    v_add_u32 v4, s{S_T0}, v{VL}
    """)
    cur_base = [0]
    def rdWo(g, nb, hh_=None):
        slot = wo_slot(g % 16)
        assert slot & ~0xffff == cur_base[0], (g, nb)
        w = WFR + 16 * (g % 2) + 4 * nb
        for h in (range(2) if hh_ is None else [hh_]):
            a.lds(f"ds_read_b64_tr_b16 {vr(w+2*h,2)}, v{VR+nb} offset:{(slot & 0xffff) + h*1024}", f"w{g%2}_{nb}")
    def rebase(g):
        base = wo_slot(g % 16) & ~0xffff
        if base != cur_base[0]:
            d = (base - cur_base[0]) & 0xffffffff
            for q in range(4): a(f"v_add_u32 v{VR+q}, {d:#x}, v{VR+q}")
            cur_base[0] = base
    def ac(sl, nb, tb): return ACB[sl] + (nb*2 + tb)*4
    KEEP = f"s[{S_CODE}:{S_CODE+1}]"
    def red_send(sl):
        hi = ac(sl, 2, 0)
        return [("lds", f"ds_write_b128 v{VRD}, {vr(hi+4*i,4)} offset:{1024*i}", "rw") for i in range(4)]
    def red_recv(sl):
        lo = ac(sl, 0, 0)
        o = [("lds", f"ds_read_b128 {vr(TMP+4*i,4)}, v4 offset:{1024*i}", f"rr{i}") for i in range(4)]
        for i in range(4):
            o.append(("wait", f"rr{i}"))
            for r in range(4): o.append(f"v_add_f32 v{lo+4*i+r}, v{lo+4*i+r}, v{TMP+4*i+r}")
        for tb in range(2):
            ra, rb_, t = lo + 4*tb, lo + 8 + 4*tb, TMP + 4*tb
            o += [f"v_cvt_pk_bf16_f32 v{t}, v{ra}, v{ra+1}", f"v_cvt_pk_bf16_f32 v{t+1}, v{ra+2}, v{ra+3}",
                  f"v_cvt_pk_bf16_f32 v{t+2}, v{rb_}, v{rb_+1}", f"v_cvt_pk_bf16_f32 v{t+3}, v{rb_+2}, v{rb_+3}"]
        o += [f"s_add_u32 s{S_T0}, s{S_DA}, {(1-sl)*128*4096}", f"s_add_u32 s{S_T1}, s{S_T0}, 0x10000"]
        for tb in range(2): o += swap(TMP + 4*tb)
        o.append("s_nop 0")
        for tb in range(2):
            o.append(("vm", f"buffer_store_dwordx4 {vr(TMP+4*tb,4)}, v{VOUT}, {sr(S_OUT,4)}, s{S_T1 if tb else S_T0} offen{['', ' sc1', ' nt', ' sc0 sc1'][opts.get('outsc', 1)]}", "st"))
        return o
    def emit(x):
        if isinstance(x, str): a(x)
        elif x[0] == "lds": a.lds(x[1], x[2])
        elif x[0] == "vm": a.vm(x[1], x[2])
        else: a.wait_lds(x[1])
    for nb in range(4): rdWo(0, nb)
    side = []
    P2C = opts.get("p2c", 11)
    issued = set()
    def issue_step(x): return max(x - OAH, P2C) if x >= 16 else x - OAH
    for g in range(32):
        sl, st = divmod(g, 16)
        if g == 9:
            a.wait_vm("d15"); a("s_barrier")
        if g == P2C - 2:
            a.vm(f"buffer_load_dwordx2 v[2:3], v{VPL}, {sr(S_WS,4)}, s{S_KB} offen sc1", "pl")
        if g == P2C: poll("0", 0, VPL)
        if g == 16:
            qsave = list(a.q); stamp("mm1"); a.q = qsave
        if g == 17: side = red_send(0)
        if g == 19:
            assert not side
            a.wait_lds("rw"); a("s_barrier"); side = red_recv(0)
        if g == 27:
            assert not side
            a("s_barrier")
        a.wait_vm(f"o{g}")
        if g < 31: rebase(g + 1)
        a.wait_lds(*[f"w{g%2}_{nb}" for nb in range(4)])
        for nb in range(4):
            for tb in range(2):
                d = vr(ac(sl, nb, tb), 4)
                a(f"v_mfma_f32_16x16x32_bf16 {d}, {vr(WFR+16*(g%2)+4*nb,4)}, {vr(ofr(g)+4*tb,4)}, {d if st else '0'}")
                if g < 31: rdWo(g + 1, nb, tb)
                for _ in range(2):
                    if side: emit(side.pop(0))
            if nb in (1, 3):
                due = [x for x in range(OPRE, 32) if x not in issued and issue_step(x) <= g]
                if due:
                    o_load(due[0]); issued.add(due[0])
    stamp(10)
    a("s_nop 7")
    for x in red_send(1): emit(x)
    a.wait_lds_all()
    a("s_barrier")
    for x in red_recv(1): emit(x)
    if stamps:
        a("s_waitcnt vmcnt(0)")
        stamp(11)
        a(f"""
        s_lshl_b32 s{S_T0}, s2, 3
        s_add_u32 s{S_T0}, s{S_T0}, s{S_WID}
        s_lshl_b32 s{S_T0}, s{S_T0}, 6
        s_add_u32 s{S_T0}, s{S_T0}, {WS_STAMP}
        v_mov_b32 v7, 0
        """)
        for i in range(16): a(f"v_mov_b32 v{8+i}, s{4+i}")
        a(f"""
        s_mov_b64 exec, 1
        buffer_store_dwordx4 v[8:11], v7, {sr(S_WS,4)}, s{S_T0} offen
        buffer_store_dwordx4 v[12:15], v7, {sr(S_WS,4)}, s{S_T0} offen offset:16
        buffer_store_dwordx4 v[16:19], v7, {sr(S_WS,4)}, s{S_T0} offen offset:32
        buffer_store_dwordx4 v[20:23], v7, {sr(S_WS,4)}, s{S_T0} offen offset:48
        s_mov_b64 exec, -1
        """)
    a(f"""
    s_cmp_lg_u32 s{S_WID}, 0
    s_cbranch_scc1 L_end
    v_mov_b32 v4, 1
    v_mov_b32 v7, 0
    s_mov_b64 exec, 1
    buffer_atomic_add v4, v7, {sr(S_DBG,4)}, 0 offen sc0
    s_waitcnt vmcnt(0)
    v_readfirstlane_b32 s{S_T0}, v4
    s_cmp_lg_u32 s{S_T0}, 255
    s_cbranch_scc1 L_end
    v_mov_b32 v4, s{S_NON}
    s_mov_b32 s{S_T1}, {WS_FLAG}
    buffer_store_dword v4, v7, {sr(S_WS,4)}, s{S_T1} offen sc1
    L_end:
    s_endpgm
    """)
    for U, O, Ls, Q in (("A", OA, LA, QA), ("B", OB, LB, QB)):
        S = 64; P = 112; K2 = 120; V2 = 160; M = 168; NB = 169; AK = 170; AT = 171
        if U == "A":
            S = SS[0]; P = PP[0]; K2 = KF; V2 = VF; M = SS[1]; NB = M + 1; AK = M + 2; AT = M + 3
        a(f"""
        L_slow{U}:
        v_and_b32 v{AK}, 0x33, v0
        v_bfe_u32 v{AT}, v0, 2, 1
        v_lshl_or_b32 v{AK}, v{AT}, 3, v{AK}
        v_bfe_u32 v{AT}, v0, 3, 1
        v_lshl_or_b32 v{AK}, v{AT}, 2, v{AK}
        v_lshlrev_b32 v{AK}, 4, v{AK}
        v_mov_b32 v{M}, 0xff800000
        s_mov_b32 s{S_U0}, 0
        L_sp{U}:
        s_mov_b32 s{S_U1}, 0
        s_cmp_eq_u32 s{S_C}, 0
        s_cbranch_scc0 L_st{U}
        s_sub_u32 s{S_U1}, 8, s{S_QB}
        L_st{U}:
        s_add_u32 s{S_U2}, s{S_U1}, s{S_QB}
        s_lshl_b32 s{S_U2}, s{S_U2}, 12
        s_add_u32 s{S_U2}, s{S_U2}, s{S_KVB}
        s_sub_u32 s{S_U2}, s{S_U2}, 0x8000
        buffer_load_dwordx4 {vr(K2,4)}, v{AK}, {sr(S_WS,4)}, s{S_U2} offen sc1
        buffer_load_dwordx4 {vr(K2+4,4)}, v{AK}, {sr(S_WS,4)}, s{S_U2} offen offset:1024 sc1
        buffer_load_dwordx4 {vr(V2,4)}, v{VL}, {sr(S_WS,4)}, s{S_U2} offen offset:2048 sc1
        buffer_load_dwordx4 {vr(V2+4,4)}, v{VL}, {sr(S_WS,4)}, s{S_U2} offen offset:3072 sc1
        s_waitcnt vmcnt(0)
        s_cmp_eq_u32 s{S_U1}, 0
        s_cbranch_scc1 L_sf{U}
        s_cmp_eq_u32 s{S_U1}, 8
        s_cbranch_scc1 L_sd{U}
        v_mfma_f32_32x32x16_bf16 {vr(S,16)}, {vr(K2,4)}, {vr(Q,4)}, 0
        s_branch L_sj{U}
        L_sf{U}:
        v_mfma_f32_32x32x16_bf16 {vr(S,16)}, {vr(K2,4)}, {vr(Q,4)}, {vr(BF,16)}
        s_branch L_sj{U}
        L_sd{U}:
        v_mfma_f32_32x32x16_bf16 {vr(S,16)}, {vr(K2,4)}, {vr(Q,4)}, {vr(BD,16)}
        L_sj{U}:
        v_mfma_f32_32x32x16_bf16 {vr(S,16)}, {vr(K2+4,4)}, {vr(Q+4,4)}, {vr(S,16)}
        s_nop 7
        s_nop 7
        s_cmp_eq_u32 s{S_U0}, 0
        s_cbranch_scc0 L_s2{U}
        """)
        for r in range(16): a(f"v_max_f32 v{M}, v{M}, v{S+r}")
        a(f"s_branch L_sn{U}")
        a(f"L_s2{U}:")
        for r in range(16): a(f"v_sub_f32 v{S+r}, v{S+r}, v{M}")
        for r in range(16): a(f"v_exp_f32 v{S+r}, v{S+r}")
        a("s_nop 0")
        for j in range(8): a(f"v_cvt_pk_bf16_f32 v{P+j}, v{S+2*j}, v{S+2*j+1}")
        a("s_nop 1")
        for f in range(2):
            a(f"v_mfma_f32_32x32x16_bf16 {vr(O,16)}, {vr(V2+4*f,4)}, {vr(P+4*f,4)}, {vr(O,16)}")
        for f in range(2):
            a(f"v_mfma_f32_16x16x32_bf16 {vr(Ls,4)}, {vr(ON,4)}, {vr(P+4*f,4)}, {vr(Ls,4)}")
        a(f"""
        s_nop 7
        s_nop 7
        L_sn{U}:
        s_add_u32 s{S_U1}, s{S_U1}, 1
        s_cmp_le_u32 s{S_U1}, 8
        s_cbranch_scc1 L_st{U}
        s_cmp_eq_u32 s{S_U0}, 0
        s_cbranch_scc0 L_sx{U}
        v_mov_b32 v{NB}, v{M}
        s_nop 1
        v_permlane32_swap_b32 v{NB}, v{M}
        s_nop 1
        v_max_f32 v{M}, v{M}, v{NB}
        """)
        for r in range(16): a(f"v_mov_b32 v{O+r}, 0")
        for r in range(4): a(f"v_mov_b32 v{Ls+r}, 0")
        a(f"""
        s_mov_b32 s{S_U0}, 1
        s_branch L_sp{U}
        L_sx{U}:
        s_setpc_b64 s[{S_RET}:{S_RET+1}]
        """)
    a("L_codeend:")
    hdr = open("concat_heads__sliding_block__sliding_block__prompt.s.ref").read().split("; Override launch")[0]
    head = hdr + f"""; @launch grid=(256,1,1) block=(512,1,1) lds={LDS_BYTES}
.amdgcn_target "amdgcn-amd-amdhsa--gfx950"
.text
.globl {name}
.p2align 8
.type {name},@function
{name}:
"""
    tail = f"""
.section .rodata,"a"
.p2align 6
.amdhsa_kernel {name}
  .amdhsa_next_free_vgpr 256
  .amdhsa_next_free_sgpr 102
  .amdhsa_accum_offset 256
  .amdhsa_group_segment_fixed_size 0
  .amdhsa_kernarg_size 72
  .amdhsa_user_sgpr_count 2
  .amdhsa_user_sgpr_kernarg_segment_ptr 1
  .amdhsa_system_sgpr_workgroup_id_x 1
.end_amdhsa_kernel
"""
    def relayout(t):
        if not opts.get("lfirst", 1): return t
        i0 = t.index("L_loader:\n"); i1 = t.index("L_attn:\n")
        blk = t[i0:i1]
        t = t[:i0] + t[i1:]
        br = f"    s_cmp_ge_u32 s{S_WID}, 4\n    s_cbranch_scc1 L_loader\n"
        assert br in t
        t = t.replace(br, f"    s_cmp_lt_u32 s{S_WID}, 4\n    s_cbranch_scc1 L_compute\n" + blk + "    s_branch L_attn\nL_compute:\n")
        return t.replace("    s_branch L_attn\nL_attn:\n", "L_attn:\n")
    return head + relayout(a.text()).replace("CODE_END_BYTES", "(L_codeend - L_pcref)") + tail

if __name__ == "__main__":
    stamps = "--stamps" in sys.argv
    opts = {}
    for x in sys.argv[2:]:
        if "=" in x:
            k, v = x.split("="); opts[k] = int(v)
    open(sys.argv[1], "w").write(gen(stamps, opts=opts))
```

```python
import sys, struct

class Asm:
    def __init__(self):
        self.l = []
        self.q = []
        self.vq = []
    def __call__(self, s):
        for x in s.strip("\n").split("\n"):
            x = x.strip()
            if not x: continue
            self.l.append(x if x.endswith(":") else "    " + x)
    def text(self):
        return "\n".join(self.l) + "\n"
    def lds(self, s, tag):
        self(s); self.q.append(tag)
    def wait_lds(self, *tags):
        idx = [i for i, t in enumerate(self.q) if t in tags]
        if not idx: return
        last = max(idx); n = min(len(self.q) - 1 - last, 15)
        self(f"s_waitcnt lgkmcnt({n})")
        self.q = self.q[len(self.q)-n:] if n else []
    def wait_lds_all(self):
        self("s_waitcnt lgkmcnt(0)"); self.q = []
    def vm(self, s, tag):
        self(s); self.vq.append(tag)
    def wait_vm(self, *tags):
        idx = [i for i, t in enumerate(self.vq) if t in tags]
        if not idx: return
        last = max(idx); n = len(self.vq) - 1 - last
        assert n <= 63, n
        self(f"s_waitcnt vmcnt({n})")
        self.vq = self.vq[last+1:]
    def wait_vm_all(self):
        self("s_waitcnt vmcnt(0)"); self.vq = []

def vr(a, n): return f"v[{a}:{a+n-1}]"
def sr(a, n): return f"s[{a}:{a+n-1}]"
def f32bits(x): return struct.unpack("<I", struct.pack("<f", x))[0]
def L(s): return [x.strip() for x in s.strip().split("\n") if x.strip()]

WS_KV = 0
WS_O = 16 << 20
WS_FLAG = 24 << 20
WS_FKV = WS_FLAG + 4096
WS_FO = WS_FLAG + 65536
WS_STAMP = 25 << 20
WS_BYTES = 26 << 20
TAGX = 0x5bd1e995

A_SLOT = 32768; B_BASE = 3 * A_SLOT; B_SLOT = 12288
LDS_BYTES = 160 * 1024
R_V = 0; R_PREV = 32768; R_K = 98304; R_Q = 131072; R_RED = 65536
def wo_slot(st): return [R_V, R_K, R_Q, R_PREV][st // 4] + (st % 4) * 8192

S_X = 36; S_W = 40; S_WS = 44; S_WO = 48; S_OUT = 52; S_DBG = 56
S_P = 60; S_C = 61; S_HP = 62; S_WID = 63
S_T0 = 64; S_T1 = 65; S_T2 = 66; S_T3 = 67
S_ASL = 68; S_BSL = 69; S_KA = 70; S_KB = 71; S_CNT = 72
S_TH = 73; S_HH = 74; S_DA = 75; S_DB = 76
S_NON = 77; S_KVB = 78; S_OC = 79; S_OJ = 80; S_TAG = 81
S_LA = 82; S_LB = 83
S_M0 = 84; S_M1 = 86
S_QB = 88; S_OB = 89
S_RET = 90; S_CODE = 92
S_FO = 96; S_U0 = 97; S_U1 = 98; S_U2 = 99
S_LO = 34; S_HI = 35

QSCALE = 0.17677669529663687 * 1.4426950408889634
CODE_LINES = 512

def gen(stamps=False, name="concat_heads__sliding_block__sliding_block__prompt_kernel", opts=None):
    opts = opts or {}
    a = Asm()
    SN = ["start", "bar0", "main", "kv", "qend", "pub", "barA", "p1end", "barC", "p2end", "got", "barE", "mm1", "mm", "end", "ofl"]
    def stamp(i):
        if isinstance(i, str): i = SN.index(i)
        else: i = SN.index({0: "start", 1: "bar0", 2: "kv", 3: "barA", 4: "p1end", 5: "barC", 7: "p2end", 9: "barE", 10: "mm", 11: "end"}.get(i, "none")) if i not in (6, 8) else None
        if i is None: return
        if stamps:
            a(f"s_memtime s[100:101]" if opts.get("cyc") else f"s_memrealtime s[100:101]")
            a(f"s_waitcnt lgkmcnt(0)")
            a(f"s_mov_b32 s{4+i}, s100")
            a.q = []
    a(f"""
    s_cmp_ge_u32 s2, 256
    s_cbranch_scc1 L_end
    s_load_dwordx16 s[16:31], s[0:1], 0
    s_load_dwordx2 s[32:33], s[0:1], 64
    """)
    stamp(0)
    a(f"""
    v_lshrrev_b32 v1, 6, v0
    v_and_b32 v0, 63, v0
    s_and_b32 s{S_T0}, s2, 7
    v_readfirstlane_b32 s{S_WID}, v1
    s_lshr_b32 s{S_T1}, s2, 3
    s_lshr_b32 s{S_P}, s{S_T0}, 2
    s_and_b32 s{S_T2}, s{S_T0}, 3              ; hq
    s_lshr_b32 s{S_C}, s{S_T1}, 2              ; chunk
    s_and_b32 s{S_T3}, s{S_T1}, 3
    s_lshl_b32 s{S_HP}, s{S_T2}, 2
    s_add_u32 s{S_HP}, s{S_HP}, s{S_T3}
    s_lshr_b32 s{S_OC}, s{S_T1}, 4
    s_lshl_b32 s{S_T3}, s{S_T2}, 1
    s_add_u32 s{S_OC}, s{S_OC}, s{S_T3}
    s_and_b32 s{S_OJ}, s{S_T1}, 15
    s_and_b32 s{S_HH}, s{S_WID}, 1
    s_waitcnt lgkmcnt(0)
    s_cmp_eq_u32 s{S_P}, 0
    s_cselect_b32 s{S_X}, s16, s22
    s_cselect_b32 s{S_X+1}, s17, s23
    s_cselect_b32 s{S_W}, s18, s24
    s_cselect_b32 s{S_W+1}, s19, s25
    s_cselect_b32 s{S_WO}, s20, s26
    s_cselect_b32 s{S_WO+1}, s21, s27
    s_lshl_b32 s{S_T0}, s{S_C}, 19
    s_add_u32 s{S_X}, s{S_X}, s{S_T0}
    s_addc_u32 s{S_X+1}, s{S_X+1}, 0
    s_mov_b32 s{S_X+2}, 0x80000
    s_mov_b32 s{S_X+3}, 0x20000
    s_mov_b32 s{S_W+2}, 0x600000
    s_mov_b32 s{S_W+3}, 0x20000
    s_cmp_ge_u32 s{S_WID}, 4
    s_cbranch_scc1 L_loader
    """)
    def common_setup():
        a(f"""
        s_add_u32 s{S_T0}, s32, {WS_FLAG}
        s_addc_u32 s{S_T1}, s33, 0
        s_load_dword s{S_NON}, s[{S_T0}:{S_T1}], 0
        s_mov_b32 s{S_WS}, s32
        s_mov_b32 s{S_WS+1}, s33
        s_mov_b32 s{S_WS+2}, {WS_BYTES}
        s_mov_b32 s{S_WS+3}, 0x20000
        s_mov_b32 s{S_WO+2}, 0x200000
        s_mov_b32 s{S_WO+3}, 0x20000
        s_mov_b32 s{S_OUT}, s28
        s_mov_b32 s{S_OUT+1}, s29
        s_mov_b32 s{S_OUT+2}, 0x800000
        s_mov_b32 s{S_OUT+3}, 0x20000
        s_mov_b32 s{S_DBG}, s30
        s_mov_b32 s{S_DBG+1}, s31
        s_mov_b32 s{S_DBG+2}, 256
        s_mov_b32 s{S_DBG+3}, 0x20000
        s_lshl_b32 s{S_T3}, s{S_HP}, 1
        s_add_u32 s{S_T3}, s{S_T3}, s{S_HH}        ; head
        s_lshl_b32 s{S_T2}, s{S_P}, 5
        s_add_u32 s{S_T2}, s{S_T2}, s{S_T3}        ; p*32+head
        s_lshl_b32 s{S_T2}, s{S_T2}, 6
        s_lshl_b32 s{S_KVB}, s{S_C}, 3
        s_add_u32 s{S_T2}, s{S_T2}, s{S_KVB}
        s_lshl_b32 s{S_KVB}, s{S_T2}, 12
        s_lshl_b32 s{S_T2}, s{S_P}, 3
        s_add_u32 s{S_T2}, s{S_T2}, s{S_C}         ; p*8+c
        s_lshl_b32 s{S_OB}, s{S_T2}, 19
        s_lshl_b32 s{S_FO}, s{S_T3}, 10
        s_add_u32 s{S_OB}, s{S_OB}, s{S_FO}
        s_add_u32 s{S_OB}, s{S_OB}, {WS_O}
        s_lshl_b32 s{S_FO}, s{S_T2}, 11
        s_lshl_b32 s{S_T3}, s{S_T3}, 3
        s_add_u32 s{S_FO}, s{S_FO}, s{S_T3}
        s_add_u32 s{S_FO}, s{S_FO}, {WS_FO}
        s_mov_b32 s{S_LO}, {f32bits(2.0**-60)}
        s_mov_b32 s{S_HI}, {f32bits(2.0**60)}
        s_waitcnt lgkmcnt(0)
        s_add_u32 s{S_NON}, s{S_NON}, 1
        s_xor_b32 s{S_TAG}, s{S_NON}, {TAGX}
        """)
    BD = 88; BF = 136; ON = 184; VW = 188; VO = 189; VK = 190; VV = 191; CT = 192; VW2 = 195; VKP = 196; VVP = 197; VFL = 198
    QA = 8; QB = 16; OA = 24; OB = 40; LA = 56; LB = 60; KF = 80; VF = 104; SS = [224, 240]; PP = [128, 152]
    VLS = 194
    def attn_consts0(vl):
        return L(f"""
        v_and_b32 v{CT}, 0x33, v0
        v_bfe_u32 v{CT+1}, v0, 2, 1
        v_lshl_or_b32 v{CT}, v{CT+1}, 3, v{CT}
        v_bfe_u32 v{CT+1}, v0, 3, 1
        v_lshl_or_b32 v{CT}, v{CT+1}, 2, v{CT}
        s_lshl_b32 s{S_T0}, s{S_HH}, 14
        v_lshlrev_b32 v{VK}, 4, v{CT}
        v_add_u32 v{VV}, s{S_T0}, v{vl}
        s_add_u32 s{S_T0}, s{S_T0}, {R_K}
        v_add_u32 v{VK}, s{S_T0}, v{VK}
        s_lshl_b32 s{S_T0}, s{S_HH}, 14
        s_add_u32 s{S_T1}, s{S_T0}, {(R_PREV - R_K) & 0xffffffff:#x}
        v_add_u32 v{VKP}, s{S_T1}, v{VK}
        s_add_u32 s{S_T1}, s{S_T0}, {R_PREV + 2048}
        v_add_u32 v{VVP}, s{S_T1}, v{VV}
        s_add_u32 s{S_T1}, s{S_T0}, {R_Q}
        v_mov_b32 v{VFL}, s{S_T1}
        v_lshrrev_b32 v{CT}, 2, v0
        v_lshrrev_b32 v{CT+1}, 4, v0
        v_xor_b32 v{CT}, v{CT}, v{CT+1}
        v_and_b32 v{CT}, 1, v{CT}
        v_subrev_u32 v{CT}, 1, v{CT}
        v_and_b32 v{ON}, 0x3f803f80, v{CT}
        v_mov_b32 v{ON+1}, v{ON}
        v_mov_b32 v{ON+2}, v{ON}
        v_mov_b32 v{ON+3}, v{ON}
        """)
    def attn_consts1():
        c = L(f"""
        v_and_b32 v{CT}, 31, v0
        v_lshrrev_b32 v{BD}, 5, v0
        v_lshlrev_b32 v{BD}, 3, v{BD}
        v_sub_u32 v{CT}, v{CT}, v{BD}
        s_mov_b32 s{S_T1}, 0xff800000
        """)
        for r in range(16):
            f, u_, e = r >> 3, (r >> 2) & 1, r & 3
            kc = 16*f + 4*u_ + e
            c += [f"v_subrev_u32 v{BD+r}, {kc}, v{CT}", f"v_ashrrev_i32 v{BD+r}, 31, v{BD+r}", f"v_and_b32 v{BD+r}, s{S_T1}, v{BD+r}"]
        return c
    def attn_consts2():
        c = [f"s_mov_b32 s{S_T1}, 0xff800000"]
        c += [f"v_xor_b32 v{BF+r}, s{S_T1}, v{BD+r}" for r in range(16)]
        c += L(f"""
        v_lshrrev_b32 v{CT}, 3, v0
        v_and_b32 v{VW}, 7, v0
        v_bfe_u32 v{VO}, v0, 4, 2
        v_lshlrev_b32 v{VO}, 1, v{VO}
        v_xor_b32 v{VW}, v{VW}, v{VO}
        s_lshr_b32 s{S_T0}, s{S_WID}, 2
        s_lshl_b32 s{S_T0}, s{S_T0}, 20
        s_and_b32 s{S_T1}, s{S_WID}, 3
        s_lshl_b32 s{S_T1}, s{S_T1}, 14
        s_add_u32 s{S_T0}, s{S_T0}, s{S_T1}
        s_lshl_b32 s{S_T1}, s{S_OJ}, 7
        s_add_u32 s{S_T0}, s{S_T0}, s{S_T1}
        v_lshlrev_b32 v{CT}, 11, v{CT}
        v_add_u32 v{CT}, s{S_T0}, v{CT}
        v_lshl_add_u32 v{VW}, v{VW}, 4, v{CT}
        v_xor_b32 v{VW2}, 0x100000, v{VW}
        s_lshl_b32 s{S_LA}, s{S_WID}, 10
        v_and_b32 v{VO}, 15, v0
        v_lshrrev_b32 v{CT}, 5, v0
        v_lshl_add_u32 v{VO}, v{CT}, 4, v{VO}
        v_lshlrev_b32 v{VO}, 4, v{VO}
        v_bfe_u32 v{CT}, v0, 4, 1
        v_lshl_add_u32 v{VO}, v{CT}, 15, v{VO}
        """)
        return c
    D = opts.get("D", 3); MB = 16 - D
    KVS = B_BASE; QS = B_BASE + 32768; A4 = KVS
    qorder = [15, 14, 13] + list(range(12, MB - 1, -1))
    qorder = qorder[:D]
    aslot_q = {}
    for i, b in enumerate(qorder):
        aslot_q[b] = (b % 3) * A_SLOT if b >= 13 else [A4, 0, 2 * A_SLOT, A_SLOT][(i - 3) % 4]
    nst = 32 + D
    items = []
    for u in range(32):
        b, kk = divmod(u, 2)
        if kk == 0:
            for hf in range(2): items.append(dict(need=u, kind="A", blk=b, hf=hf, lds=(b % 3)*A_SLOT + hf*16384, size=16384,
                                                  free=(u + 2) if b < 13 or b not in qorder else 32 + qorder.index(b) + 2))
        if u <= 2*MB: items.append(dict(need=u, kind="B", u=u, lds=B_BASE + (u % 5)*B_SLOT, size=B_SLOT, free=u + 1))
        else: items.append(dict(need=u, kind="KV", u=u, lds=None, size=8192, free=u + 1))
    for i, b in enumerate(qorder):
        if b < 13:
            for hf in range(2): items.append(dict(need=32 + i, kind="A", blk=b, hf=hf, lds=aslot_q[b] + hf*16384, size=16384, free=32 + i + 2))
        for kk in range(2): items.append(dict(need=32 + i, kind="Q", u=2*b + kk, qi=(i, kk), lds=None, size=4096, free=32 + i + 2))
    def after_of(n, lo, size):
        r = -1
        for pv_ in items[:n]:
            if pv_["lds"] < lo + size and lo < pv_["lds"] + pv_["size"]: r = max(r, pv_["free"])
        return r
    for n, it in enumerate(items):
        if it["lds"] is None:
            lo_lim = B_BASE if it["kind"] == "KV" else QS
            cands = range(lo_lim, LDS_BYTES - 8192 - it["size"] + 1, 4096)
            it["lds"] = min(cands, key=lambda lo: (max(after_of(n, lo, it["size"]), it["need"] - 5), lo))
        it["after"] = after_of(n, it["lds"], it["size"])
        assert it["after"] < it["need"], it
        it["n"] = {"A": 4, "B": 3, "KV": 2, "Q": 1}[it["kind"]]
    def kvslot(u): return [it["lds"] for it in items if it["kind"] == "KV" and it["u"] == u][0]
    def qslot(i, kk): return [it["lds"] for it in items if it["kind"] == "Q" and it["qi"] == (i, kk)][0]
    VA = 1; VB = 3; VT = 5
    XF = 8; WF = 40; ACC = 64
    SEG = [1, 1, 2, 2, 0, 0]
    def acc(rb, col): return ACC + (rb * 6 + col) * 4
    def xf(rb): return XF + 4 * rb
    def wf(sl): return WF + 4 * sl
    a(f"""
    s_lshr_b32 s{S_TH}, s{S_WID}, 1
    v_and_b32 v{VT}, 15, v0
    v_lshrrev_b32 v{VT+1}, 4, v0
    v_bfe_u32 v{VT+2}, v0, 1, 3
    v_xor_b32 v{VT+2}, v{VT+2}, v{VT+1}
    v_lshlrev_b32 v{VT+2}, 4, v{VT+2}
    v_lshl_add_u32 v{VT+2}, v{VT}, 7, v{VT+2}
    s_lshl_b32 s{S_T0}, s{S_TH}, 14
    v_add_u32 v{VA}, s{S_T0}, v{VT+2}
    v_xor_b32 v{VA+1}, 64, v{VA}
    v_bfe_u32 v{VT}, v0, 2, 2
    v_lshlrev_b32 v{VB}, 7, v{VT}
    v_and_b32 v{VT}, 3, v0
    v_lshl_add_u32 v{VB}, v{VT}, 3, v{VB}
    v_mul_u32_u24 v{VT}, 3072, v{VT+1}
    v_add_u32 v{VB}, v{VB}, v{VT}
    v_bfe_u32 v{VT}, v0, 3, 2
    s_lshl_b32 s{S_T0}, s{S_HH}, 1
    v_xor_b32 v{VT}, s{S_T0}, v{VT}
    v_lshl_add_u32 v{VB}, v{VT}, 5, v{VB}
    v_add_u32 v{VB}, {B_BASE}, v{VB}
    v_xor_b32 v{VB+1}, 32, v{VB}
    """)
    LOOK = opts.get("look", 4)
    a(f"""
    s_and_b32 s{S_T0}, s{S_HP}, 3
    s_lshl_b32 s{S_T0}, s{S_T0}, 6
    s_lshl_b32 s{S_T1}, s{S_WID}, 4
    s_add_u32 s{S_T0}, s{S_T0}, s{S_T1}
    s_lshl_b32 s{S_T0}, s{S_T0}, 11
    v_lshlrev_b32 v5, 11, v0
    v_add_u32 v5, s{S_T0}, v5
    v_mov_b32 v11, 0x7f000000
    v_cmp_lt_u32 vcc, 15, v0
    v_and_b32 v9, 1, v0
    v_lshrrev_b32 v10, 1, v0
    v_cndmask_b32 v5, v5, v11, vcc
    s_lshl_b32 s{S_T0}, s{S_C}, 3
    s_lshl_b32 s{S_T1}, s{S_WID}, 1
    s_add_u32 s{S_T0}, s{S_T0}, s{S_T1}
    v_add_u32 v6, s{S_T0}, v9
    v_mul_u32_u24 v6, 6144, v6
    v_lshl_add_u32 v6, v10, 11, v6
    s_lshl_b32 s{S_T0}, s{S_HP}, 7
    v_add_u32 v6, s{S_T0}, v6
    v_cmp_lt_u32 vcc, 5, v0
    s_movk_i32 s{S_KA}, {128*LOOK}
    s_mov_b32 s{S_KB}, {64*6144*LOOK}
    v_cndmask_b32 v6, v6, v11, vcc
    s_getpc_b64 s[{S_CODE}:{S_CODE+1}]
    s_mov_b32 s{S_CODE+2}, CODE_END_BYTES
    s_mov_b32 s{S_CODE+3}, 0x20000
    s_lshr_b32 s{S_T0}, s2, 3
    s_and_b32 s{S_T0}, s{S_T0}, 7
    s_lshl_b32 s{S_T0}, s{S_T0}, 2
    s_add_u32 s{S_T0}, s{S_T0}, s{S_WID}
    s_mul_i32 s{S_T0}, s{S_T0}, {CODE_LINES // 32 * 128}
    v_lshlrev_b32 v12, 7, v0
    v_add_u32 v12, s{S_T0}, v12
    v_cmp_lt_u32 vcc, 15, v0
    s_nop 1
    v_cndmask_b32 v12, v12, v11, vcc
    """)
    a(f"""
    s_and_b32 s{S_T0}, s{S_OC}, 1
    s_lshl_b32 s{S_T0}, s{S_T0}, 9
    s_mul_i32 s{S_T1}, s{S_WID}, 10
    s_add_u32 s{S_T0}, s{S_T0}, s{S_T1}
    s_lshl_b32 s{S_T0}, s{S_T0}, 11
    s_lshl_b32 s{S_T1}, s{S_OJ}, 7
    s_add_u32 s{S_QB}, s{S_T0}, s{S_T1}
    v_cmp_lt_u32 vcc, 9, v0
    v_lshlrev_b32 v0, 11, v0
    s_nop 0
    v_cndmask_b32 v0, v0, v11, vcc
    """)
    a("L_pcref:")
    common_setup()
    for r in range(ACC, 256):
        a(f"v_mov_b32 v{r}, 0")
    a(f"""
    s_mov_b32 s{S_ASL}, 0
    s_mov_b32 s{S_BSL}, 0
    s_mov_b32 s{S_CNT}, {MB}
    s_barrier
    """)
    stamp(1)
    VTOUCH = opts.get("vtouch", 0)
    for b in range(3, LOOK if VTOUCH else 0):
        a(f"s_mov_b32 s{S_T0}, {64*6144*b}")
        a(f"buffer_load_dword v7, v6, {sr(S_W,4)}, s{S_T0} offen")
        a(f"buffer_load_dword v7, v5, {sr(S_X,4)}, 0 offen offset:{128*b}")
    if opts.get("codetouch", 1):
        a(f"buffer_load_dword v7, v12, {sr(S_CODE,4)}, 0 offen")
    EARLY = opts.get("eep", 1)
    if EARLY:
        a(f"""
        s_cmp_lg_u32 s{S_WID}, 0
        s_cbranch_scc1 L_noadd
        v_mov_b32 v5, 1
        v_mov_b32 v6, 0
        s_mov_b64 exec, 1
        buffer_atomic_add v5, v6, {sr(S_DBG,4)}, 0 offen sc0
        s_mov_b64 exec, -1
        L_noadd:
        """)
    def rdX(rb, va, off=0):
        a.lds(f"ds_read_b128 {vr(xf(rb),4)}, v{va} offset:{2048*rb+off}", f"x{rb}")
    def rdW(sl, col, half, off=0):
        a.lds(f"ds_read_b64_tr_b16 {vr(wf(sl)+2*half,2)}, v{VB+(col&1)} offset:{off+SEG[col]*1024+half*512}", f"w{sl}")
    def mf(rb, col, sl):
        d = vr(acc(rb, col), 4)
        if col in (2, 3):
            a(f"v_mfma_f32_16x16x32_bf16 {d}, {vr(xf(rb),4)}, {vr(wf(sl),4)}, {d}")
        else:
            a(f"v_mfma_f32_16x16x32_bf16 {d}, {vr(wf(sl),4)}, {vr(xf(rb),4)}, {d}")
    for rb in range(8):
        if rb < 3:
            rdW(rb, rb, 0); rdW(rb, rb, 1)
        rdX(rb, VA)
    q0 = list(a.q)
    a("L_cloop:")
    for kk in range(2):
        fill = {}
        for i, (c, h) in enumerate([(c, h) for c in (3, 4, 5) for h in (0, 1)]):
            fill[i] = (lambda c=c, h=h: rdW(c, c, h))
        for i, x in enumerate(L(f"""
            s_add_u32 s{S_T0}, s{S_BSL}, {B_SLOT}
            s_cmp_eq_u32 s{S_T0}, {5*B_SLOT}
            s_cselect_b32 s{S_T0}, 0, s{S_T0}
            s_sub_u32 s{S_DB}, s{S_T0}, s{S_BSL}
            s_mov_b32 s{S_BSL}, s{S_T0}
            """)): fill[6 + i] = (lambda x=x: a(x))
        fill[12] = lambda: a(f"v_add_u32 v{VB}, s{S_DB}, v{VB}")
        fill[13] = lambda: a(f"v_add_u32 v{VB+1}, s{S_DB}, v{VB+1}")
        if kk == 1:
            for i, x in enumerate(L(f"""
                s_add_u32 s{S_T0}, s{S_ASL}, {A_SLOT}
                s_cmp_eq_u32 s{S_T0}, {3*A_SLOT}
                s_cselect_b32 s{S_T0}, 0, s{S_T0}
                s_sub_u32 s{S_DA}, s{S_T0}, s{S_ASL}
                s_mov_b32 s{S_ASL}, s{S_T0}
                v_add_u32 v{VA}, s{S_DA}, v{VA}
                v_add_u32 v{VA+1}, s{S_DA}, v{VA+1}
                """)): fill[14 + i] = (lambda x=x: a(x))
        m = 0
        for rb in range(8):
            if rb == 0: a.wait_lds("w0", "w1", "w2", "x3")
            if rb == 4: a.wait_lds("x7")
            for c in range(3):
                mf(rb, c, c)
                if m in fill: fill[m]()
                m += 1
        a.wait_lds_all()
        if not opts.get("x_nobar"): a("s_barrier")
        pend = [(c, h) for c in (0, 1, 2) for h in (0, 1)]
        m = 0
        for rb in range(8):
            for c in range(3, 6):
                mf(rb, c, c)
                if c == 5: rdX(rb, VA + (kk ^ 1))
                elif pend:
                    cc, h = pend.pop(0); rdW(cc, cc, h)
                elif kk == 1 and m == 18: a(f"s_sub_u32 s{S_CNT}, s{S_CNT}, 1")
                elif kk == 1 and m == 19: a(f"s_cmp_lg_u32 s{S_CNT}, 0")
                m += 1
        if kk == 0: qmid = list(a.q)
        else: assert a.q == qmid
    assert qmid == q0, (qmid, q0)
    a("s_cbranch_scc1 L_cloop")
    qsave = list(a.q); stamp("main"); a.q = qsave
    VAH = 56; VLN = 58; VG2 = 59; VQ = 60
    u0 = 2 * MB
    if EARLY:
        assert not VTOUCH
        a(f"""
        s_cmp_lg_u32 s{S_WID}, 0
        s_cbranch_scc1 L_noep
        s_waitcnt vmcnt(0)
        v_readfirstlane_b32 s{S_T0}, v5
        s_cmp_lg_u32 s{S_T0}, 255
        s_cbranch_scc1 L_noep
        v_mov_b32 v5, s{S_NON}
        s_mov_b32 s{S_T1}, {WS_FLAG}
        s_mov_b64 exec, 1
        buffer_store_dword v5, v6, {sr(S_WS,4)}, s{S_T1} offen sc1
        s_mov_b64 exec, -1
        L_noep:
        """)
    a(f"""
    v_mbcnt_lo_u32_b32 v0, -1, 0
    v_mbcnt_hi_u32_b32 v0, -1, v0
    v_add_u32 v{VA}, {(-(MB % 3)*A_SLOT) & 0xffffffff:#x}, v{VA}
    v_add_u32 v{VA+1}, {(-(MB % 3)*A_SLOT) & 0xffffffff:#x}, v{VA+1}
    v_add_u32 v{VB}, {(-(u0 % 5)*B_SLOT) & 0xffffffff:#x}, v{VB}
    v_add_u32 v{VB+1}, {(-(u0 % 5)*B_SLOT) & 0xffffffff:#x}, v{VB+1}
    """)
    def rdXs(rb, slot, kk):
        if slot < 65536: rdX(rb, VA + kk, slot)
        else: rdX(rb, VAH + kk, slot - 65536)
    def rdWkv(sl, col, half, u):
        a.lds(f"ds_read_b64_tr_b16 {vr(wf(sl)+2*half,2)}, v{VB+(col&1)} offset:{kvslot(u)-B_BASE+(col>>1)*1024+half*512}", f"w{sl}")
    def rdWq(sl, j, half, i, kk):
        a.lds(f"ds_read_b64_tr_b16 {vr(wf(sl)+2*half,2)}, v{VQ+j} offset:{qslot(i,kk)-B_BASE+half*512}", f"w{sl}")
    for u in range(u0, 32):
        blk, kk = divmod(u, 2)
        pend = [(3, 0), (3, 1)] if u == u0 else [(2, 0), (2, 1), (3, 0), (3, 1)]
        for rb in range(8):
            if rb == 0: a.wait_lds("w0", "w1", "x3")
            if rb == 4: a.wait_lds("x7")
            for c in range(2):
                mf(rb, c, c)
                if pend:
                    cc, h = pend.pop(0)
                    if u == u0: rdW(cc, cc, h, (u0 % 5) * B_SLOT)
                    else: rdWkv(cc, cc, h, u)
            if u == u0 and rb == 2:
                a(f"""
                v_add_u32 v{VAH}, 0x10000, v{VA}
                v_add_u32 v{VAH+1}, 0x10000, v{VA+1}
                v_lshrrev_b32 v{VG2}, 4, v0
                v_lshlrev_b32 v{VG2}, 10, v{VG2}
                v_sub_u32 v{VB}, v{VB}, v{VG2}
                v_sub_u32 v{VB+1}, v{VB+1}, v{VG2}
                v_sub_u32 v{VQ}, v{VB}, v{VG2}
                v_sub_u32 v{VQ+1}, v{VB+1}, v{VG2}
                v_lshlrev_b32 v{VLN}, 4, v0
                """)
            if kk == 0 and rb == 5 and blk + LOOK < 16 and VTOUCH:
                a(f"buffer_load_dword v7, v6, {sr(S_W,4)}, s{S_KB} offen")
                a(f"s_add_u32 s{S_KB}, s{S_KB}, {64*6144}")
            if kk == 0 and rb == 6 and blk + LOOK < 16 and VTOUCH:
                a(f"buffer_load_dword v7, v5, {sr(S_X,4)}, s{S_KA} offen")
                a(f"s_add_u32 s{S_KA}, s{S_KA}, 128")
        a.wait_lds_all()
        a("s_barrier")
        if u == 31: break
        for rb in range(8):
            for c in (2, 3):
                mf(rb, c, c)
                if rb < 4 and c == 2: rdWkv(rb >> 1, rb >> 1, rb & 1, u + 1)
            rdXs(rb, (((u + 1) // 2) % 3) * A_SLOT, (u + 1) % 2)
    S_G = S_ASL; S_LK = S_KB
    KVSC = ["", " sc1", " nt", " sc0"][opts.get("kvsc", 1)]
    def pack(rd, ra, rb_):
        return [f"v_cvt_pk_bf16_f32 v{rd}, v{ra}, v{ra+1}", f"v_cvt_pk_bf16_f32 v{rd+1}, v{ra+2}, v{ra+3}",
                f"v_cvt_pk_bf16_f32 v{rd+2}, v{rb_}, v{rb_+1}", f"v_cvt_pk_bf16_f32 v{rd+3}, v{rb_+2}, v{rb_+3}"]
    def swap(ra):
        return [f"v_permlane16_swap_b32 v{ra}, v{ra+2}", f"v_permlane16_swap_b32 v{ra+1}, v{ra+3}"]
    frs = []
    for tb in range(4):
        frs.append((acc(2*tb, 0), acc(2*tb, 0), acc(2*tb+1, 0), tb, 0))
        frs.append((acc(2*tb, 1), acc(2*tb, 1), acc(2*tb+1, 1), tb, 1))
        frs.append((acc(2*tb, 2), acc(2*tb, 2), acc(2*tb, 3), tb, 2))
        frs.append((acc(2*tb, 3), acc(2*tb+1, 2), acc(2*tb+1, 3), tb, 3))
    C_LDS = LDS_BYTES - 8192
    assert all(it["lds"] + it["size"] <= C_LDS for it in items if it["free"] > 31)
    assert D == 3
    qfr = [(acc(2*tb, 4+f), acc(2*tb+1, 4+f), tb, f) for tb in range(4) for f in range(2)]
    order = [i for i in range(16) if frs[i][4] < 2] + [i for i in range(16) if frs[i][4] >= 2]
    NSQ = opts.get("nsq", 12)
    stores = []
    def kv_store(vl):
        rd, _, _, tb, sl = frs[stores.pop(0)]
        a(f"s_add_u32 s{S_T3}, s{S_G}, {tb*4096}")
        a(f"buffer_store_dwordx4 {vr(rd,4)}, v{vl}, {sr(S_WS,4)}, s{S_T3} offen offset:{sl*1024}{KVSC}")
    def publish(vt):
        a(f"""
        s_lshl_b32 s{S_U0}, s{S_P}, 7
        s_lshl_b32 s{S_U1}, s{S_HP}, 3
        s_add_u32 s{S_U0}, s{S_U0}, s{S_U1}
        s_add_u32 s{S_U0}, s{S_U0}, s{S_C}
        s_lshl_b32 s{S_U0}, s{S_U0}, 7
        s_lshl_b32 s{S_U1}, s{S_WID}, 3
        s_add_u32 s{S_U0}, s{S_U0}, s{S_U1}
        s_add_u32 s{S_U0}, s{S_U0}, {WS_FKV}
        v_mov_b32 v{vt}, s{S_NON}
        v_mov_b32 v{vt+1}, s{S_TAG}
        v_mov_b32 v{vt+2}, 0
        s_sub_u32 s{S_KA}, s{S_U0}, 128
        s_waitcnt vmcnt(0)
        s_mov_b64 exec, 1
        buffer_store_dwordx2 v[{vt}:{vt+1}], v{vt+2}, {sr(S_WS,4)}, s{S_U0} offen sc1
        s_mov_b64 exec, -1
        s_nop 3
        """)
        qs = list(a.q); stamp("pub"); a.q = qs
    def qpass(th):
        side = L(f"""
        s_add_u32 s{S_G}, s{S_KVB}, {th << 14}
        s_lshl_b32 s{S_LK}, s{S_HH}, 14
        s_add_u32 s{S_LK}, s{S_LK}, {th << 13}
        v_add_u32 v{VG2}, s{S_LK}, v{VLN}
        v_add_u32 v{VG2+3}, {R_K}, v{VG2}
        """)
        for n, i in enumerate(order + [None]):
            if n == 8: side.append(("vwait",))
            if i is not None: side += pack(frs[i][0], frs[i][1], frs[i][2])
            else: side += ["s_nop 1"]
            if n >= 1: side += swap(frs[order[n-1]][0]) + [("ready", order[n-1])]
        side += L(f"""
        s_mov_b32 s{S_M0}, {f32bits(QSCALE)}
        s_mov_b32 s{S_M0+1}, {f32bits(QSCALE)}
        v_add_u32 v{VG2+4}, {LDS_BYTES - 8192}, v{VLN}
        """) + attn_consts0(VLN) + attn_consts2()[17:]
        cread = [f"ds_read_b128 {vr((BD if i < 4 else BF) + 4*(i%4), 4)}, v{VG2+4} offset:{1024*i}" for i in range(8)]
        ready = set()
        stores[:] = list(order)
        done = [-16]
        def emit_side(n):
            while side and n > 0:
                x = side[0]
                if x == ("vwait",):
                    if done[0] < 4: return
                    side.pop(0); continue
                side.pop(0)
                if isinstance(x, tuple): ready.add(x[1])
                else: a(x); n -= 1
        nm = 32 * D
        st_first, st_mid, st_last = opts.get("st0", -6), opts.get("stm", 40), nm - opts.get("st1", 8)
        st_pub = opts.get("stp", 76)
        kw = order[:8]; vw = order[8:]
        def stage(lst):
            rd, _, _, tb, sl = frs[lst.pop(0)]
            a.lds(f"ds_write_b128 v{VG2 if sl >= 2 else VG2+3}, {vr(rd,4)} offset:{tb*2048+(sl&1)*1024}", "kw")
        def after_mfma(j, last):
            done[0] += 1
            d = done[0]
            emit_side(opts.get("spm", 2))
            nd = 16 - len(stores)
            if th == 1:
                if stores and stores[0] in ready and d >= st_first + (st_mid - st_first) * nd // 16: kv_store(VLN)
                if d == st_pub: publish(4)
            elif nd < NSQ and stores[0] in ready and d >= st_mid + (st_last - st_mid) * nd // NSQ: kv_store(VLN)
            if j == 1 and kw and kw[0] in ready: stage(kw)
            if j == 1 and last and vw and not kw: stage(vw)
            if j == 0 and last and cread and order[-1] in ready and not side: a.lds(cread.pop(0), "cr")
        for rb in range(8):
            for c in (2, 3):
                mf(rb, c, c)
                if rb < 4 and c == 2: rdWq(rb >> 1, rb >> 1, rb & 1, 0, 0)
                after_mfma(c - 2, False)
            rdXs(rb, aslot_q[qorder[0]], 0)
        qsave = list(a.q); stamp(2); a.q = qsave
        for i, b in enumerate(qorder):
            last = (i == D - 1)
            for kk in range(2):
                cur = (0, 1) if kk == 0 else (2, 3)
                if kk == 0: pend = [(2, 0, 0), (2, 0, 1), (3, 1, 0), (3, 1, 1)]
                else: pend = [] if last else [(0, 0, 0), (0, 0, 1), (1, 1, 0), (1, 1, 1)]
                if kk == 1 and not last: a("s_barrier")
                for rb in range(8):
                    if rb == 0: a.wait_lds(f"w{cur[0]}", f"w{cur[1]}", "x3")
                    if rb == 4: a.wait_lds("x7")
                    for j in range(2):
                        mf(rb, 4 + j, cur[j])
                        if pend:
                            sl, jj, h = pend.pop(0)
                            rdWq(sl, jj, h, i, 1) if kk == 0 else rdWq(sl, jj, h, i + 1, 0)
                        after_mfma(j, last)
                    if kk == 0: rdXs(rb, aslot_q[b], 1)
                    elif not last: rdXs(rb, aslot_q[qorder[i+1]], 0)
                    if last and kk == 1 and rb >= 3 and rb % 2 == 1:
                        a("s_nop 1")
                        for f in range(2):
                            ra, rb_, _, _ = qfr[(rb - 3) + f]
                            for r in (ra, ra+2, rb_, rb_+2):
                                a(f"v_pk_mul_f32 v[{r}:{r+1}], v[{r}:{r+1}], s[{S_M0}:{S_M0+1}]")
                            for x in pack(ra, ra, rb_): a(x)
                        a("s_nop 0")
                        for f in range(2):
                            for x in swap(qfr[(rb - 3) + f][0]): a(x)
        assert not cread and not side and not kw and not vw and len(stores) == (0 if th else 16 - NSQ), (len(side), stores, kw, vw, cread)
        a.wait_lds_all()
    assert not a.q
    a(f"s_cmp_eq_u32 s{S_TH}, 1")
    a("s_cbranch_scc1 L_q1")
    qpass(0)
    deferred = list(stores)
    a("s_branch L_qe")
    a("L_q1:")
    qpass(1)
    a("L_qe:")
    stamp("qend")
    a("s_barrier")
    a(f"v_add_u32 v{VG2+1}, {R_Q}, v{VG2}")
    for f in range(2):
        ra, rb_, _, _ = qfr[6 + f]
        for r in (ra, ra+2, rb_, rb_+2):
            a(f"v_pk_mul_f32 v[{r}:{r+1}], v[{r}:{r+1}], s[{S_M0}:{S_M0+1}]")
        for x in pack(ra, ra, rb_): a(x)
    for i in range(6):
        r, _, tb, f = qfr[i]
        a(f"ds_write_b128 v{VG2+1}, {vr(r,4)} offset:{tb*2048+f*1024}")
    for f in range(2):
        for x in swap(qfr[6 + f][0]): a(x)
    a(f"v_mov_b32 v1, v{VLN}")
    for i in (6, 7):
        r, _, tb, f = qfr[i]
        a(f"ds_write_b128 v{VG2+1}, {vr(r,4)} offset:{tb*2048+f*1024}")
    a("s_setprio 1")
    a("s_branch L_attn")
    a("L_loader:")
    if stamps: a("\n".join(f"s_mov_b32 s{r}, s4" for r in [5, 6, 7, 8, 9, 14]))
    VOA = 2; VOB = 6
    a(f"""
    s_sub_u32 s{S_T3}, s{S_WID}, 4
    v_lshrrev_b32 v10, 3, v0
    v_and_b32 v11, 7, v0
    v_lshrrev_b32 v12, 1, v10
    v_xor_b32 v13, v11, v12
    v_xor_b32 v14, 4, v13
    s_lshl_b32 s{S_T0}, s{S_T3}, 16
    v_lshlrev_b32 v15, 11, v10
    v_add_u32 v15, s{S_T0}, v15
    v_lshl_add_u32 v{VOA}, v13, 4, v15
    v_lshl_add_u32 v{VOA+1}, v14, 4, v15
    v_add_u32 v{VOA+1}, {16384-1024}, v{VOA+1}
    v_add_u32 v{VOA+2}, {2*(16384-1024)}, v{VOA}
    v_add_u32 v{VOA+3}, {2*(16384-1024)}, v{VOA+1}
    s_lshl_b32 s{S_LA}, s{S_T3}, 12
    """)
    def issue(it, tag):
        k = it["kind"]
        if opts.get("x_noload") and 4 <= it["need"] < 2*MB: return
        if k == "A":
            a(f"s_mov_b32 s{S_KA}, {it['hf']*128*2048 + it['blk']*128}")
            a(f"s_add_u32 m0, s{S_LA}, {it['lds']}")
            a("s_nop 0")
            for i in range(4): a.vm(f"buffer_load_dwordx4 v{VOA+i}, {sr(S_X,4)}, s{S_KA} offen offset:{1024*i} lds", tag)
        elif k == "B":
            a(f"s_mov_b32 s{S_KB}, {it['u']*32*6144}")
            a(f"s_add_u32 m0, s{S_LB}, {it['lds']}")
            a("s_nop 0")
            for i in range(3): a.vm(f"buffer_load_dwordx4 v{VOB+i}, {sr(S_W,4)}, s{S_KB} offen offset:{1024*i} lds", tag)
        elif k == "KV":
            a(f"s_mov_b32 s{S_KB}, {it['u']*32*6144 + 1024}")
            a(f"s_add_u32 m0, s{S_ASL}, {it['lds']}")
            a("s_nop 0")
            for i in range(2): a.vm(f"buffer_load_dwordx4 v{VOB+1+i}, {sr(S_W,4)}, s{S_KB} offen offset:{1024*i} lds", tag)
        else:
            a(f"s_mov_b32 s{S_KB}, {it['u']*32*6144}")
            a(f"s_add_u32 m0, s{S_BSL}, {it['lds']}")
            a("s_nop 0")
            a.vm(f"buffer_load_dwordx4 v{VOB}, {sr(S_W,4)}, s{S_KB} offen lds", tag)
    a.vq = []
    issue(items[0], "n0")
    a(f"""
    v_and_b32 v12, 1, v12
    s_and_b32 s{S_T0}, s{S_T3}, 1
    s_lshl_b32 s{S_T0}, s{S_T0}, 1
    v_or_b32 v12, s{S_T0}, v12
    v_lshlrev_b32 v12, 1, v12
    v_xor_b32 v13, v11, v12
    s_mul_i32 s{S_T0}, s{S_T3}, {8*6144}
    s_lshl_b32 s{S_T1}, s{S_HP}, 7
    s_add_u32 s{S_T0}, s{S_T0}, s{S_T1}
    v_mul_u32_u24 v15, 6144, v10
    v_add_u32 v15, s{S_T0}, v15
    v_lshl_add_u32 v{VOB}, v13, 4, v15
    v_add_u32 v{VOB+1}, {2048-1024}, v{VOB}
    v_add_u32 v{VOB+2}, {2*(2048-1024)}, v{VOB}
    s_mul_i32 s{S_LB}, s{S_T3}, 3072
    s_lshl_b32 s{S_ASL}, s{S_T3}, 11
    s_lshl_b32 s{S_BSL}, s{S_T3}, 10
    """)
    st_sched = {}
    def ST(k, x):
        st_sched.setdefault(k, []).append(x)
        if x.startswith("s_load") and opts.get("s2", 1):
            head, off = x.rsplit(", ", 1)
            st_sched[k].append(f"{head}, {int(off) + 64}")
    TW, TX, TO, TO2 = 16, 18, 20, 24
    if opts.get("stouch", 1):
        lead = opts.get("slead", 8)
        for i in range(8):
            k = max(4*i - lead, i)
            for seg in range(3): ST(k, f"s_load_dword s22, s[{TW}:{TW+1}], {seg*2048}")
            ST(k, f"s_add_u32 s{TW}, s{TW}, {128*6144}"); ST(k, f"s_addc_u32 s{TW+1}, s{TW+1}, 0")
        for j in range(16): ST(j // 8, f"s_load_dword s22, s[{TX}:{TX+1}], {j*2048 + 3*128}")
        for j in range(16): ST(opts.get("sx11", 6) + j // 2, f"s_load_dword s22, s[{TX}:{TX+1}], {j*2048 + 11*128}")
        for j in range(16): ST(opts.get("swo", 14) + j // 2, f"s_load_dword s22, s[{TO}:{TO+1}], {(j//2)*2048 + (3 + 8*(j&1))*128}")
        woa = opts.get("woa", 16)
        if woa < 16:
            R = (16 - woa) * 32 // 128
            lst = [(kh, j, l) for kh in range(2) for j in range(R) for l in range(16) if l % 8 != 3]
            k0, k1 = opts.get("wk0", 14), opts.get("wk1", 31)
            for i, (kh, j, l) in enumerate(lst):
                ST(k0 + i * (k1 - k0) // len(lst), f"s_load_dword s22, s[{TO2}:{TO2+1}], {kh*512*2048 + j*2048 + l*128 - 0x80000}")
    def st_setup():
        a(f"""
        s_lshr_b32 s{S_T0}, s2, 3
        s_lshl_b32 s{S_T0}, s{S_T0}, 2
        s_add_u32 s{S_T0}, s{S_T0}, s{S_WID}
        s_sub_u32 s{S_T0}, s{S_T0}, 4              ; n = slot*4 + w
        s_mul_i32 s{S_T1}, s{S_T0}, 6144
        s_or_b32 s{S_T2}, s{S_HP}, 3
        s_lshl_b32 s{S_T2}, s{S_T2}, 7
        s_add_u32 s{S_T1}, s{S_T1}, s{S_T2}
        s_add_u32 s{TW}, s{S_W}, s{S_T1}
        s_addc_u32 s{TW+1}, s{S_W+1}, 0
        s_lshl_b32 s{S_T1}, s{S_T0}, 15
        s_lshl_b32 s{S_T2}, s{S_C}, 19
        s_sub_u32 s{TX}, s{S_X}, s{S_T2}
        s_subb_u32 s{TX+1}, s{S_X+1}, 0
        s_add_u32 s{TX}, s{TX}, s{S_T1}
        s_addc_u32 s{TX+1}, s{TX+1}, 0
        s_lshl_b32 s{S_T1}, s{S_T0}, 14
        s_add_u32 s{TO}, s{S_WO}, s{S_T1}
        s_addc_u32 s{TO+1}, s{S_WO+1}, 0
        s_mul_i32 s{S_T1}, s{S_T0}, {(16 - opts.get("woa", 16)) * 32 // 128 * 2048}
        s_add_u32 s{S_T1}, s{S_T1}, {32 * opts.get("woa", 16) * 2048 + 0x80000}
        s_add_u32 s{TO2}, s{S_WO}, s{S_T1}
        s_addc_u32 s{TO2+1}, s{S_WO+1}, 0
        """)
    pendq = items[1:]
    for k in range(-1, nst):
        budget = opts.get("pro", 14) if k < 0 else (opts.get("bud0", 10) if k < 4 else (opts.get("bud", 7) if k < 31 else 10))
        for it in list(pendq):
            if it["after"] <= k and it["need"] <= k + 6 and (budget >= it["n"] or it["need"] <= k + 2):
                pendq.remove(it); issue(it, f"n{it['need']}"); budget -= it["n"]
        if k == -1:
            common_setup(); st_setup()
        for x in st_sched.get(k, []): a(x)
        if k == opts.get("wvt", 99):
            a(f"""
            s_and_b32 s{S_T0}, s{S_OC}, 1
            s_lshl_b32 s{S_T0}, s{S_T0}, 2
            s_add_u32 s{S_T0}, s{S_T0}, s{S_WID}
            s_sub_u32 s{S_T0}, s{S_T0}, 4
            s_lshl_b32 s{S_T0}, s{S_T0}, 18
            s_lshl_b32 s{S_T1}, s{S_OJ}, 7
            s_add_u32 s{S_T0}, s{S_T0}, s{S_T1}
            v_lshlrev_b32 v9, 11, v0
            s_add_u32 s{S_T1}, s{S_T0}, 0x20000
            """)
            a.vm(f"buffer_load_dword v10, v9, {sr(S_WO,4)}, s{S_T0} offen", "wt")
            a.vm(f"buffer_load_dword v10, v9, {sr(S_WO,4)}, s{S_T1} offen", "wt")
        if 18 <= k < 28:
            if k == 18:
                a("v_lshlrev_b32 v1, 4, v0")
                lc = [x for x in attn_consts0(1) + attn_consts1() + attn_consts2() if not x.startswith(f"s_lshl_b32 s{S_LA},")]
                lc.append(f"v_add_u32 v{CT}, {LDS_BYTES - 8192}, v1")
                lc = [x.replace(f"s{S_T0}", "s26").replace(f"s{S_T1}", "s27") for x in lc]
                per = -(-len(lc) // 10)
            for x in lc[(k-18)*per:(k-17)*per]: a(x)
        if k == 32:
            a(f"s_lshl_b32 s{S_LA}, s{S_WID}, 10")
            for i in range(8): a(f"ds_write_b128 v{CT}, {vr((BD if i < 4 else BF) + 4*(i%4), 4)} offset:{1024*i}")
            a("s_waitcnt lgkmcnt(0)")
        if k + 1 < nst:
            assert not any(it["need"] <= k + 1 for it in pendq), k
            a.wait_vm(*[f"n{j}" for j in range(k + 2)])
            if not (opts.get("x_nobar") and 0 <= k < 2*MB): a("s_barrier")
            elif opts.get("x_nobar") == 2: a("s_sleep 10")
    assert not pendq and set(a.vq) <= {"wt"}, (pendq, a.vq)
    a("s_barrier")
    VL = 1; VT = 4
    a("L_attn:")
    a(f"""
    s_lshr_b32 s{S_T0}, s{S_WID}, 1
    s_waitcnt lgkmcnt(0)
    s_barrier
    """)
    stamp(3)
    a(f"""
    s_cmp_eq_u32 s{S_T0}, 1
    s_cbranch_scc1 L_u1
    s_cmp_eq_u32 s{S_T0}, 2
    s_cbranch_scc1 L_u2
    s_cmp_eq_u32 s{S_T0}, 3
    s_cbranch_scc1 L_u3
    """)
    def wo_dma(step, vw=VW, both=False):
        a(f"s_add_u32 m0, s{S_LA}, {wo_slot(step)}")
        a(f"s_mov_b32 s{S_T3}, {step*32*2048}")
        a.vm(f"buffer_load_dwordx4 v{vw}, {sr(S_WO,4)}, s{S_T3} offen lds", f"d{step}")
        if both:
            a(f"s_xor_b32 s{S_T2}, s{S_LA}, 4096")
            a(f"s_add_u32 m0, s{S_T2}, {wo_slot(step)}")
            a("s_nop 0")
            a.vm(f"buffer_load_dwordx4 v{VW2}, {sr(S_WO,4)}, s{S_T3} offen lds", f"d{step}")
    def run_tasks(tasks, hooks, first_touch):
        n = len(tasks)
        def rdK(i):
            for f in range(2):
                a.lds(f"ds_read_b128 {vr(KF+4*f,4)}, v{VKP if tasks[i][4] else VK} offset:{tasks[i][1]+1024*f}", f"k{f}")
        def rdV(i):
            for f in range(2):
                a.lds(f"ds_read_b128 {vr(VF+4*f,4)}, v{VVP if tasks[i][4] else VV} offset:{tasks[i][2]+1024*f}", f"v{f}")
        def qk(i, f):
            u, _, _, bias, _ = tasks[i]
            q = QA if u == "A" else QB
            s = vr(SS[i % 2], 16)
            c = s if f else (vr(bias, 16) if bias is not None else "0")
            a.wait_lds(f"k{f}")
            a(f"v_mfma_f32_32x32x16_bf16 {s}, {vr(KF+4*f,4)}, {vr(q+4*f,4)}, {c}")
        def pv(i, f):
            u = tasks[i][0]
            o = vr(OA if u == "A" else OB, 16)
            c = "0" if (u in first_touch and f == 0) else o
            a.wait_lds(f"v{f}")
            a(f"v_mfma_f32_32x32x16_bf16 {o}, {vr(VF+4*f,4)}, {vr(PP[i%2]+4*f,4)}, {c}")
        def sm(i, f):
            u = tasks[i][0]
            l = vr(LA if u == "A" else LB, 4)
            c = l
            if u in first_touch and f == 0:
                c = "0"; first_touch.discard(u)
            a(f"v_mfma_f32_16x16x32_bf16 {l}, {vr(ON,4)}, {vr(PP[i%2]+4*f,4)}, {c}")
        rdK(0)
        qk(0, 0); qk(0, 1)
        if n > 1: rdK(1)
        for i in range(n + 1):
            for h in hooks.get(i, []): h()
            s = SS[i % 2]; p = PP[i % 2]
            ex = [f"v_exp_f32 v{s+r}, v{s+r}" for r in range(16)] if i < n else []
            cv = [f"v_cvt_pk_bf16_f32 v{p+j}, v{s+2*j}, v{s+2*j+1}" for j in range(8)] if i < n else []
            def E(k):
                for _ in range(k):
                    if ex: a(ex.pop(0))
            def C(k):
                for _ in range(k):
                    if cv: a(cv.pop(0))
            if i + 1 < n: qk(i+1, 0)
            if i == 0: a("s_nop 7"); a("s_nop 3")
            if i == n: a("s_nop 1")
            E(3)
            if i >= 1: pv(i-1, 0)
            E(3)
            if i + 1 < n:
                qk(i+1, 1)
                if i + 2 < n: rdK(i+2)
            E(3)
            if i >= 1: pv(i-1, 1)
            if i < n: rdV(i)
            E(3); C(2)
            if i >= 1: sm(i-1, 0)
            E(4); C(1)
            if i >= 1: sm(i-1, 1)
            C(5)
    uid = [0]
    def finalize(U, qb_expr):
        O, Ls = (OA, LA) if U == "A" else (OB, LB)
        uid[0] += 1
        a(f"""
        {qb_expr}
        s_nop 3
        v_cmp_le_f32 s[{S_M0}:{S_M0+1}], s{S_LO}, v{Ls}
        v_cmp_ge_f32 s[{S_M1}:{S_M1+1}], s{S_HI}, v{Ls}
        s_lshl_b32 s{S_T0}, s{S_QB}, 16
        s_add_u32 s{S_T0}, s{S_T0}, s{S_OB}
        s_and_b64 s[{S_M0}:{S_M0+1}], s[{S_M0}:{S_M0+1}], s[{S_M1}:{S_M1+1}]
        s_cmp_eq_u64 s[{S_M0}:{S_M0+1}], -1
        s_cbranch_scc1 L_ok{uid[0]}
        s_call_b64 s[{S_RET}:{S_RET+1}], L_slow{U}
        L_ok{uid[0]}:
        v_rcp_f32 v{Ls+1}, v{Ls}
        s_nop 0
        """)
        for r in range(16): a(f"v_mul_f32 v{O+r}, v{O+r}, v{Ls+1}")
        for j in range(8): a(f"v_cvt_pk_bf16_f32 v{O+j}, v{O+2*j}, v{O+2*j+1}")
        a.vm(f"buffer_store_dwordx4 {vr(O,4)}, v{VO}, {sr(S_WS,4)}, s{S_T0} offen sc1", "o" + U)
        a.vm(f"buffer_store_dwordx4 {vr(O+4,4)}, v{VO}, {sr(S_WS,4)}, s{S_T0} offen offset:512 sc1", "o" + U)
    def o_flag(U, qb_expr, alt=None):
        VT = 4 if alt is None else 48
        a(f"""
        {qb_expr}
        s_lshl_b32 s{S_T0}, s{S_QB}, 8
        s_add_u32 s{S_T0}, s{S_T0}, s{S_FO}
        v_mov_b32 v{VT}, s{S_NON}
        v_mov_b32 v{VT+1}, s{S_TAG}
        v_mov_b32 v{VT+2}, 0
        """)
        a.wait_vm("o" + U)
        a("s_mov_b64 exec, 1")
        a.vm(f"buffer_store_dwordx2 v[{VT}:{VT+1}], v{VT+2}, {sr(S_WS,4)}, s{S_T0} offen sc1", "fl")
        a("s_mov_b64 exec, -1")
        a("s_nop 3")
        if U == "B":
            qs = list(a.q); stamp("ofl"); a.q = qs
    VR = 8; VPL = 12; VOUT = 13; VL2 = 14; VRD = 15
    WFR = 16; TMP = 48; ACB = [224, 128]
    ORING = [64, 72, 112, 120, 160, 168, 176, 200, 208, 216]
    OSC = " sc1"
    OPRE = opts.get("opre", 6)
    OAH = opts.get("oahead", 8)
    def ofr(g): return ORING[g % 10]
    def p3_pre():
        a(f"""
        s_lshr_b32 s{S_TH}, s{S_WID}, 2
        s_and_b32 s{S_DB}, s{S_WID}, 3
        s_lshl_b32 s{S_T0}, s{S_P}, 3
        s_add_u32 s{S_T0}, s{S_T0}, s{S_OC}
        s_lshl_b32 s{S_T1}, s{S_T0}, 3
        s_add_u32 s{S_T1}, s{S_T1}, s{S_DB}
        s_lshl_b32 s{S_KB}, s{S_T1}, 8
        s_lshl_b32 s{S_T2}, s{S_TH}, 7
        s_add_u32 s{S_KB}, s{S_KB}, s{S_T2}
        s_add_u32 s{S_KB}, s{S_KB}, {WS_FO}
        v_and_b32 v7, 15, v0
        v_lshlrev_b32 v7, 3, v7
        s_lshl_b32 s{S_KA}, s{S_T1}, 16
        s_lshl_b32 s{S_T2}, s{S_TH}, 14
        s_add_u32 s{S_KA}, s{S_KA}, s{S_T2}
        s_add_u32 s{S_KA}, s{S_KA}, {WS_O + 4*65536}
        v_add_u32 v{CT}, 0x8000, v{VL}
        s_and_b32 s{S_T2}, s{S_OJ}, {opts.get("x_rot", 0)}
        s_lshl_b32 s{S_T2}, s{S_T2}, 10
        s_add_u32 s{S_KA}, s{S_KA}, s{S_T2}
        """)
        a.vm(f"buffer_load_dwordx2 v[2:3], v7, {sr(S_WS,4)}, s{S_KB} offen offset:1024 sc1", "pl")
    def flags_ok():
        a(f"""
        v_cmp_eq_u32 s[{S_M0}:{S_M0+1}], s{S_NON}, v2
        v_cmp_eq_u32 s[{S_M1}:{S_M1+1}], s{S_TAG}, v3
        s_nop 1
        s_and_b64 s[{S_M0}:{S_M0+1}], s[{S_M0}:{S_M0+1}], s[{S_M1}:{S_M1+1}]
        s_cmp_eq_u64 s[{S_M0}:{S_M0+1}], -1
        """)
    def poll(tag, off, vpl):
        a.wait_vm("pl")
        a(f"s_mov_b32 s{S_CNT}, 0x40000")
        a(f"L_op{tag}:")
        flags_ok()
        a(f"""
        s_cbranch_scc1 L_og{tag}
        s_sub_u32 s{S_CNT}, s{S_CNT}, 1
        s_cmp_eq_u32 s{S_CNT}, 0
        s_cbranch_scc1 L_og{tag}
        s_sleep 1
        buffer_load_dwordx2 v[2:3], v{vpl}, {sr(S_WS,4)}, s{S_KB} offen offset:{off} sc1
        s_waitcnt vmcnt(0)
        s_branch L_op{tag}
        L_og{tag}:
        """)
    def o_load(g, vl2=VL2):
        i = g % 16
        if g == 16: a(f"s_sub_u32 s{S_KA}, s{S_KA}, {4*65536 + 3*4096}")
        elif i % 4 == 0 and i: a(f"s_add_u32 s{S_KA}, s{S_KA}, 4096")
        r = ofr(g)
        a.vm(f"buffer_load_dwordx4 {vr(r,4)}, v{VL}, {sr(S_WS,4)}, s{S_KA} offen offset:{(i%4)*1024}{OSC}", f"o{g}")
        a.vm(f"buffer_load_dwordx4 {vr(r+4,4)}, v{vl2}, {sr(S_WS,4)}, s{S_KA} offen offset:{(i%4)*1024}{OSC}", f"o{g}")
    for u in range(4):
        if u: a(f"L_u{u}:")
        qa, qb = u, 7 - u
        a(f"v_add_u32 v{VT}, v{VFL}, v{VL}")
        for f in range(2):
            a.lds(f"ds_read_b128 {vr(QB+4*f,4)}, v{VT} offset:{qb*2048+f*1024}", "q")
        for f in range(2):
            a.lds(f"ds_read_b128 {vr(QA+4*f,4)}, v{VT} offset:{qa*2048+f*1024}", "qa")
        a.wait_lds("q")
        own = lambda U, q: [(U, t*2048, t*2048, None, 0) for t in range(q)] + [(U, q*2048, q*2048, BD, 0)]
        prv = lambda U, q: [(U, q*4096, q*4096, BF, 1)] + [(U, t*4096, t*4096, None, 1) for t in range(q+1, 8)]
        hooks = {}
        def H(i, f): hooks.setdefault(i, []).append(f)
        def poll_issue():
            a(f"""
            s_cmp_eq_u32 s{S_C}, 0
            s_cbranch_scc1 L_np{u}
            v_mov_b32 v{VT+2}, 0
            buffer_load_dwordx2 v[2:3], v{VT+2}, {sr(S_WS,4)}, s{S_KA} offen sc1
            L_np{u}:
            """)
        def kv_dma(j):
            def f():
                a(f"""
                s_cmp_eq_u32 s{S_C}, 0
                s_cbranch_scc1 L_nd{u}_{j}
                s_add_u32 m0, s{S_DB}, {4096*j}
                s_add_u32 s{S_T2}, s{S_DA}, {4096*j}
                """)
                for k in range(4):
                    a(f"buffer_load_dwordx4 v{VL}, {sr(S_WS,4)}, s{S_T2} offen offset:{1024*k} sc1 lds")
                a(f"L_nd{u}_{j}:")
            return f
        def poll_check():
            a(f"""
            s_cmp_eq_u32 s{S_C}, 0
            s_cbranch_scc1 L_got{u}
            s_mov_b32 s{S_CNT}, 0x40000
            L_poll{u}:
            s_waitcnt vmcnt(0)
            v_readfirstlane_b32 s{S_T2}, v2
            v_readfirstlane_b32 s{S_T3}, v3
            s_cmp_eq_u32 s{S_T2}, s{S_NON}
            s_cselect_b32 s{S_T2}, 1, 0
            s_cmp_eq_u32 s{S_T3}, s{S_TAG}
            s_cselect_b32 s{S_T2}, s{S_T2}, 0
            s_cmp_lg_u32 s{S_T2}, 0
            s_cbranch_scc1 L_got{u}
            s_sub_u32 s{S_CNT}, s{S_CNT}, 1
            s_cmp_eq_u32 s{S_CNT}, 0
            s_cbranch_scc1 L_got{u}
            s_sleep 1
            buffer_load_dwordx2 v[2:3], v{VT+2}, {sr(S_WS,4)}, s{S_KA} offen sc1
            s_branch L_poll{u}
            L_got{u}:
            s_add_u32 s{S_DA}, s{S_KVB}, {(u*16384 - 32768) & 0xffffffff}
            s_lshl_b32 s{S_DB}, s{S_HH}, 15
            s_add_u32 s{S_DB}, s{S_DB}, {R_PREV + u*16384}
            """)
            qs = list(a.q); stamp("got"); a.q = qs
        def landed_b():
            a(f"""
            v_mov_b32 v2, s{S_NON}
            v_mov_b32 v3, s{S_TAG}
            s_lshl_b32 s{S_T2}, s{S_HH}, 3
            s_add_u32 s{S_T2}, s{S_T2}, {R_Q + 24576}
            v_mov_b32 v{VFL}, s{S_T2}
            """)
            a.wait_vm_all()
            a.lds(f"ds_write_b64 v{VFL}, v[2:3]", "fw")
        def wait_b():
            a(f"""
            s_lshl_b32 s{S_T2}, s{S_HH}, 3
            s_add_u32 s{S_T2}, s{S_T2}, {R_Q + 24576}
            v_mov_b32 v{VFL}, s{S_T2}
            """)
            a.wait_lds_all()
            wait_landed(0, "b")
        def landed():
            a.wait_lds("qa")
            a(f"""
            v_mov_b32 v2, s{S_NON}
            v_mov_b32 v3, s{S_TAG}
            s_waitcnt vmcnt(0)
            """)
            a.lds(f"ds_write_b64 v{VFL}, v[2:3] offset:{qa*2048}", "fw")
        def wait_landed(th, tag):
            assert not a.q
            a(f"""
            s_mov_b32 s{S_CNT}, 0x400000
            L_wl{u}{tag}:
            ds_read_b64 v[2:3], v{VFL} offset:{th*2048}
            s_waitcnt lgkmcnt(0)
            v_readfirstlane_b32 s{S_T2}, v2
            v_readfirstlane_b32 s{S_T3}, v3
            s_cmp_eq_u32 s{S_T2}, s{S_NON}
            s_cselect_b32 s{S_T2}, 1, 0
            s_cmp_eq_u32 s{S_T3}, s{S_TAG}
            s_cselect_b32 s{S_T2}, s{S_T2}, 0
            s_cmp_lg_u32 s{S_T2}, 0
            s_cbranch_scc1 L_wd{u}{tag}
            s_sub_u32 s{S_CNT}, s{S_CNT}, 1
            s_cmp_eq_u32 s{S_CNT}, 0
            s_cbranch_scc1 L_wd{u}{tag}
            s_sleep 1
            s_branch L_wl{u}{tag}
            L_wd{u}{tag}:
            """)
        if u == 1:
            c1 = opts.get("c1", 1)
            H(0, poll_issue); H(c1, poll_check)
            for j in range(4): H(c1 + j // 2, kv_dma(j))
            H(opts.get("l1", 4), landed)
        if u == 0:
            stores[:] = list(deferred)
            nd = len(deferred); spt = opts.get("spt", 2)
            for j in range(nd): H(j // spt, lambda: kv_store(VL))
            pub = opts.get("pub_at", 3)
            H(pub, lambda: publish(VT)); H(pub, poll_issue)
            c0_ = opts.get("c0", 6)
            H(c0_, poll_check)
            for j in range(4): H(c0_ + j // 2, kv_dma(j))
        ft = {"A", "B"}
        run_tasks(own("B", qb), hooks, ft)
        a.wait_lds_all()
        stamp(4)
        a(f"s_cmp_eq_u32 s{S_C}, 0")
        a(f"s_cbranch_scc1 L_z{u}")
        wait_landed(1, "a")
        a.vq = []
        hooks = {}
        nB = 8 - qb
        qbx = f"s_mov_b32 s{S_QB}, {qb}"
        n23 = nB + qa + 1
        H(nB + 1, lambda: finalize("B", qbx))
        fl = nB + 1 + opts.get("ofl", 2)
        if fl <= n23: H(fl, lambda: o_flag("B", qbx))
        run_tasks(prv("B", qb) + own("A", qa), hooks, ft)
        vq23 = list(a.vq)
        a(f"s_branch L_w{u}")
        a(f"L_z{u}:")
        a.vq = []
        a("s_nop 7")
        finalize("B", qbx)
        run_tasks(own("A", qa), {}, {"A"})
        if fl <= n23: o_flag("B", qbx)
        a.vq = vq23
        a(f"L_w{u}:")
        a.wait_lds_all()
        if u < 2: a("s_setprio 0")
        a("s_barrier")
        stamp(5)
        hooks = {}
        if fl > n23: H(max(fl - n23 - 1, 0), lambda: o_flag("B", qbx))
        nA = 8 - qa
        w0 = max(fl - n23 - 1, 0)
        sts = list(range(11))
        wpt = opts.get("wpt", 3)
        if u == 0:
            H(opts.get("lb", 1), landed_b); w0 = max(w0, opts.get("lb", 1))
        for t in range(w0, nA - 1):
            k = wpt if t < nA - 2 else 12
            for st in sts[:k]: H(t, (lambda s_: (lambda: wo_dma(s_)))(st))
            sts = sts[k:]
        assert not sts
        hooks_c0 = {t: list(v) for t, v in hooks.items()}
        if u: H(2, wait_b)
        H(nA - 1, p3_pre); hooks_c0.setdefault(nA - 1, []).append(p3_pre)
        a(f"s_cmp_eq_u32 s{S_C}, 0")
        a(f"s_cbranch_scc1 L_y{u}")
        vq4 = list(a.vq)
        run_tasks(prv("A", qa)[::-1], hooks, set())
        stamp(7)
        a(f"s_mov_b32 s{S_QB}, {qa}")
        a("s_nop 7")
        a("s_branch L_last")
        a(f"L_y{u}:")
        a.vq = vq4
        for t in sorted(hooks_c0):
            for h in hooks_c0[t]: h()
        a.wait_lds_all()
        stamp(7)
        a(f"s_mov_b32 s{S_QB}, {qa}")
        if u < 3: a("s_branch L_last")
    a("L_last:")
    a.vq = ["old"]
    finalize("A", "")
    a.wait_vm("old")
    flags_ok()
    a("s_cbranch_scc0 L_late")
    for g in range(OPRE): o_load(g, CT)
    o_flag("A", "")
    a("s_branch L_p3")
    a("L_late:")
    vq_keep = list(a.vq)
    a.vq = ["oA", "oA"]
    o_flag("A", "")
    a.vm(f"buffer_load_dwordx2 v[2:3], v7, {sr(S_WS,4)}, s{S_KB} offen offset:1024 sc1", "pl")
    poll("1", 1024, 7)
    for g in range(OPRE): o_load(g, CT)
    a("s_waitcnt vmcnt(0)")
    a.vq = vq_keep
    a("L_p3:")
    a(f"""
    v_bfe_u32 v5, v0, 2, 2
    v_bfe_u32 v6, v0, 4, 1
    v_lshl_add_u32 v5, v6, 2, v5
    v_lshlrev_b32 v{VR}, 7, v5
    v_bfe_u32 v6, v5, 1, 2
    v_lshl_add_u32 v{VR}, v6, 5, v{VR}
    v_and_b32 v6, 3, v0
    v_lshl_add_u32 v{VR}, v6, 3, v{VR}
    v_lshrrev_b32 v6, 5, v0
    v_lshl_add_u32 v{VR}, v6, 11, v{VR}
    s_lshl_b32 s{S_T0}, s{S_TH}, 12
    v_add_u32 v{VR}, s{S_T0}, v{VR}
    s_lshl_b32 s{S_T0}, s{S_TH}, 6
    v_xor_b32 v{VR}, s{S_T0}, v{VR}
    v_xor_b32 v{VR+1}, 32, v{VR}
    v_xor_b32 v{VR+2}, 64, v{VR}
    v_xor_b32 v{VR+3}, 0x60, v{VR}
    v_mov_b32 v{VPL}, v7
    v_mov_b32 v{VL2}, v{CT}
    v_mov_b32 v7, v{VW}
    """)
    a("s_barrier")
    stamp(9)
    for st in range(11, 16): wo_dma(st, 7)
    a(f"""
    v_and_b32 v{VOUT}, 15, v0
    v_lshlrev_b32 v{VOUT}, 12, v{VOUT}
    v_bfe_u32 v6, v0, 4, 1
    v_lshl_add_u32 v{VOUT}, v6, 5, v{VOUT}
    v_lshrrev_b32 v6, 5, v0
    v_lshl_add_u32 v{VOUT}, v6, 4, v{VOUT}
    s_lshl_b32 s{S_T0}, s{S_OC}, 8
    s_lshl_b32 s{S_T1}, s{S_DB}, 5
    s_add_u32 s{S_T0}, s{S_T0}, s{S_T1}
    s_lshl_b32 s{S_T0}, s{S_T0}, 12
    s_lshl_b32 s{S_T1}, s{S_P}, 11
    s_add_u32 s{S_T0}, s{S_T0}, s{S_T1}
    s_lshl_b32 s{S_T1}, s{S_OJ}, 7
    s_add_u32 s{S_T0}, s{S_T0}, s{S_T1}
    s_lshl_b32 s{S_T1}, s{S_TH}, 6
    s_add_u32 s{S_DA}, s{S_T0}, s{S_T1}
    s_lshl_b32 s{S_T0}, s{S_WID}, 12
    s_add_u32 s{S_T0}, s{S_T0}, {R_RED}
    v_add_u32 v{VRD}, s{S_T0}, v{VL}
    s_xor_b32 s{S_T0}, s{S_T0}, 0x4000
    v_add_u32 v4, s{S_T0}, v{VL}
    """)
    cur_base = [0]
    def rdWo(g, nb, hh_=None):
        slot = wo_slot(g % 16)
        assert slot & ~0xffff == cur_base[0], (g, nb)
        w = WFR + 16 * (g % 2) + 4 * nb
        for h in (range(2) if hh_ is None else [hh_]):
            a.lds(f"ds_read_b64_tr_b16 {vr(w+2*h,2)}, v{VR+nb} offset:{(slot & 0xffff) + h*1024}", f"w{g%2}_{nb}")
    def rebase(g):
        base = wo_slot(g % 16) & ~0xffff
        if base != cur_base[0]:
            d = (base - cur_base[0]) & 0xffffffff
            for q in range(4): a(f"v_add_u32 v{VR+q}, {d:#x}, v{VR+q}")
            cur_base[0] = base
    def ac(sl, nb, tb): return ACB[sl] + (nb*2 + tb)*4
    KEEP = f"s[{S_CODE}:{S_CODE+1}]"
    def red_send(sl):
        hi = ac(sl, 2, 0)
        return [("lds", f"ds_write_b128 v{VRD}, {vr(hi+4*i,4)} offset:{1024*i}", "rw") for i in range(4)]
    def red_recv(sl):
        lo = ac(sl, 0, 0)
        o = [("lds", f"ds_read_b128 {vr(TMP+4*i,4)}, v4 offset:{1024*i}", f"rr{i}") for i in range(4)]
        for i in range(4):
            o.append(("wait", f"rr{i}"))
            for r in range(4): o.append(f"v_add_f32 v{lo+4*i+r}, v{lo+4*i+r}, v{TMP+4*i+r}")
        for tb in range(2):
            ra, rb_, t = lo + 4*tb, lo + 8 + 4*tb, TMP + 4*tb
            o += [f"v_cvt_pk_bf16_f32 v{t}, v{ra}, v{ra+1}", f"v_cvt_pk_bf16_f32 v{t+1}, v{ra+2}, v{ra+3}",
                  f"v_cvt_pk_bf16_f32 v{t+2}, v{rb_}, v{rb_+1}", f"v_cvt_pk_bf16_f32 v{t+3}, v{rb_+2}, v{rb_+3}"]
        o += [f"s_add_u32 s{S_T0}, s{S_DA}, {(1-sl)*128*4096}", f"s_add_u32 s{S_T1}, s{S_T0}, 0x10000"]
        for tb in range(2): o += swap(TMP + 4*tb)
        o.append("s_nop 0")
        for tb in range(2):
            o.append(("vm", f"buffer_store_dwordx4 {vr(TMP+4*tb,4)}, v{VOUT}, {sr(S_OUT,4)}, s{S_T1 if tb else S_T0} offen{['', ' sc1', ' nt', ' sc0 sc1'][opts.get('outsc', 1)]}", "st"))
        return o
    def emit(x):
        if isinstance(x, str): a(x)
        elif x[0] == "lds": a.lds(x[1], x[2])
        elif x[0] == "vm": a.vm(x[1], x[2])
        else: a.wait_lds(x[1])
    for nb in range(4): rdWo(0, nb)
    side = []
    P2C = opts.get("p2c", 11)
    issued = set()
    def issue_step(x): return max(x - OAH, P2C) if x >= 16 else x - OAH
    for g in range(32):
        sl, st = divmod(g, 16)
        if g == 9:
            a.wait_vm("d15"); a("s_barrier")
        if g == P2C - 2:
            a.vm(f"buffer_load_dwordx2 v[2:3], v{VPL}, {sr(S_WS,4)}, s{S_KB} offen sc1", "pl")
        if g == P2C: poll("0", 0, VPL)
        if g == 16:
            qsave = list(a.q); stamp("mm1"); a.q = qsave
        if g == 17: side = red_send(0)
        if g == 19:
            assert not side
            a.wait_lds("rw"); a("s_barrier"); side = red_recv(0)
        if g == 27:
            assert not side
            a("s_barrier")
        a.wait_vm(f"o{g}")
        if g < 31: rebase(g + 1)
        a.wait_lds(*[f"w{g%2}_{nb}" for nb in range(4)])
        for nb in range(4):
            for tb in range(2):
                d = vr(ac(sl, nb, tb), 4)
                a(f"v_mfma_f32_16x16x32_bf16 {d}, {vr(WFR+16*(g%2)+4*nb,4)}, {vr(ofr(g)+4*tb,4)}, {d if st else '0'}")
                if g < 31: rdWo(g + 1, nb, tb)
                for _ in range(2):
                    if side: emit(side.pop(0))
            if nb in (1, 3):
                due = [x for x in range(OPRE, 32) if x not in issued and issue_step(x) <= g]
                if due:
                    o_load(due[0]); issued.add(due[0])
    stamp(10)
    a("s_nop 7")
    for x in red_send(1): emit(x)
    a.wait_lds_all()
    a("s_barrier")
    for x in red_recv(1): emit(x)
    if stamps:
        a("s_waitcnt vmcnt(0)")
        stamp(11)
        a(f"""
        s_lshl_b32 s{S_T0}, s2, 3
        s_add_u32 s{S_T0}, s{S_T0}, s{S_WID}
        s_lshl_b32 s{S_T0}, s{S_T0}, 6
        s_add_u32 s{S_T0}, s{S_T0}, {WS_STAMP}
        v_mov_b32 v7, 0
        """)
        for i in range(16): a(f"v_mov_b32 v{8+i}, s{4+i}")
        a(f"""
        s_mov_b64 exec, 1
        buffer_store_dwordx4 v[8:11], v7, {sr(S_WS,4)}, s{S_T0} offen
        buffer_store_dwordx4 v[12:15], v7, {sr(S_WS,4)}, s{S_T0} offen offset:16
        buffer_store_dwordx4 v[16:19], v7, {sr(S_WS,4)}, s{S_T0} offen offset:32
        buffer_store_dwordx4 v[20:23], v7, {sr(S_WS,4)}, s{S_T0} offen offset:48
        s_mov_b64 exec, -1
        """)
    if not EARLY: a(f"""
    s_cmp_lg_u32 s{S_WID}, 0
    s_cbranch_scc1 L_end
    v_mov_b32 v4, 1
    v_mov_b32 v7, 0
    s_mov_b64 exec, 1
    buffer_atomic_add v4, v7, {sr(S_DBG,4)}, 0 offen sc0
    s_waitcnt vmcnt(0)
    v_readfirstlane_b32 s{S_T0}, v4
    s_cmp_lg_u32 s{S_T0}, 255
    s_cbranch_scc1 L_end
    v_mov_b32 v4, s{S_NON}
    s_mov_b32 s{S_T1}, {WS_FLAG}
    buffer_store_dword v4, v7, {sr(S_WS,4)}, s{S_T1} offen sc1
    """)
    a(f"""
    L_end:
    s_endpgm
    """)
    for U, O, Ls, Q in (("A", OA, LA, QA), ("B", OB, LB, QB)):
        S = 64; P = 112; K2 = 120; V2 = 160; M = 168; NB = 169; AK = 170; AT = 171
        if U == "A":
            S = SS[0]; P = PP[0]; K2 = KF; V2 = VF; M = SS[1]; NB = M + 1; AK = M + 2; AT = M + 3
        a(f"""
        L_slow{U}:
        v_and_b32 v{AK}, 0x33, v0
        v_bfe_u32 v{AT}, v0, 2, 1
        v_lshl_or_b32 v{AK}, v{AT}, 3, v{AK}
        v_bfe_u32 v{AT}, v0, 3, 1
        v_lshl_or_b32 v{AK}, v{AT}, 2, v{AK}
        v_lshlrev_b32 v{AK}, 4, v{AK}
        v_mov_b32 v{M}, 0xff800000
        s_mov_b32 s{S_U0}, 0
        L_sp{U}:
        s_mov_b32 s{S_U1}, 0
        s_cmp_eq_u32 s{S_C}, 0
        s_cbranch_scc0 L_st{U}
        s_sub_u32 s{S_U1}, 8, s{S_QB}
        L_st{U}:
        s_add_u32 s{S_U2}, s{S_U1}, s{S_QB}
        s_lshl_b32 s{S_U2}, s{S_U2}, 12
        s_add_u32 s{S_U2}, s{S_U2}, s{S_KVB}
        s_sub_u32 s{S_U2}, s{S_U2}, 0x8000
        buffer_load_dwordx4 {vr(K2,4)}, v{AK}, {sr(S_WS,4)}, s{S_U2} offen sc1
        buffer_load_dwordx4 {vr(K2+4,4)}, v{AK}, {sr(S_WS,4)}, s{S_U2} offen offset:1024 sc1
        buffer_load_dwordx4 {vr(V2,4)}, v{VL}, {sr(S_WS,4)}, s{S_U2} offen offset:2048 sc1
        buffer_load_dwordx4 {vr(V2+4,4)}, v{VL}, {sr(S_WS,4)}, s{S_U2} offen offset:3072 sc1
        s_waitcnt vmcnt(0)
        s_cmp_eq_u32 s{S_U1}, 0
        s_cbranch_scc1 L_sf{U}
        s_cmp_eq_u32 s{S_U1}, 8
        s_cbranch_scc1 L_sd{U}
        v_mfma_f32_32x32x16_bf16 {vr(S,16)}, {vr(K2,4)}, {vr(Q,4)}, 0
        s_branch L_sj{U}
        L_sf{U}:
        v_mfma_f32_32x32x16_bf16 {vr(S,16)}, {vr(K2,4)}, {vr(Q,4)}, {vr(BF,16)}
        s_branch L_sj{U}
        L_sd{U}:
        v_mfma_f32_32x32x16_bf16 {vr(S,16)}, {vr(K2,4)}, {vr(Q,4)}, {vr(BD,16)}
        L_sj{U}:
        v_mfma_f32_32x32x16_bf16 {vr(S,16)}, {vr(K2+4,4)}, {vr(Q+4,4)}, {vr(S,16)}
        s_nop 7
        s_nop 7
        s_cmp_eq_u32 s{S_U0}, 0
        s_cbranch_scc0 L_s2{U}
        """)
        for r in range(16): a(f"v_max_f32 v{M}, v{M}, v{S+r}")
        a(f"s_branch L_sn{U}")
        a(f"L_s2{U}:")
        for r in range(16): a(f"v_sub_f32 v{S+r}, v{S+r}, v{M}")
        for r in range(16): a(f"v_exp_f32 v{S+r}, v{S+r}")
        a("s_nop 0")
        for j in range(8): a(f"v_cvt_pk_bf16_f32 v{P+j}, v{S+2*j}, v{S+2*j+1}")
        a("s_nop 1")
        for f in range(2):
            a(f"v_mfma_f32_32x32x16_bf16 {vr(O,16)}, {vr(V2+4*f,4)}, {vr(P+4*f,4)}, {vr(O,16)}")
        for f in range(2):
            a(f"v_mfma_f32_16x16x32_bf16 {vr(Ls,4)}, {vr(ON,4)}, {vr(P+4*f,4)}, {vr(Ls,4)}")
        a(f"""
        s_nop 7
        s_nop 7
        L_sn{U}:
        s_add_u32 s{S_U1}, s{S_U1}, 1
        s_cmp_le_u32 s{S_U1}, 8
        s_cbranch_scc1 L_st{U}
        s_cmp_eq_u32 s{S_U0}, 0
        s_cbranch_scc0 L_sx{U}
        v_mov_b32 v{NB}, v{M}
        s_nop 1
        v_permlane32_swap_b32 v{NB}, v{M}
        s_nop 1
        v_max_f32 v{M}, v{M}, v{NB}
        """)
        for r in range(16): a(f"v_mov_b32 v{O+r}, 0")
        for r in range(4): a(f"v_mov_b32 v{Ls+r}, 0")
        a(f"""
        s_mov_b32 s{S_U0}, 1
        s_branch L_sp{U}
        L_sx{U}:
        s_setpc_b64 s[{S_RET}:{S_RET+1}]
        """)
    a("L_codeend:")
    hdr = open("concat_heads__sliding_block__sliding_block__prompt.s.ref").read().split("; Override launch")[0]
    head = hdr + f"""; @launch grid=(256,1,1) block=(512,1,1) lds={LDS_BYTES}
.amdgcn_target "amdgcn-amd-amdhsa--gfx950"
.text
.globl {name}
.p2align 8
.type {name},@function
{name}:
"""
    tail = f"""
.section .rodata,"a"
.p2align 6
.amdhsa_kernel {name}
  .amdhsa_next_free_vgpr 256
  .amdhsa_next_free_sgpr 102
  .amdhsa_accum_offset 256
  .amdhsa_group_segment_fixed_size 0
  .amdhsa_kernarg_size 72
  .amdhsa_user_sgpr_count 2
  .amdhsa_user_sgpr_kernarg_segment_ptr 1
  .amdhsa_system_sgpr_workgroup_id_x 1
.end_amdhsa_kernel
"""
    def relayout(t):
        if not opts.get("lfirst", 1): return t
        i0 = t.index("L_loader:\n"); i1 = t.index("L_attn:\n")
        blk = t[i0:i1]
        t = t[:i0] + t[i1:]
        br = f"    s_cmp_ge_u32 s{S_WID}, 4\n    s_cbranch_scc1 L_loader\n"
        assert br in t
        t = t.replace(br, f"    s_cmp_lt_u32 s{S_WID}, 4\n    s_cbranch_scc1 L_compute\n" + blk + "    s_branch L_attn\nL_compute:\n")
        return t.replace("    s_branch L_attn\nL_attn:\n", "L_attn:\n")
    return head + relayout(a.text()).replace("CODE_END_BYTES", "(L_codeend - L_pcref)") + tail

if __name__ == "__main__":
    stamps = "--stamps" in sys.argv
    opts = {}
    for x in sys.argv[2:]:
        if "=" in x:
            k, v = x.split("="); opts[k] = int(v)
    open(sys.argv[1], "w").write(gen(stamps, opts=opts))
```

```python
import sys, struct

class Asm:
    def __init__(self):
        self.l = []
        self.q = []
        self.vq = []
    def __call__(self, s):
        for x in s.strip("\n").split("\n"):
            x = x.strip()
            if not x: continue
            self.l.append(x if x.endswith(":") else "    " + x)
    def text(self):
        return "\n".join(self.l) + "\n"
    def lds(self, s, tag):
        self(s); self.q.append(tag)
    def wait_lds(self, *tags):
        idx = [i for i, t in enumerate(self.q) if t in tags]
        if not idx: return
        last = max(idx); n = min(len(self.q) - 1 - last, 15)
        self(f"s_waitcnt lgkmcnt({n})")
        self.q = self.q[len(self.q)-n:] if n else []
    def wait_lds_all(self):
        self("s_waitcnt lgkmcnt(0)"); self.q = []
    def vm(self, s, tag):
        self(s); self.vq.append(tag)
    def wait_vm(self, *tags):
        idx = [i for i, t in enumerate(self.vq) if t in tags]
        if not idx: return
        last = max(idx); n = len(self.vq) - 1 - last
        assert n <= 63, n
        self(f"s_waitcnt vmcnt({n})")
        self.vq = self.vq[last+1:]
    def wait_vm_all(self):
        self("s_waitcnt vmcnt(0)"); self.vq = []

def vr(a, n): return f"v[{a}:{a+n-1}]"
def sr(a, n): return f"s[{a}:{a+n-1}]"
def f32bits(x): return struct.unpack("<I", struct.pack("<f", x))[0]
def L(s): return [x.strip() for x in s.strip().split("\n") if x.strip()]

WS_KV = 0
WS_O = 16 << 20
WS_FLAG = 24 << 20
WS_FKV = WS_FLAG + 4096
WS_FO = WS_FLAG + 65536
WS_STAMP = 25 << 20
WS_BYTES = 26 << 20
TAGX = 0x5bd1e995

A_SLOT = 32768; B_BASE = 3 * A_SLOT; B_SLOT = 12288
LDS_BYTES = 160 * 1024
R_V = 0; R_PREV = 32768; R_K = 98304; R_Q = 131072; R_RED = 65536
def wo_slot(st): return [R_V, R_K, R_Q, R_PREV][st // 4] + (st % 4) * 8192

S_X = 36; S_W = 40; S_WS = 44; S_WO = 48; S_OUT = 52; S_DBG = 56
S_P = 60; S_C = 61; S_HP = 62; S_WID = 63
S_T0 = 64; S_T1 = 65; S_T2 = 66; S_T3 = 67
S_ASL = 68; S_BSL = 69; S_KA = 70; S_KB = 71; S_CNT = 72
S_TH = 73; S_HH = 74; S_DA = 75; S_DB = 76
S_NON = 77; S_KVB = 78; S_OC = 79; S_OJ = 80; S_TAG = 81
S_LA = 82; S_LB = 83
S_M0 = 84; S_M1 = 86
S_QB = 88; S_OB = 89
S_RET = 90; S_CODE = 92
S_FO = 96; S_U0 = 97; S_U1 = 98; S_U2 = 99
S_LO = 34; S_HI = 35

QSCALE = 0.17677669529663687 * 1.4426950408889634
CODE_LINES = 512

def gen(stamps=False, name="concat_heads__sliding_block__sliding_block__prompt_kernel", opts=None):
    opts = opts or {}
    a = Asm()
    SN = ["start", "bar0", "main", "kv", "qend", "pub", "barA", "p1end", "barC", "p2end", "got", "barE", "mm1", "mm", "end", "ofl"]
    def stamp(i):
        if isinstance(i, str): i = SN.index(i)
        else: i = SN.index({0: "start", 1: "bar0", 2: "kv", 3: "barA", 4: "p1end", 5: "barC", 7: "p2end", 9: "barE", 10: "mm", 11: "end"}.get(i, "none")) if i not in (6, 8) else None
        if i is None: return
        if stamps:
            a(f"s_memtime s[100:101]" if opts.get("cyc") else f"s_memrealtime s[100:101]")
            a(f"s_waitcnt lgkmcnt(0)")
            a(f"s_mov_b32 s{4+i}, s100")
            a.q = []
    a(f"""
    s_cmp_ge_u32 s2, 256
    s_cbranch_scc1 L_end
    s_load_dwordx16 s[16:31], s[0:1], 0
    s_load_dwordx2 s[32:33], s[0:1], 64
    """)
    stamp(0)
    a(f"""
    v_lshrrev_b32 v1, 6, v0
    v_and_b32 v0, 63, v0
    s_and_b32 s{S_T0}, s2, 7
    v_readfirstlane_b32 s{S_WID}, v1
    s_lshr_b32 s{S_T1}, s2, 3
    s_lshr_b32 s{S_P}, s{S_T0}, 2
    s_and_b32 s{S_T2}, s{S_T0}, 3              ; hq
    s_lshr_b32 s{S_C}, s{S_T1}, 2              ; chunk
    s_and_b32 s{S_T3}, s{S_T1}, 3
    s_lshl_b32 s{S_HP}, s{S_T2}, 2
    s_add_u32 s{S_HP}, s{S_HP}, s{S_T3}
    s_lshr_b32 s{S_OC}, s{S_T1}, 4
    s_lshl_b32 s{S_T3}, s{S_T2}, 1
    s_add_u32 s{S_OC}, s{S_OC}, s{S_T3}
    s_and_b32 s{S_OJ}, s{S_T1}, 15
    s_and_b32 s{S_HH}, s{S_WID}, 1
    s_waitcnt lgkmcnt(0)
    s_cmp_eq_u32 s{S_P}, 0
    s_cselect_b32 s{S_X}, s16, s22
    s_cselect_b32 s{S_X+1}, s17, s23
    s_cselect_b32 s{S_W}, s18, s24
    s_cselect_b32 s{S_W+1}, s19, s25
    s_cselect_b32 s{S_WO}, s20, s26
    s_cselect_b32 s{S_WO+1}, s21, s27
    s_lshl_b32 s{S_T0}, s{S_C}, 19
    s_add_u32 s{S_X}, s{S_X}, s{S_T0}
    s_addc_u32 s{S_X+1}, s{S_X+1}, 0
    s_mov_b32 s{S_X+2}, 0x80000
    s_mov_b32 s{S_X+3}, 0x20000
    s_mov_b32 s{S_W+2}, 0x600000
    s_mov_b32 s{S_W+3}, 0x20000
    s_cmp_ge_u32 s{S_WID}, 4
    s_cbranch_scc1 L_loader
    """)
    def common_setup():
        a(f"""
        s_add_u32 s{S_T0}, s32, {WS_FLAG}
        s_addc_u32 s{S_T1}, s33, 0
        s_load_dword s{S_NON}, s[{S_T0}:{S_T1}], 0
        s_mov_b32 s{S_WS}, s32
        s_mov_b32 s{S_WS+1}, s33
        s_mov_b32 s{S_WS+2}, {WS_BYTES}
        s_mov_b32 s{S_WS+3}, 0x20000
        s_mov_b32 s{S_WO+2}, 0x200000
        s_mov_b32 s{S_WO+3}, 0x20000
        s_mov_b32 s{S_OUT}, s28
        s_mov_b32 s{S_OUT+1}, s29
        s_mov_b32 s{S_OUT+2}, 0x800000
        s_mov_b32 s{S_OUT+3}, 0x20000
        s_mov_b32 s{S_DBG}, s30
        s_mov_b32 s{S_DBG+1}, s31
        s_mov_b32 s{S_DBG+2}, 256
        s_mov_b32 s{S_DBG+3}, 0x20000
        s_lshl_b32 s{S_T3}, s{S_HP}, 1
        s_add_u32 s{S_T3}, s{S_T3}, s{S_HH}        ; head
        s_lshl_b32 s{S_T2}, s{S_P}, 5
        s_add_u32 s{S_T2}, s{S_T2}, s{S_T3}        ; p*32+head
        s_lshl_b32 s{S_T2}, s{S_T2}, 6
        s_lshl_b32 s{S_KVB}, s{S_C}, 3
        s_add_u32 s{S_T2}, s{S_T2}, s{S_KVB}
        s_lshl_b32 s{S_KVB}, s{S_T2}, 12
        s_lshl_b32 s{S_T2}, s{S_P}, 3
        s_add_u32 s{S_T2}, s{S_T2}, s{S_C}         ; p*8+c
        s_lshl_b32 s{S_OB}, s{S_T2}, 19
        s_lshl_b32 s{S_FO}, s{S_T3}, 10
        s_add_u32 s{S_OB}, s{S_OB}, s{S_FO}
        s_add_u32 s{S_OB}, s{S_OB}, {WS_O}
        s_lshl_b32 s{S_FO}, s{S_T2}, 11
        s_lshl_b32 s{S_T3}, s{S_T3}, 3
        s_add_u32 s{S_FO}, s{S_FO}, s{S_T3}
        s_add_u32 s{S_FO}, s{S_FO}, {WS_FO}
        s_mov_b32 s{S_LO}, {f32bits(2.0**-60)}
        s_mov_b32 s{S_HI}, {f32bits(2.0**60)}
        s_waitcnt lgkmcnt(0)
        s_add_u32 s{S_NON}, s{S_NON}, 1
        s_xor_b32 s{S_TAG}, s{S_NON}, {TAGX}
        """)
    BD = 88; BF = 136; ON = 184; VW = 188; VO = 189; VK = 190; VV = 191; CT = 192; VW2 = 195; VKP = 196; VVP = 197; VFL = 198
    QA = 8; QB = 16; OA = 24; OB = 40; LA = 56; LB = 60; KF = 80; VF = 104; SS = [224, 240]; PP = [128, 152]
    VLS = 194
    def attn_consts0(vl):
        return L(f"""
        v_and_b32 v{CT}, 0x33, v0
        v_bfe_u32 v{CT+1}, v0, 2, 1
        v_lshl_or_b32 v{CT}, v{CT+1}, 3, v{CT}
        v_bfe_u32 v{CT+1}, v0, 3, 1
        v_lshl_or_b32 v{CT}, v{CT+1}, 2, v{CT}
        s_lshl_b32 s{S_T0}, s{S_HH}, 14
        v_lshlrev_b32 v{VK}, 4, v{CT}
        v_add_u32 v{VV}, s{S_T0}, v{vl}
        s_add_u32 s{S_T0}, s{S_T0}, {R_K}
        v_add_u32 v{VK}, s{S_T0}, v{VK}
        s_lshl_b32 s{S_T0}, s{S_HH}, 14
        s_add_u32 s{S_T1}, s{S_T0}, {(R_PREV - R_K) & 0xffffffff:#x}
        v_add_u32 v{VKP}, s{S_T1}, v{VK}
        s_add_u32 s{S_T1}, s{S_T0}, {R_PREV + 2048}
        v_add_u32 v{VVP}, s{S_T1}, v{VV}
        s_add_u32 s{S_T1}, s{S_T0}, {R_Q}
        v_mov_b32 v{VFL}, s{S_T1}
        v_lshrrev_b32 v{CT}, 2, v0
        v_lshrrev_b32 v{CT+1}, 4, v0
        v_xor_b32 v{CT}, v{CT}, v{CT+1}
        v_and_b32 v{CT}, 1, v{CT}
        v_subrev_u32 v{CT}, 1, v{CT}
        v_and_b32 v{ON}, 0x3f803f80, v{CT}
        v_mov_b32 v{ON+1}, v{ON}
        v_mov_b32 v{ON+2}, v{ON}
        v_mov_b32 v{ON+3}, v{ON}
        """)
    def attn_consts1():
        c = L(f"""
        v_and_b32 v{CT}, 31, v0
        v_lshrrev_b32 v{BD}, 5, v0
        v_lshlrev_b32 v{BD}, 3, v{BD}
        v_sub_u32 v{CT}, v{CT}, v{BD}
        s_mov_b32 s{S_T1}, 0xff800000
        """)
        for r in range(16):
            f, u_, e = r >> 3, (r >> 2) & 1, r & 3
            kc = 16*f + 4*u_ + e
            c += [f"v_subrev_u32 v{BD+r}, {kc}, v{CT}", f"v_ashrrev_i32 v{BD+r}, 31, v{BD+r}", f"v_and_b32 v{BD+r}, s{S_T1}, v{BD+r}"]
        return c
    def attn_consts2():
        c = [f"s_mov_b32 s{S_T1}, 0xff800000"]
        c += [f"v_xor_b32 v{BF+r}, s{S_T1}, v{BD+r}" for r in range(16)]
        c += L(f"""
        v_lshrrev_b32 v{CT}, 3, v0
        v_and_b32 v{VW}, 7, v0
        v_bfe_u32 v{VO}, v0, 4, 2
        v_lshlrev_b32 v{VO}, 1, v{VO}
        v_xor_b32 v{VW}, v{VW}, v{VO}
        s_lshr_b32 s{S_T0}, s{S_WID}, 2
        s_lshl_b32 s{S_T0}, s{S_T0}, 20
        s_and_b32 s{S_T1}, s{S_WID}, 3
        s_lshl_b32 s{S_T1}, s{S_T1}, 14
        s_add_u32 s{S_T0}, s{S_T0}, s{S_T1}
        s_lshl_b32 s{S_T1}, s{S_OJ}, 7
        s_add_u32 s{S_T0}, s{S_T0}, s{S_T1}
        v_lshlrev_b32 v{CT}, 11, v{CT}
        v_add_u32 v{CT}, s{S_T0}, v{CT}
        v_lshl_add_u32 v{VW}, v{VW}, 4, v{CT}
        v_xor_b32 v{VW2}, 0x100000, v{VW}
        s_lshl_b32 s{S_LA}, s{S_WID}, 10
        v_and_b32 v{VO}, 15, v0
        v_lshrrev_b32 v{CT}, 5, v0
        v_lshl_add_u32 v{VO}, v{CT}, 4, v{VO}
        v_lshlrev_b32 v{VO}, 4, v{VO}
        v_bfe_u32 v{CT}, v0, 4, 1
        v_lshl_add_u32 v{VO}, v{CT}, 15, v{VO}
        """)
        return c
    D = opts.get("D", 3); MB = 16 - D
    KVS = B_BASE; QS = B_BASE + 32768; A4 = KVS
    qorder = [15, 14, 13] + list(range(12, MB - 1, -1))
    qorder = qorder[:D]
    aslot_q = {}
    for i, b in enumerate(qorder):
        aslot_q[b] = (b % 3) * A_SLOT if b >= 13 else [A4, 0, 2 * A_SLOT, A_SLOT][(i - 3) % 4]
    nst = 32 + D
    items = []
    for u in range(32):
        b, kk = divmod(u, 2)
        if kk == 0:
            for hf in range(2): items.append(dict(need=u, kind="A", blk=b, hf=hf, lds=(b % 3)*A_SLOT + hf*16384, size=16384,
                                                  free=(u + 2) if b < 13 or b not in qorder else 32 + qorder.index(b) + 2))
        if u <= 2*MB: items.append(dict(need=u, kind="B", u=u, lds=B_BASE + (u % 5)*B_SLOT, size=B_SLOT, free=u + 1))
        else: items.append(dict(need=u, kind="KV", u=u, lds=None, size=8192, free=u + 1))
    for i, b in enumerate(qorder):
        if b < 13:
            for hf in range(2): items.append(dict(need=32 + i, kind="A", blk=b, hf=hf, lds=aslot_q[b] + hf*16384, size=16384, free=32 + i + 2))
        for kk in range(2): items.append(dict(need=32 + i, kind="Q", u=2*b + kk, qi=(i, kk), lds=None, size=4096, free=32 + i + 2))
    def after_of(n, lo, size):
        r = -1
        for pv_ in items[:n]:
            if pv_["lds"] < lo + size and lo < pv_["lds"] + pv_["size"]: r = max(r, pv_["free"])
        return r
    for n, it in enumerate(items):
        if it["lds"] is None:
            lo_lim = B_BASE if it["kind"] == "KV" else QS
            cands = range(lo_lim, LDS_BYTES - 8192 - it["size"] + 1, 4096)
            it["lds"] = min(cands, key=lambda lo: (max(after_of(n, lo, it["size"]), it["need"] - 5), lo))
        it["after"] = after_of(n, it["lds"], it["size"])
        assert it["after"] < it["need"], it
        it["n"] = {"A": 4, "B": 3, "KV": 2, "Q": 1}[it["kind"]]
    def kvslot(u): return [it["lds"] for it in items if it["kind"] == "KV" and it["u"] == u][0]
    def qslot(i, kk): return [it["lds"] for it in items if it["kind"] == "Q" and it["qi"] == (i, kk)][0]
    VA = 1; VB = 3; VT = 5
    XF = 8; WF = 40; ACC = 64
    SEG = [1, 1, 2, 2, 0, 0]
    def acc(rb, col): return ACC + (rb * 6 + col) * 4
    def xf(rb): return XF + 4 * rb
    def wf(sl): return WF + 4 * sl
    a(f"""
    s_lshr_b32 s{S_TH}, s{S_WID}, 1
    v_and_b32 v{VT}, 15, v0
    v_lshrrev_b32 v{VT+1}, 4, v0
    v_bfe_u32 v{VT+2}, v0, 1, 3
    v_xor_b32 v{VT+2}, v{VT+2}, v{VT+1}
    v_lshlrev_b32 v{VT+2}, 4, v{VT+2}
    v_lshl_add_u32 v{VT+2}, v{VT}, 7, v{VT+2}
    s_lshl_b32 s{S_T0}, s{S_TH}, 14
    v_add_u32 v{VA}, s{S_T0}, v{VT+2}
    v_xor_b32 v{VA+1}, 64, v{VA}
    v_bfe_u32 v{VT}, v0, 2, 2
    v_lshlrev_b32 v{VB}, 7, v{VT}
    v_and_b32 v{VT}, 3, v0
    v_lshl_add_u32 v{VB}, v{VT}, 3, v{VB}
    v_mul_u32_u24 v{VT}, 3072, v{VT+1}
    v_add_u32 v{VB}, v{VB}, v{VT}
    v_bfe_u32 v{VT}, v0, 3, 2
    s_lshl_b32 s{S_T0}, s{S_HH}, 1
    v_xor_b32 v{VT}, s{S_T0}, v{VT}
    v_lshl_add_u32 v{VB}, v{VT}, 5, v{VB}
    v_add_u32 v{VB}, {B_BASE}, v{VB}
    v_xor_b32 v{VB+1}, 32, v{VB}
    """)
    LOOK = opts.get("look", 4)
    a(f"""
    s_and_b32 s{S_T0}, s{S_HP}, 3
    s_lshl_b32 s{S_T0}, s{S_T0}, 6
    s_lshl_b32 s{S_T1}, s{S_WID}, 4
    s_add_u32 s{S_T0}, s{S_T0}, s{S_T1}
    s_lshl_b32 s{S_T0}, s{S_T0}, 11
    v_lshlrev_b32 v5, 11, v0
    v_add_u32 v5, s{S_T0}, v5
    v_mov_b32 v11, 0x7f000000
    v_cmp_lt_u32 vcc, 15, v0
    v_and_b32 v9, 1, v0
    v_lshrrev_b32 v10, 1, v0
    v_cndmask_b32 v5, v5, v11, vcc
    s_lshl_b32 s{S_T0}, s{S_C}, 3
    s_lshl_b32 s{S_T1}, s{S_WID}, 1
    s_add_u32 s{S_T0}, s{S_T0}, s{S_T1}
    v_add_u32 v6, s{S_T0}, v9
    v_mul_u32_u24 v6, 6144, v6
    v_lshl_add_u32 v6, v10, 11, v6
    s_lshl_b32 s{S_T0}, s{S_HP}, 7
    v_add_u32 v6, s{S_T0}, v6
    v_cmp_lt_u32 vcc, 5, v0
    s_movk_i32 s{S_KA}, {128*LOOK}
    s_mov_b32 s{S_KB}, {64*6144*LOOK}
    v_cndmask_b32 v6, v6, v11, vcc
    s_getpc_b64 s[{S_CODE}:{S_CODE+1}]
    s_mov_b32 s{S_CODE+2}, CODE_END_BYTES
    s_mov_b32 s{S_CODE+3}, 0x20000
    s_lshr_b32 s{S_T0}, s2, 3
    s_and_b32 s{S_T0}, s{S_T0}, 7
    s_lshl_b32 s{S_T0}, s{S_T0}, 2
    s_add_u32 s{S_T0}, s{S_T0}, s{S_WID}
    s_mul_i32 s{S_T0}, s{S_T0}, {CODE_LINES // 32 * 128}
    v_lshlrev_b32 v12, 7, v0
    v_add_u32 v12, s{S_T0}, v12
    v_cmp_lt_u32 vcc, 15, v0
    s_nop 1
    v_cndmask_b32 v12, v12, v11, vcc
    """)
    a(f"""
    s_and_b32 s{S_T0}, s{S_OC}, 1
    s_lshl_b32 s{S_T0}, s{S_T0}, 9
    s_mul_i32 s{S_T1}, s{S_WID}, 10
    s_add_u32 s{S_T0}, s{S_T0}, s{S_T1}
    s_lshl_b32 s{S_T0}, s{S_T0}, 11
    s_lshl_b32 s{S_T1}, s{S_OJ}, 7
    s_add_u32 s{S_QB}, s{S_T0}, s{S_T1}
    v_cmp_lt_u32 vcc, 9, v0
    v_lshlrev_b32 v0, 11, v0
    s_nop 0
    v_cndmask_b32 v0, v0, v11, vcc
    """)
    a("L_pcref:")
    common_setup()
    for r in range(ACC, 256):
        a(f"v_mov_b32 v{r}, 0")
    a(f"""
    s_mov_b32 s{S_ASL}, 0
    s_mov_b32 s{S_BSL}, 0
    s_mov_b32 s{S_CNT}, {MB}
    s_barrier
    """)
    stamp(1)
    VTOUCH = opts.get("vtouch", 0)
    for b in range(3, LOOK if VTOUCH else 0):
        a(f"s_mov_b32 s{S_T0}, {64*6144*b}")
        a(f"buffer_load_dword v7, v6, {sr(S_W,4)}, s{S_T0} offen")
        a(f"buffer_load_dword v7, v5, {sr(S_X,4)}, 0 offen offset:{128*b}")
    if opts.get("codetouch", 1):
        a(f"buffer_load_dword v7, v12, {sr(S_CODE,4)}, 0 offen")
    EARLY = opts.get("eep", 0)
    if EARLY:
        a(f"""
        s_cmp_lg_u32 s{S_WID}, 0
        s_cbranch_scc1 L_noadd
        v_mov_b32 v5, 1
        v_mov_b32 v6, 0
        s_mov_b64 exec, 1
        buffer_atomic_add v5, v6, {sr(S_DBG,4)}, 0 offen sc0
        s_mov_b64 exec, -1
        L_noadd:
        """)
    def rdX(rb, va, off=0):
        a.lds(f"ds_read_b128 {vr(xf(rb),4)}, v{va} offset:{2048*rb+off}", f"x{rb}")
    def rdW(sl, col, half, off=0):
        a.lds(f"ds_read_b64_tr_b16 {vr(wf(sl)+2*half,2)}, v{VB+(col&1)} offset:{off+SEG[col]*1024+half*512}", f"w{sl}")
    def mf(rb, col, sl):
        d = vr(acc(rb, col), 4)
        if col in (2, 3):
            a(f"v_mfma_f32_16x16x32_bf16 {d}, {vr(xf(rb),4)}, {vr(wf(sl),4)}, {d}")
        else:
            a(f"v_mfma_f32_16x16x32_bf16 {d}, {vr(wf(sl),4)}, {vr(xf(rb),4)}, {d}")
    for rb in range(8):
        if rb < 3:
            rdW(rb, rb, 0); rdW(rb, rb, 1)
        rdX(rb, VA)
    q0 = list(a.q)
    a("L_cloop:\n; ---- phase 1 main loop: two k32 units per iteration, one barrier per unit")
    for kk in range(2):
        fill = {}
        for i, (c, h) in enumerate([(c, h) for c in (3, 4, 5) for h in (0, 1)]):
            fill[i] = (lambda c=c, h=h: rdW(c, c, h))
        for i, x in enumerate(L(f"""
            s_add_u32 s{S_T0}, s{S_BSL}, {B_SLOT}
            s_cmp_eq_u32 s{S_T0}, {5*B_SLOT}
            s_cselect_b32 s{S_T0}, 0, s{S_T0}
            s_sub_u32 s{S_DB}, s{S_T0}, s{S_BSL}
            s_mov_b32 s{S_BSL}, s{S_T0}
            """)): fill[6 + i] = (lambda x=x: a(x))
        fill[12] = lambda: a(f"v_add_u32 v{VB}, s{S_DB}, v{VB}")
        fill[13] = lambda: a(f"v_add_u32 v{VB+1}, s{S_DB}, v{VB+1}")
        if kk == 1:
            for i, x in enumerate(L(f"""
                s_add_u32 s{S_T0}, s{S_ASL}, {A_SLOT}
                s_cmp_eq_u32 s{S_T0}, {3*A_SLOT}
                s_cselect_b32 s{S_T0}, 0, s{S_T0}
                s_sub_u32 s{S_DA}, s{S_T0}, s{S_ASL}
                s_mov_b32 s{S_ASL}, s{S_T0}
                v_add_u32 v{VA}, s{S_DA}, v{VA}
                v_add_u32 v{VA+1}, s{S_DA}, v{VA+1}
                """)): fill[14 + i] = (lambda x=x: a(x))
        m = 0
        for rb in range(8):
            if rb == 0: a.wait_lds("w0", "w1", "w2", "x3")
            if rb == 4: a.wait_lds("x7")
            for c in range(3):
                mf(rb, c, c)
                if m in fill: fill[m]()
                m += 1
        a.wait_lds_all()
        if not opts.get("x_nobar"): a("s_barrier")
        pend = [(c, h) for c in (0, 1, 2) for h in (0, 1)]
        m = 0
        for rb in range(8):
            for c in range(3, 6):
                mf(rb, c, c)
                if c == 5: rdX(rb, VA + (kk ^ 1))
                elif pend:
                    cc, h = pend.pop(0); rdW(cc, cc, h)
                elif kk == 1 and m == 18: a(f"s_sub_u32 s{S_CNT}, s{S_CNT}, 1")
                elif kk == 1 and m == 19: a(f"s_cmp_lg_u32 s{S_CNT}, 0")
                m += 1
        if kk == 0: qmid = list(a.q)
        else: assert a.q == qmid
    assert qmid == q0, (qmid, q0)
    a("s_cbranch_scc1 L_cloop")
    qsave = list(a.q); stamp("main"); a.q = qsave
    VAH = 56; VLN = 58; VG2 = 59; VQ = 60
    u0 = 2 * MB
    if EARLY:
        assert not VTOUCH
        a(f"""
        s_cmp_lg_u32 s{S_WID}, 0
        s_cbranch_scc1 L_noep
        s_waitcnt vmcnt(0)
        v_readfirstlane_b32 s{S_T0}, v5
        s_cmp_lg_u32 s{S_T0}, 255
        s_cbranch_scc1 L_noep
        v_mov_b32 v5, s{S_NON}
        s_mov_b32 s{S_T1}, {WS_FLAG}
        s_mov_b64 exec, 1
        buffer_store_dword v5, v6, {sr(S_WS,4)}, s{S_T1} offen sc1
        s_mov_b64 exec, -1
        L_noep:
        """)
    a(f"""
    v_mbcnt_lo_u32_b32 v0, -1, 0
    v_mbcnt_hi_u32_b32 v0, -1, v0
    v_add_u32 v{VA}, {(-(MB % 3)*A_SLOT) & 0xffffffff:#x}, v{VA}
    v_add_u32 v{VA+1}, {(-(MB % 3)*A_SLOT) & 0xffffffff:#x}, v{VA+1}
    v_add_u32 v{VB}, {(-(u0 % 5)*B_SLOT) & 0xffffffff:#x}, v{VB}
    v_add_u32 v{VB+1}, {(-(u0 % 5)*B_SLOT) & 0xffffffff:#x}, v{VB+1}
    """)
    def rdXs(rb, slot, kk):
        if slot < 65536: rdX(rb, VA + kk, slot)
        else: rdX(rb, VAH + kk, slot - 65536)
    def rdWkv(sl, col, half, u):
        a.lds(f"ds_read_b64_tr_b16 {vr(wf(sl)+2*half,2)}, v{VB+(col&1)} offset:{kvslot(u)-B_BASE+(col>>1)*1024+half*512}", f"w{sl}")
    def rdWq(sl, j, half, i, kk):
        a.lds(f"ds_read_b64_tr_b16 {vr(wf(sl)+2*half,2)}, v{VQ+j} offset:{qslot(i,kk)-B_BASE+half*512}", f"w{sl}")
    for u in range(u0, 32):
        blk, kk = divmod(u, 2)
        pend = [(3, 0), (3, 1)] if u == u0 else [(2, 0), (2, 1), (3, 0), (3, 1)]
        for rb in range(8):
            if rb == 0: a.wait_lds("w0", "w1", "x3")
            if rb == 4: a.wait_lds("x7")
            for c in range(2):
                mf(rb, c, c)
                if pend:
                    cc, h = pend.pop(0)
                    if u == u0: rdW(cc, cc, h, (u0 % 5) * B_SLOT)
                    else: rdWkv(cc, cc, h, u)
            if u == u0 and rb == 2:
                a(f"""
                v_add_u32 v{VAH}, 0x10000, v{VA}
                v_add_u32 v{VAH+1}, 0x10000, v{VA+1}
                v_lshrrev_b32 v{VG2}, 4, v0
                v_lshlrev_b32 v{VG2}, 10, v{VG2}
                v_sub_u32 v{VB}, v{VB}, v{VG2}
                v_sub_u32 v{VB+1}, v{VB+1}, v{VG2}
                v_sub_u32 v{VQ}, v{VB}, v{VG2}
                v_sub_u32 v{VQ+1}, v{VB+1}, v{VG2}
                v_lshlrev_b32 v{VLN}, 4, v0
                """)
            if kk == 0 and rb == 5 and blk + LOOK < 16 and VTOUCH:
                a(f"buffer_load_dword v7, v6, {sr(S_W,4)}, s{S_KB} offen")
                a(f"s_add_u32 s{S_KB}, s{S_KB}, {64*6144}")
            if kk == 0 and rb == 6 and blk + LOOK < 16 and VTOUCH:
                a(f"buffer_load_dword v7, v5, {sr(S_X,4)}, s{S_KA} offen")
                a(f"s_add_u32 s{S_KA}, s{S_KA}, 128")
        a.wait_lds_all()
        a("s_barrier")
        if u == 31: break
        for rb in range(8):
            for c in (2, 3):
                mf(rb, c, c)
                if rb < 4 and c == 2: rdWkv(rb >> 1, rb >> 1, rb & 1, u + 1)
            rdXs(rb, (((u + 1) // 2) % 3) * A_SLOT, (u + 1) % 2)
    S_G = S_ASL; S_LK = S_KB
    KVSC = ["", " sc1", " nt", " sc0"][opts.get("kvsc", 1)]
    def pack(rd, ra, rb_):
        return [f"v_cvt_pk_bf16_f32 v{rd}, v{ra}, v{ra+1}", f"v_cvt_pk_bf16_f32 v{rd+1}, v{ra+2}, v{ra+3}",
                f"v_cvt_pk_bf16_f32 v{rd+2}, v{rb_}, v{rb_+1}", f"v_cvt_pk_bf16_f32 v{rd+3}, v{rb_+2}, v{rb_+3}"]
    def swap(ra):
        return [f"v_permlane16_swap_b32 v{ra}, v{ra+2}", f"v_permlane16_swap_b32 v{ra+1}, v{ra+3}"]
    frs = []
    for tb in range(4):
        frs.append((acc(2*tb, 0), acc(2*tb, 0), acc(2*tb+1, 0), tb, 0))
        frs.append((acc(2*tb, 1), acc(2*tb, 1), acc(2*tb+1, 1), tb, 1))
        frs.append((acc(2*tb, 2), acc(2*tb, 2), acc(2*tb, 3), tb, 2))
        frs.append((acc(2*tb, 3), acc(2*tb+1, 2), acc(2*tb+1, 3), tb, 3))
    C_LDS = LDS_BYTES - 8192
    assert all(it["lds"] + it["size"] <= C_LDS for it in items if it["free"] > 31)
    assert D == 3
    qfr = [(acc(2*tb, 4+f), acc(2*tb+1, 4+f), tb, f) for tb in range(4) for f in range(2)]
    order = [i for i in range(16) if frs[i][4] < 2] + [i for i in range(16) if frs[i][4] >= 2]
    NSQ = opts.get("nsq", 12)
    stores = []
    def kv_store(vl):
        rd, _, _, tb, sl = frs[stores.pop(0)]
        a(f"s_add_u32 s{S_T3}, s{S_G}, {tb*4096}")
        a(f"buffer_store_dwordx4 {vr(rd,4)}, v{vl}, {sr(S_WS,4)}, s{S_T3} offen offset:{sl*1024}{KVSC}")
    def publish(vt):
        a(f"""
        s_lshl_b32 s{S_U0}, s{S_P}, 7
        s_lshl_b32 s{S_U1}, s{S_HP}, 3
        s_add_u32 s{S_U0}, s{S_U0}, s{S_U1}
        s_add_u32 s{S_U0}, s{S_U0}, s{S_C}
        s_lshl_b32 s{S_U0}, s{S_U0}, 7
        s_lshl_b32 s{S_U1}, s{S_WID}, 3
        s_add_u32 s{S_U0}, s{S_U0}, s{S_U1}
        s_add_u32 s{S_U0}, s{S_U0}, {WS_FKV}
        v_mov_b32 v{vt}, s{S_NON}
        v_mov_b32 v{vt+1}, s{S_TAG}
        v_mov_b32 v{vt+2}, 0
        s_sub_u32 s{S_KA}, s{S_U0}, 128
        s_waitcnt vmcnt(0)
        s_mov_b64 exec, 1
        buffer_store_dwordx2 v[{vt}:{vt+1}], v{vt+2}, {sr(S_WS,4)}, s{S_U0} offen sc1
        s_mov_b64 exec, -1
        s_nop 3
        """)
        qs = list(a.q); stamp("pub"); a.q = qs
    def qpass(th):
        side = L(f"""
        s_add_u32 s{S_G}, s{S_KVB}, {th << 14}
        s_lshl_b32 s{S_LK}, s{S_HH}, 14
        s_add_u32 s{S_LK}, s{S_LK}, {th << 13}
        v_add_u32 v{VG2}, s{S_LK}, v{VLN}
        v_add_u32 v{VG2+3}, {R_K}, v{VG2}
        """)
        for n, i in enumerate(order + [None]):
            if n == 8: side.append(("vwait",))
            if i is not None: side += pack(frs[i][0], frs[i][1], frs[i][2])
            else: side += ["s_nop 1"]
            if n >= 1: side += swap(frs[order[n-1]][0]) + [("ready", order[n-1])]
        side += L(f"""
        s_mov_b32 s{S_M0}, {f32bits(QSCALE)}
        s_mov_b32 s{S_M0+1}, {f32bits(QSCALE)}
        v_add_u32 v{VG2+4}, {LDS_BYTES - 8192}, v{VLN}
        """) + attn_consts0(VLN) + attn_consts2()[17:]
        cread = [f"ds_read_b128 {vr((BD if i < 4 else BF) + 4*(i%4), 4)}, v{VG2+4} offset:{1024*i}" for i in range(8)]
        ready = set()
        stores[:] = list(order)
        done = [-16]
        def emit_side(n):
            while side and n > 0:
                x = side[0]
                if x == ("vwait",):
                    if done[0] < 4: return
                    side.pop(0); continue
                side.pop(0)
                if isinstance(x, tuple): ready.add(x[1])
                else: a(x); n -= 1
        nm = 32 * D
        st_first, st_mid, st_last = opts.get("st0", -6), opts.get("stm", 40), nm - opts.get("st1", 8)
        st_pub = opts.get("stp", 76)
        kw = order[:8]; vw = order[8:]
        def stage(lst):
            rd, _, _, tb, sl = frs[lst.pop(0)]
            a.lds(f"ds_write_b128 v{VG2 if sl >= 2 else VG2+3}, {vr(rd,4)} offset:{tb*2048+(sl&1)*1024}", "kw")
        def after_mfma(j, last):
            done[0] += 1
            d = done[0]
            emit_side(opts.get("spm", 2))
            nd = 16 - len(stores)
            if th == 1:
                if stores and stores[0] in ready and d >= st_first + (st_mid - st_first) * nd // 16: kv_store(VLN)
                if d == st_pub: publish(4)
            elif nd < NSQ and stores[0] in ready and d >= st_mid + (st_last - st_mid) * nd // NSQ: kv_store(VLN)
            if j == 1 and kw and kw[0] in ready: stage(kw)
            if j == 1 and last and vw and not kw: stage(vw)
            if j == 0 and last and cread and order[-1] in ready and not side: a.lds(cread.pop(0), "cr")
        for rb in range(8):
            for c in (2, 3):
                mf(rb, c, c)
                if rb < 4 and c == 2: rdWq(rb >> 1, rb >> 1, rb & 1, 0, 0)
                after_mfma(c - 2, False)
            rdXs(rb, aslot_q[qorder[0]], 0)
        qsave = list(a.q); stamp(2); a.q = qsave
        for i, b in enumerate(qorder):
            last = (i == D - 1)
            for kk in range(2):
                cur = (0, 1) if kk == 0 else (2, 3)
                if kk == 0: pend = [(2, 0, 0), (2, 0, 1), (3, 1, 0), (3, 1, 1)]
                else: pend = [] if last else [(0, 0, 0), (0, 0, 1), (1, 1, 0), (1, 1, 1)]
                if kk == 1 and not last: a("s_barrier")
                for rb in range(8):
                    if rb == 0: a.wait_lds(f"w{cur[0]}", f"w{cur[1]}", "x3")
                    if rb == 4: a.wait_lds("x7")
                    for j in range(2):
                        mf(rb, 4 + j, cur[j])
                        if pend:
                            sl, jj, h = pend.pop(0)
                            rdWq(sl, jj, h, i, 1) if kk == 0 else rdWq(sl, jj, h, i + 1, 0)
                        after_mfma(j, last)
                    if kk == 0: rdXs(rb, aslot_q[b], 1)
                    elif not last: rdXs(rb, aslot_q[qorder[i+1]], 0)
                    if last and kk == 1 and rb >= 3 and rb % 2 == 1:
                        a("s_nop 1")
                        for f in range(2):
                            ra, rb_, _, _ = qfr[(rb - 3) + f]
                            for r in (ra, ra+2, rb_, rb_+2):
                                a(f"v_pk_mul_f32 v[{r}:{r+1}], v[{r}:{r+1}], s[{S_M0}:{S_M0+1}]")
                            for x in pack(ra, ra, rb_): a(x)
                        a("s_nop 0")
                        for f in range(2):
                            for x in swap(qfr[(rb - 3) + f][0]): a(x)
        assert not cread and not side and not kw and not vw and len(stores) == (0 if th else 16 - NSQ), (len(side), stores, kw, vw, cread)
        a.wait_lds_all()
    assert not a.q
    a(f"s_cmp_eq_u32 s{S_TH}, 1")
    a("s_cbranch_scc1 L_q1")
    qpass(0)
    deferred = list(stores)
    a("s_branch L_qe")
    a("L_q1:")
    qpass(1)
    a("L_qe:")
    stamp("qend")
    a("s_barrier")
    a(f"v_add_u32 v{VG2+1}, {R_Q}, v{VG2}")
    for f in range(2):
        ra, rb_, _, _ = qfr[6 + f]
        for r in (ra, ra+2, rb_, rb_+2):
            a(f"v_pk_mul_f32 v[{r}:{r+1}], v[{r}:{r+1}], s[{S_M0}:{S_M0+1}]")
        for x in pack(ra, ra, rb_): a(x)
    for i in range(6):
        r, _, tb, f = qfr[i]
        a(f"ds_write_b128 v{VG2+1}, {vr(r,4)} offset:{tb*2048+f*1024}")
    for f in range(2):
        for x in swap(qfr[6 + f][0]): a(x)
    a(f"v_mov_b32 v1, v{VLN}")
    for i in (6, 7):
        r, _, tb, f = qfr[i]
        a(f"ds_write_b128 v{VG2+1}, {vr(r,4)} offset:{tb*2048+f*1024}")
    a("s_setprio 1")
    a("s_branch L_attn")
    a("L_loader:\n; ---- phase 1, staging waves: statically scheduled LDS-DMA stream")
    if stamps: a("\n".join(f"s_mov_b32 s{r}, s4" for r in [5, 6, 7, 8, 9, 14]))
    VOA = 2; VOB = 6
    a(f"""
    s_sub_u32 s{S_T3}, s{S_WID}, 4
    v_lshrrev_b32 v10, 3, v0
    v_and_b32 v11, 7, v0
    v_lshrrev_b32 v12, 1, v10
    v_xor_b32 v13, v11, v12
    v_xor_b32 v14, 4, v13
    s_lshl_b32 s{S_T0}, s{S_T3}, 16
    v_lshlrev_b32 v15, 11, v10
    v_add_u32 v15, s{S_T0}, v15
    v_lshl_add_u32 v{VOA}, v13, 4, v15
    v_lshl_add_u32 v{VOA+1}, v14, 4, v15
    v_add_u32 v{VOA+1}, {16384-1024}, v{VOA+1}
    v_add_u32 v{VOA+2}, {2*(16384-1024)}, v{VOA}
    v_add_u32 v{VOA+3}, {2*(16384-1024)}, v{VOA+1}
    s_lshl_b32 s{S_LA}, s{S_T3}, 12
    """)
    def issue(it, tag):
        k = it["kind"]
        if opts.get("x_noload") and 4 <= it["need"] < 2*MB: return
        if k == "A":
            a(f"s_mov_b32 s{S_KA}, {it['hf']*128*2048 + it['blk']*128}")
            a(f"s_add_u32 m0, s{S_LA}, {it['lds']}")
            a("s_nop 0")
            for i in range(4): a.vm(f"buffer_load_dwordx4 v{VOA+i}, {sr(S_X,4)}, s{S_KA} offen offset:{1024*i} lds", tag)
        elif k == "B":
            a(f"s_mov_b32 s{S_KB}, {it['u']*32*6144}")
            a(f"s_add_u32 m0, s{S_LB}, {it['lds']}")
            a("s_nop 0")
            for i in range(3): a.vm(f"buffer_load_dwordx4 v{VOB+i}, {sr(S_W,4)}, s{S_KB} offen offset:{1024*i} lds", tag)
        elif k == "KV":
            a(f"s_mov_b32 s{S_KB}, {it['u']*32*6144 + 1024}")
            a(f"s_add_u32 m0, s{S_ASL}, {it['lds']}")
            a("s_nop 0")
            for i in range(2): a.vm(f"buffer_load_dwordx4 v{VOB+1+i}, {sr(S_W,4)}, s{S_KB} offen offset:{1024*i} lds", tag)
        else:
            a(f"s_mov_b32 s{S_KB}, {it['u']*32*6144}")
            a(f"s_add_u32 m0, s{S_BSL}, {it['lds']}")
            a("s_nop 0")
            a.vm(f"buffer_load_dwordx4 v{VOB}, {sr(S_W,4)}, s{S_KB} offen lds", tag)
    a.vq = []
    issue(items[0], "n0")
    a(f"""
    v_and_b32 v12, 1, v12
    s_and_b32 s{S_T0}, s{S_T3}, 1
    s_lshl_b32 s{S_T0}, s{S_T0}, 1
    v_or_b32 v12, s{S_T0}, v12
    v_lshlrev_b32 v12, 1, v12
    v_xor_b32 v13, v11, v12
    s_mul_i32 s{S_T0}, s{S_T3}, {8*6144}
    s_lshl_b32 s{S_T1}, s{S_HP}, 7
    s_add_u32 s{S_T0}, s{S_T0}, s{S_T1}
    v_mul_u32_u24 v15, 6144, v10
    v_add_u32 v15, s{S_T0}, v15
    v_lshl_add_u32 v{VOB}, v13, 4, v15
    v_add_u32 v{VOB+1}, {2048-1024}, v{VOB}
    v_add_u32 v{VOB+2}, {2*(2048-1024)}, v{VOB}
    s_mul_i32 s{S_LB}, s{S_T3}, 3072
    s_lshl_b32 s{S_ASL}, s{S_T3}, 11
    s_lshl_b32 s{S_BSL}, s{S_T3}, 10
    """)
    st_sched = {}
    def ST(k, x):
        st_sched.setdefault(k, []).append(x)
        if x.startswith("s_load") and opts.get("s2", 1):
            head, off = x.rsplit(", ", 1)
            st_sched[k].append(f"{head}, {int(off) + 64}")
    TW, TX, TO, TO2 = 16, 18, 20, 24
    if opts.get("stouch", 1):
        lead = opts.get("slead", 8)
        for i in range(8):
            k = max(4*i - lead, i)
            for seg in range(3): ST(k, f"s_load_dword s22, s[{TW}:{TW+1}], {seg*2048}")
            ST(k, f"s_add_u32 s{TW}, s{TW}, {128*6144}"); ST(k, f"s_addc_u32 s{TW+1}, s{TW+1}, 0")
        for j in range(16): ST(j // 8, f"s_load_dword s22, s[{TX}:{TX+1}], {j*2048 + 3*128}")
        for j in range(16): ST(opts.get("sx11", 6) + j // 2, f"s_load_dword s22, s[{TX}:{TX+1}], {j*2048 + 11*128}")
        for j in range(16): ST(opts.get("swo", 14) + j // 2, f"s_load_dword s22, s[{TO}:{TO+1}], {(j//2)*2048 + (3 + 8*(j&1))*128}")
        woa = opts.get("woa", 16)
        if woa < 16:
            R = (16 - woa) * 32 // 128
            lst = [(kh, j, l) for kh in range(2) for j in range(R) for l in range(16) if l % 8 != 3]
            k0, k1 = opts.get("wk0", 14), opts.get("wk1", 31)
            for i, (kh, j, l) in enumerate(lst):
                ST(k0 + i * (k1 - k0) // len(lst), f"s_load_dword s22, s[{TO2}:{TO2+1}], {kh*512*2048 + j*2048 + l*128 - 0x80000}")
    def st_setup():
        a(f"""
        s_lshr_b32 s{S_T0}, s2, 3
        s_lshl_b32 s{S_T0}, s{S_T0}, 2
        s_add_u32 s{S_T0}, s{S_T0}, s{S_WID}
        s_sub_u32 s{S_T0}, s{S_T0}, 4              ; n = slot*4 + w
        s_mul_i32 s{S_T1}, s{S_T0}, 6144
        s_or_b32 s{S_T2}, s{S_HP}, 3
        s_lshl_b32 s{S_T2}, s{S_T2}, 7
        s_add_u32 s{S_T1}, s{S_T1}, s{S_T2}
        s_add_u32 s{TW}, s{S_W}, s{S_T1}
        s_addc_u32 s{TW+1}, s{S_W+1}, 0
        s_lshl_b32 s{S_T1}, s{S_T0}, 15
        s_lshl_b32 s{S_T2}, s{S_C}, 19
        s_sub_u32 s{TX}, s{S_X}, s{S_T2}
        s_subb_u32 s{TX+1}, s{S_X+1}, 0
        s_add_u32 s{TX}, s{TX}, s{S_T1}
        s_addc_u32 s{TX+1}, s{TX+1}, 0
        s_lshl_b32 s{S_T1}, s{S_T0}, 14
        s_add_u32 s{TO}, s{S_WO}, s{S_T1}
        s_addc_u32 s{TO+1}, s{S_WO+1}, 0
        s_mul_i32 s{S_T1}, s{S_T0}, {(16 - opts.get("woa", 16)) * 32 // 128 * 2048}
        s_add_u32 s{S_T1}, s{S_T1}, {32 * opts.get("woa", 16) * 2048 + 0x80000}
        s_add_u32 s{TO2}, s{S_WO}, s{S_T1}
        s_addc_u32 s{TO2+1}, s{S_WO+1}, 0
        """)
    pendq = items[1:]
    for k in range(-1, nst):
        budget = opts.get("pro", 14) if k < 0 else (opts.get("bud0", 10) if k < 4 else (opts.get("bud", 7) if k < 31 else 10))
        for it in list(pendq):
            if it["after"] <= k and it["need"] <= k + 6 and (budget >= it["n"] or it["need"] <= k + 2):
                pendq.remove(it); issue(it, f"n{it['need']}"); budget -= it["n"]
        if k == -1:
            common_setup(); st_setup()
        for x in st_sched.get(k, []): a(x)
        if k == opts.get("wvt", 99):
            a(f"""
            s_and_b32 s{S_T0}, s{S_OC}, 1
            s_lshl_b32 s{S_T0}, s{S_T0}, 2
            s_add_u32 s{S_T0}, s{S_T0}, s{S_WID}
            s_sub_u32 s{S_T0}, s{S_T0}, 4
            s_lshl_b32 s{S_T0}, s{S_T0}, 18
            s_lshl_b32 s{S_T1}, s{S_OJ}, 7
            s_add_u32 s{S_T0}, s{S_T0}, s{S_T1}
            v_lshlrev_b32 v9, 11, v0
            s_add_u32 s{S_T1}, s{S_T0}, 0x20000
            """)
            a.vm(f"buffer_load_dword v10, v9, {sr(S_WO,4)}, s{S_T0} offen", "wt")
            a.vm(f"buffer_load_dword v10, v9, {sr(S_WO,4)}, s{S_T1} offen", "wt")
        if 18 <= k < 28:
            if k == 18:
                a("v_lshlrev_b32 v1, 4, v0")
                lc = [x for x in attn_consts0(1) + attn_consts1() + attn_consts2() if not x.startswith(f"s_lshl_b32 s{S_LA},")]
                lc.append(f"v_add_u32 v{CT}, {LDS_BYTES - 8192}, v1")
                lc = [x.replace(f"s{S_T0}", "s26").replace(f"s{S_T1}", "s27") for x in lc]
                per = -(-len(lc) // 10)
            for x in lc[(k-18)*per:(k-17)*per]: a(x)
        if k == 32:
            a(f"s_lshl_b32 s{S_LA}, s{S_WID}, 10")
            for i in range(8): a(f"ds_write_b128 v{CT}, {vr((BD if i < 4 else BF) + 4*(i%4), 4)} offset:{1024*i}")
            a("s_waitcnt lgkmcnt(0)")
        if k + 1 < nst:
            assert not any(it["need"] <= k + 1 for it in pendq), k
            a.wait_vm(*[f"n{j}" for j in range(k + 2)])
            if not (opts.get("x_nobar") and 0 <= k < 2*MB): a("s_barrier")
            elif opts.get("x_nobar") == 2: a("s_sleep 10")
    assert not pendq and set(a.vq) <= {"wt"}, (pendq, a.vq)
    a("s_barrier")
    VL = 1; VT = 4
    a("L_attn:\n; ---- phase 2: attention; four specialised streams (query-block pairs u, 7-u)")
    a(f"""
    s_lshr_b32 s{S_T0}, s{S_WID}, 1
    s_waitcnt lgkmcnt(0)
    s_barrier
    """)
    stamp(3)
    a(f"""
    s_cmp_eq_u32 s{S_T0}, 1
    s_cbranch_scc1 L_u1
    s_cmp_eq_u32 s{S_T0}, 2
    s_cbranch_scc1 L_u2
    s_cmp_eq_u32 s{S_T0}, 3
    s_cbranch_scc1 L_u3
    """)
    def wo_dma(step, vw=VW, both=False):
        a(f"s_add_u32 m0, s{S_LA}, {wo_slot(step)}")
        a(f"s_mov_b32 s{S_T3}, {step*32*2048}")
        a.vm(f"buffer_load_dwordx4 v{vw}, {sr(S_WO,4)}, s{S_T3} offen lds", f"d{step}")
        if both:
            a(f"s_xor_b32 s{S_T2}, s{S_LA}, 4096")
            a(f"s_add_u32 m0, s{S_T2}, {wo_slot(step)}")
            a("s_nop 0")
            a.vm(f"buffer_load_dwordx4 v{VW2}, {sr(S_WO,4)}, s{S_T3} offen lds", f"d{step}")
    def run_tasks(tasks, hooks, first_touch):
        n = len(tasks)
        def rdK(i):
            for f in range(2):
                a.lds(f"ds_read_b128 {vr(KF+4*f,4)}, v{VKP if tasks[i][4] else VK} offset:{tasks[i][1]+1024*f}", f"k{f}")
        def rdV(i):
            for f in range(2):
                a.lds(f"ds_read_b128 {vr(VF+4*f,4)}, v{VVP if tasks[i][4] else VV} offset:{tasks[i][2]+1024*f}", f"v{f}")
        def qk(i, f):
            u, _, _, bias, _ = tasks[i]
            q = QA if u == "A" else QB
            s = vr(SS[i % 2], 16)
            c = s if f else (vr(bias, 16) if bias is not None else "0")
            a.wait_lds(f"k{f}")
            a(f"v_mfma_f32_32x32x16_bf16 {s}, {vr(KF+4*f,4)}, {vr(q+4*f,4)}, {c}")
        def pv(i, f):
            u = tasks[i][0]
            o = vr(OA if u == "A" else OB, 16)
            c = "0" if (u in first_touch and f == 0) else o
            a.wait_lds(f"v{f}")
            a(f"v_mfma_f32_32x32x16_bf16 {o}, {vr(VF+4*f,4)}, {vr(PP[i%2]+4*f,4)}, {c}")
        def sm(i, f):
            u = tasks[i][0]
            l = vr(LA if u == "A" else LB, 4)
            c = l
            if u in first_touch and f == 0:
                c = "0"; first_touch.discard(u)
            a(f"v_mfma_f32_16x16x32_bf16 {l}, {vr(ON,4)}, {vr(PP[i%2]+4*f,4)}, {c}")
        rdK(0)
        qk(0, 0); qk(0, 1)
        if n > 1: rdK(1)
        for i in range(n + 1):
            for h in hooks.get(i, []): h()
            s = SS[i % 2]; p = PP[i % 2]
            ex = [f"v_exp_f32 v{s+r}, v{s+r}" for r in range(16)] if i < n else []
            cv = [f"v_cvt_pk_bf16_f32 v{p+j}, v{s+2*j}, v{s+2*j+1}" for j in range(8)] if i < n else []
            def E(k):
                for _ in range(k):
                    if ex: a(ex.pop(0))
            def C(k):
                for _ in range(k):
                    if cv: a(cv.pop(0))
            if i + 1 < n: qk(i+1, 0)
            if i == 0: a("s_nop 7"); a("s_nop 3")
            if i == n: a("s_nop 1")
            E(3)
            if i >= 1: pv(i-1, 0)
            E(3)
            if i + 1 < n:
                qk(i+1, 1)
                if i + 2 < n: rdK(i+2)
            E(3)
            if i >= 1: pv(i-1, 1)
            if i < n: rdV(i)
            E(3); C(2)
            if i >= 1: sm(i-1, 0)
            E(4); C(1)
            if i >= 1: sm(i-1, 1)
            C(5)
    uid = [0]
    def finalize(U, qb_expr):
        O, Ls = (OA, LA) if U == "A" else (OB, LB)
        uid[0] += 1
        a(f"""
        {qb_expr}
        s_nop 3
        v_cmp_le_f32 s[{S_M0}:{S_M0+1}], s{S_LO}, v{Ls}
        v_cmp_ge_f32 s[{S_M1}:{S_M1+1}], s{S_HI}, v{Ls}
        s_lshl_b32 s{S_T0}, s{S_QB}, 16
        s_add_u32 s{S_T0}, s{S_T0}, s{S_OB}
        s_and_b64 s[{S_M0}:{S_M0+1}], s[{S_M0}:{S_M0+1}], s[{S_M1}:{S_M1+1}]
        s_cmp_eq_u64 s[{S_M0}:{S_M0+1}], -1
        s_cbranch_scc1 L_ok{uid[0]}
        s_call_b64 s[{S_RET}:{S_RET+1}], L_slow{U}
        L_ok{uid[0]}:
        v_rcp_f32 v{Ls+1}, v{Ls}
        s_nop 0
        """)
        for r in range(16): a(f"v_mul_f32 v{O+r}, v{O+r}, v{Ls+1}")
        for j in range(8): a(f"v_cvt_pk_bf16_f32 v{O+j}, v{O+2*j}, v{O+2*j+1}")
        a.vm(f"buffer_store_dwordx4 {vr(O,4)}, v{VO}, {sr(S_WS,4)}, s{S_T0} offen sc1", "o" + U)
        a.vm(f"buffer_store_dwordx4 {vr(O+4,4)}, v{VO}, {sr(S_WS,4)}, s{S_T0} offen offset:512 sc1", "o" + U)
    def o_flag(U, qb_expr, alt=None):
        VT = 4 if alt is None else 48
        a(f"""
        {qb_expr}
        s_lshl_b32 s{S_T0}, s{S_QB}, 8
        s_add_u32 s{S_T0}, s{S_T0}, s{S_FO}
        v_mov_b32 v{VT}, s{S_NON}
        v_mov_b32 v{VT+1}, s{S_TAG}
        v_mov_b32 v{VT+2}, 0
        """)
        a.wait_vm("o" + U)
        a("s_mov_b64 exec, 1")
        a.vm(f"buffer_store_dwordx2 v[{VT}:{VT+1}], v{VT+2}, {sr(S_WS,4)}, s{S_T0} offen sc1", "fl")
        a("s_mov_b64 exec, -1")
        a("s_nop 3")
        if U == "B":
            qs = list(a.q); stamp("ofl"); a.q = qs
    VR = 8; VPL = 12; VOUT = 13; VL2 = 14; VRD = 15
    WFR = 16; TMP = 48; ACB = [224, 128]
    ORING = [64, 72, 112, 120, 160, 168, 176, 200, 208, 216]
    OSC = " sc1"
    OPRE = opts.get("opre", 6)
    OAH = opts.get("oahead", 8)
    def ofr(g): return ORING[g % 10]
    def p3_pre():
        a(f"""
        s_lshr_b32 s{S_TH}, s{S_WID}, 2
        s_and_b32 s{S_DB}, s{S_WID}, 3
        s_lshl_b32 s{S_T0}, s{S_P}, 3
        s_add_u32 s{S_T0}, s{S_T0}, s{S_OC}
        s_lshl_b32 s{S_T1}, s{S_T0}, 3
        s_add_u32 s{S_T1}, s{S_T1}, s{S_DB}
        s_lshl_b32 s{S_KB}, s{S_T1}, 8
        s_lshl_b32 s{S_T2}, s{S_TH}, 7
        s_add_u32 s{S_KB}, s{S_KB}, s{S_T2}
        s_add_u32 s{S_KB}, s{S_KB}, {WS_FO}
        v_and_b32 v7, 15, v0
        v_lshlrev_b32 v7, 3, v7
        s_lshl_b32 s{S_KA}, s{S_T1}, 16
        s_lshl_b32 s{S_T2}, s{S_TH}, 14
        s_add_u32 s{S_KA}, s{S_KA}, s{S_T2}
        s_add_u32 s{S_KA}, s{S_KA}, {WS_O + 4*65536}
        v_add_u32 v{CT}, 0x8000, v{VL}
        s_and_b32 s{S_T2}, s{S_OJ}, {opts.get("x_rot", 0)}
        s_lshl_b32 s{S_T2}, s{S_T2}, 10
        s_add_u32 s{S_KA}, s{S_KA}, s{S_T2}
        """)
        a.vm(f"buffer_load_dwordx2 v[2:3], v7, {sr(S_WS,4)}, s{S_KB} offen offset:1024 sc1", "pl")
    def flags_ok():
        a(f"""
        v_cmp_eq_u32 s[{S_M0}:{S_M0+1}], s{S_NON}, v2
        v_cmp_eq_u32 s[{S_M1}:{S_M1+1}], s{S_TAG}, v3
        s_nop 1
        s_and_b64 s[{S_M0}:{S_M0+1}], s[{S_M0}:{S_M0+1}], s[{S_M1}:{S_M1+1}]
        s_cmp_eq_u64 s[{S_M0}:{S_M0+1}], -1
        """)
    def poll(tag, off, vpl):
        a.wait_vm("pl")
        a(f"s_mov_b32 s{S_CNT}, 0x40000")
        a(f"L_op{tag}:")
        flags_ok()
        a(f"""
        s_cbranch_scc1 L_og{tag}
        s_sub_u32 s{S_CNT}, s{S_CNT}, 1
        s_cmp_eq_u32 s{S_CNT}, 0
        s_cbranch_scc1 L_og{tag}
        s_sleep 1
        buffer_load_dwordx2 v[2:3], v{vpl}, {sr(S_WS,4)}, s{S_KB} offen offset:{off} sc1
        s_waitcnt vmcnt(0)
        s_branch L_op{tag}
        L_og{tag}:
        """)
    def o_load(g, vl2=VL2):
        i = g % 16
        if g == 16: a(f"s_sub_u32 s{S_KA}, s{S_KA}, {4*65536 + 3*4096}")
        elif i % 4 == 0 and i: a(f"s_add_u32 s{S_KA}, s{S_KA}, 4096")
        r = ofr(g)
        a.vm(f"buffer_load_dwordx4 {vr(r,4)}, v{VL}, {sr(S_WS,4)}, s{S_KA} offen offset:{(i%4)*1024}{OSC}", f"o{g}")
        a.vm(f"buffer_load_dwordx4 {vr(r+4,4)}, v{vl2}, {sr(S_WS,4)}, s{S_KA} offen offset:{(i%4)*1024}{OSC}", f"o{g}")
    for u in range(4):
        if u: a(f"L_u{u}:")
        qa, qb = u, 7 - u
        a(f"v_add_u32 v{VT}, v{VFL}, v{VL}")
        for f in range(2):
            a.lds(f"ds_read_b128 {vr(QB+4*f,4)}, v{VT} offset:{qb*2048+f*1024}", "q")
        for f in range(2):
            a.lds(f"ds_read_b128 {vr(QA+4*f,4)}, v{VT} offset:{qa*2048+f*1024}", "qa")
        a.wait_lds("q")
        own = lambda U, q: [(U, t*2048, t*2048, None, 0) for t in range(q)] + [(U, q*2048, q*2048, BD, 0)]
        prv = lambda U, q: [(U, q*4096, q*4096, BF, 1)] + [(U, t*4096, t*4096, None, 1) for t in range(q+1, 8)]
        hooks = {}
        def H(i, f): hooks.setdefault(i, []).append(f)
        def poll_issue():
            a(f"""
            s_cmp_eq_u32 s{S_C}, 0
            s_cbranch_scc1 L_np{u}
            v_mov_b32 v{VT+2}, 0
            buffer_load_dwordx2 v[2:3], v{VT+2}, {sr(S_WS,4)}, s{S_KA} offen sc1
            L_np{u}:
            """)
        def kv_dma(j):
            def f():
                a(f"""
                s_cmp_eq_u32 s{S_C}, 0
                s_cbranch_scc1 L_nd{u}_{j}
                s_add_u32 m0, s{S_DB}, {4096*j}
                s_add_u32 s{S_T2}, s{S_DA}, {4096*j}
                """)
                for k in range(4):
                    a(f"buffer_load_dwordx4 v{VL}, {sr(S_WS,4)}, s{S_T2} offen offset:{1024*k} sc1 lds")
                a(f"L_nd{u}_{j}:")
            return f
        def poll_check():
            a(f"""
            s_cmp_eq_u32 s{S_C}, 0
            s_cbranch_scc1 L_got{u}
            s_mov_b32 s{S_CNT}, 0x40000
            L_poll{u}:
            s_waitcnt vmcnt(0)
            v_readfirstlane_b32 s{S_T2}, v2
            v_readfirstlane_b32 s{S_T3}, v3
            s_cmp_eq_u32 s{S_T2}, s{S_NON}
            s_cselect_b32 s{S_T2}, 1, 0
            s_cmp_eq_u32 s{S_T3}, s{S_TAG}
            s_cselect_b32 s{S_T2}, s{S_T2}, 0
            s_cmp_lg_u32 s{S_T2}, 0
            s_cbranch_scc1 L_got{u}
            s_sub_u32 s{S_CNT}, s{S_CNT}, 1
            s_cmp_eq_u32 s{S_CNT}, 0
            s_cbranch_scc1 L_got{u}
            s_sleep 1
            buffer_load_dwordx2 v[2:3], v{VT+2}, {sr(S_WS,4)}, s{S_KA} offen sc1
            s_branch L_poll{u}
            L_got{u}:
            s_add_u32 s{S_DA}, s{S_KVB}, {(u*16384 - 32768) & 0xffffffff}
            s_lshl_b32 s{S_DB}, s{S_HH}, 15
            s_add_u32 s{S_DB}, s{S_DB}, {R_PREV + u*16384}
            """)
            qs = list(a.q); stamp("got"); a.q = qs
        def landed_b():
            a(f"""
            v_mov_b32 v2, s{S_NON}
            v_mov_b32 v3, s{S_TAG}
            s_lshl_b32 s{S_T2}, s{S_HH}, 3
            s_add_u32 s{S_T2}, s{S_T2}, {R_Q + 24576}
            v_mov_b32 v{VFL}, s{S_T2}
            """)
            a.wait_vm_all()
            a.lds(f"ds_write_b64 v{VFL}, v[2:3]", "fw")
        def wait_b():
            a(f"""
            s_lshl_b32 s{S_T2}, s{S_HH}, 3
            s_add_u32 s{S_T2}, s{S_T2}, {R_Q + 24576}
            v_mov_b32 v{VFL}, s{S_T2}
            """)
            a.wait_lds_all()
            wait_landed(0, "b")
        def landed():
            a.wait_lds("qa")
            a(f"""
            v_mov_b32 v2, s{S_NON}
            v_mov_b32 v3, s{S_TAG}
            s_waitcnt vmcnt(0)
            """)
            a.lds(f"ds_write_b64 v{VFL}, v[2:3] offset:{qa*2048}", "fw")
        def wait_landed(th, tag):
            assert not a.q
            a(f"""
            s_mov_b32 s{S_CNT}, 0x400000
            L_wl{u}{tag}:
            ds_read_b64 v[2:3], v{VFL} offset:{th*2048}
            s_waitcnt lgkmcnt(0)
            v_readfirstlane_b32 s{S_T2}, v2
            v_readfirstlane_b32 s{S_T3}, v3
            s_cmp_eq_u32 s{S_T2}, s{S_NON}
            s_cselect_b32 s{S_T2}, 1, 0
            s_cmp_eq_u32 s{S_T3}, s{S_TAG}
            s_cselect_b32 s{S_T2}, s{S_T2}, 0
            s_cmp_lg_u32 s{S_T2}, 0
            s_cbranch_scc1 L_wd{u}{tag}
            s_sub_u32 s{S_CNT}, s{S_CNT}, 1
            s_cmp_eq_u32 s{S_CNT}, 0
            s_cbranch_scc1 L_wd{u}{tag}
            s_sleep 1
            s_branch L_wl{u}{tag}
            L_wd{u}{tag}:
            """)
        if u == 1:
            c1 = opts.get("c1", 1)
            H(0, poll_issue); H(c1, poll_check)
            for j in range(4): H(c1 + j // 2, kv_dma(j))
            H(opts.get("l1", 4), landed)
        if u == 0:
            stores[:] = list(deferred)
            nd = len(deferred); spt = opts.get("spt", 2)
            for j in range(nd): H(j // spt, lambda: kv_store(VL))
            pub = opts.get("pub_at", 3)
            H(pub, lambda: publish(VT)); H(pub, poll_issue)
            c0_ = opts.get("c0", 6)
            H(c0_, poll_check)
            for j in range(4): H(c0_ + j // 2, kv_dma(j))
        ft = {"A", "B"}
        run_tasks(own("B", qb), hooks, ft)
        a.wait_lds_all()
        stamp(4)
        a(f"s_cmp_eq_u32 s{S_C}, 0")
        a(f"s_cbranch_scc1 L_z{u}")
        wait_landed(1, "a")
        a.vq = []
        hooks = {}
        nB = 8 - qb
        qbx = f"s_mov_b32 s{S_QB}, {qb}"
        n23 = nB + qa + 1
        H(nB + 1, lambda: finalize("B", qbx))
        fl = nB + 1 + opts.get("ofl", 2)
        if fl <= n23: H(fl, lambda: o_flag("B", qbx))
        run_tasks(prv("B", qb) + own("A", qa), hooks, ft)
        vq23 = list(a.vq)
        a(f"s_branch L_w{u}")
        a(f"L_z{u}:")
        a.vq = []
        a("s_nop 7")
        finalize("B", qbx)
        run_tasks(own("A", qa), {}, {"A"})
        if fl <= n23: o_flag("B", qbx)
        a.vq = vq23
        a(f"L_w{u}:")
        a.wait_lds_all()
        if u < 2: a("s_setprio 0")
        a("s_barrier")
        stamp(5)
        hooks = {}
        if fl > n23: H(max(fl - n23 - 1, 0), lambda: o_flag("B", qbx))
        nA = 8 - qa
        w0 = max(fl - n23 - 1, 0)
        sts = list(range(11))
        wpt = opts.get("wpt", 3)
        if u == 0:
            H(opts.get("lb", 1), landed_b); w0 = max(w0, opts.get("lb", 1))
        for t in range(w0, nA - 1):
            k = wpt if t < nA - 2 else 12
            for st in sts[:k]: H(t, (lambda s_: (lambda: wo_dma(s_)))(st))
            sts = sts[k:]
        assert not sts
        hooks_c0 = {t: list(v) for t, v in hooks.items()}
        if u: H(2, wait_b)
        H(nA - 1, p3_pre); hooks_c0.setdefault(nA - 1, []).append(p3_pre)
        a(f"s_cmp_eq_u32 s{S_C}, 0")
        a(f"s_cbranch_scc1 L_y{u}")
        vq4 = list(a.vq)
        run_tasks(prv("A", qa)[::-1], hooks, set())
        stamp(7)
        a(f"s_mov_b32 s{S_QB}, {qa}")
        a("s_nop 7")
        a("s_branch L_last")
        a(f"L_y{u}:")
        a.vq = vq4
        for t in sorted(hooks_c0):
            for h in hooks_c0[t]: h()
        a.wait_lds_all()
        stamp(7)
        a(f"s_mov_b32 s{S_QB}, {qa}")
        if u < 3: a("s_branch L_last")
    a("L_last:\n; ---- last attention epilogue, then phase 3: output projection")
    a.vq = ["old"]
    finalize("A", "")
    a.wait_vm("old")
    flags_ok()
    a("s_cbranch_scc0 L_late")
    for g in range(OPRE): o_load(g, CT)
    o_flag("A", "")
    a("s_branch L_p3")
    a("L_late:")
    vq_keep = list(a.vq)
    a.vq = ["oA", "oA"]
    o_flag("A", "")
    a.vm(f"buffer_load_dwordx2 v[2:3], v7, {sr(S_WS,4)}, s{S_KB} offen offset:1024 sc1", "pl")
    poll("1", 1024, 7)
    for g in range(OPRE): o_load(g, CT)
    a("s_waitcnt vmcnt(0)")
    a.vq = vq_keep
    a("L_p3:")
    a(f"""
    v_bfe_u32 v5, v0, 2, 2
    v_bfe_u32 v6, v0, 4, 1
    v_lshl_add_u32 v5, v6, 2, v5
    v_lshlrev_b32 v{VR}, 7, v5
    v_bfe_u32 v6, v5, 1, 2
    v_lshl_add_u32 v{VR}, v6, 5, v{VR}
    v_and_b32 v6, 3, v0
    v_lshl_add_u32 v{VR}, v6, 3, v{VR}
    v_lshrrev_b32 v6, 5, v0
    v_lshl_add_u32 v{VR}, v6, 11, v{VR}
    s_lshl_b32 s{S_T0}, s{S_TH}, 12
    v_add_u32 v{VR}, s{S_T0}, v{VR}
    s_lshl_b32 s{S_T0}, s{S_TH}, 6
    v_xor_b32 v{VR}, s{S_T0}, v{VR}
    v_xor_b32 v{VR+1}, 32, v{VR}
    v_xor_b32 v{VR+2}, 64, v{VR}
    v_xor_b32 v{VR+3}, 0x60, v{VR}
    v_mov_b32 v{VPL}, v7
    v_mov_b32 v{VL2}, v{CT}
    v_mov_b32 v7, v{VW}
    """)
    a("s_barrier")
    stamp(9)
    for st in range(11, 16): wo_dma(st, 7)
    a(f"""
    v_and_b32 v{VOUT}, 15, v0
    v_lshlrev_b32 v{VOUT}, 12, v{VOUT}
    v_bfe_u32 v6, v0, 4, 1
    v_lshl_add_u32 v{VOUT}, v6, 5, v{VOUT}
    v_lshrrev_b32 v6, 5, v0
    v_lshl_add_u32 v{VOUT}, v6, 4, v{VOUT}
    s_lshl_b32 s{S_T0}, s{S_OC}, 8
    s_lshl_b32 s{S_T1}, s{S_DB}, 5
    s_add_u32 s{S_T0}, s{S_T0}, s{S_T1}
    s_lshl_b32 s{S_T0}, s{S_T0}, 12
    s_lshl_b32 s{S_T1}, s{S_P}, 11
    s_add_u32 s{S_T0}, s{S_T0}, s{S_T1}
    s_lshl_b32 s{S_T1}, s{S_OJ}, 7
    s_add_u32 s{S_T0}, s{S_T0}, s{S_T1}
    s_lshl_b32 s{S_T1}, s{S_TH}, 6
    s_add_u32 s{S_DA}, s{S_T0}, s{S_T1}
    s_lshl_b32 s{S_T0}, s{S_WID}, 12
    s_add_u32 s{S_T0}, s{S_T0}, {R_RED}
    v_add_u32 v{VRD}, s{S_T0}, v{VL}
    s_xor_b32 s{S_T0}, s{S_T0}, 0x4000
    v_add_u32 v4, s{S_T0}, v{VL}
    """)
    cur_base = [0]
    def rdWo(g, nb, hh_=None):
        slot = wo_slot(g % 16)
        assert slot & ~0xffff == cur_base[0], (g, nb)
        w = WFR + 16 * (g % 2) + 4 * nb
        for h in (range(2) if hh_ is None else [hh_]):
            a.lds(f"ds_read_b64_tr_b16 {vr(w+2*h,2)}, v{VR+nb} offset:{(slot & 0xffff) + h*1024}", f"w{g%2}_{nb}")
    def rebase(g):
        base = wo_slot(g % 16) & ~0xffff
        if base != cur_base[0]:
            d = (base - cur_base[0]) & 0xffffffff
            for q in range(4): a(f"v_add_u32 v{VR+q}, {d:#x}, v{VR+q}")
            cur_base[0] = base
    def ac(sl, nb, tb): return ACB[sl] + (nb*2 + tb)*4
    KEEP = f"s[{S_CODE}:{S_CODE+1}]"
    def red_send(sl):
        hi = ac(sl, 2, 0)
        return [("lds", f"ds_write_b128 v{VRD}, {vr(hi+4*i,4)} offset:{1024*i}", "rw") for i in range(4)]
    def red_recv(sl):
        lo = ac(sl, 0, 0)
        o = [("lds", f"ds_read_b128 {vr(TMP+4*i,4)}, v4 offset:{1024*i}", f"rr{i}") for i in range(4)]
        for i in range(4):
            o.append(("wait", f"rr{i}"))
            for r in range(4): o.append(f"v_add_f32 v{lo+4*i+r}, v{lo+4*i+r}, v{TMP+4*i+r}")
        for tb in range(2):
            ra, rb_, t = lo + 4*tb, lo + 8 + 4*tb, TMP + 4*tb
            o += [f"v_cvt_pk_bf16_f32 v{t}, v{ra}, v{ra+1}", f"v_cvt_pk_bf16_f32 v{t+1}, v{ra+2}, v{ra+3}",
                  f"v_cvt_pk_bf16_f32 v{t+2}, v{rb_}, v{rb_+1}", f"v_cvt_pk_bf16_f32 v{t+3}, v{rb_+2}, v{rb_+3}"]
        o += [f"s_add_u32 s{S_T0}, s{S_DA}, {(1-sl)*128*4096}", f"s_add_u32 s{S_T1}, s{S_T0}, 0x10000"]
        for tb in range(2): o += swap(TMP + 4*tb)
        o.append("s_nop 0")
        for tb in range(2):
            o.append(("vm", f"buffer_store_dwordx4 {vr(TMP+4*tb,4)}, v{VOUT}, {sr(S_OUT,4)}, s{S_T1 if tb else S_T0} offen{['', ' sc1', ' nt', ' sc0 sc1'][opts.get('outsc', 1)]}", "st"))
        return o
    def emit(x):
        if isinstance(x, str): a(x)
        elif x[0] == "lds": a.lds(x[1], x[2])
        elif x[0] == "vm": a.vm(x[1], x[2])
        else: a.wait_lds(x[1])
    for nb in range(4): rdWo(0, nb)
    side = []
    P2C = opts.get("p2c", 11)
    issued = set()
    def issue_step(x): return max(x - OAH, P2C) if x >= 16 else x - OAH
    for g in range(32):
        sl, st = divmod(g, 16)
        if g == 9:
            a.wait_vm("d15"); a("s_barrier")
        if g == P2C - 2:
            a.vm(f"buffer_load_dwordx2 v[2:3], v{VPL}, {sr(S_WS,4)}, s{S_KB} offen sc1", "pl")
        if g == P2C: poll("0", 0, VPL)
        if g == 16:
            qsave = list(a.q); stamp("mm1"); a.q = qsave
        if g == 17: side = red_send(0)
        if g == 19:
            assert not side
            a.wait_lds("rw"); a("s_barrier"); side = red_recv(0)
        if g == 27:
            assert not side
            a("s_barrier")
        a.wait_vm(f"o{g}")
        if g < 31: rebase(g + 1)
        a.wait_lds(*[f"w{g%2}_{nb}" for nb in range(4)])
        for nb in range(4):
            for tb in range(2):
                d = vr(ac(sl, nb, tb), 4)
                a(f"v_mfma_f32_16x16x32_bf16 {d}, {vr(WFR+16*(g%2)+4*nb,4)}, {vr(ofr(g)+4*tb,4)}, {d if st else '0'}")
                if g < 31: rdWo(g + 1, nb, tb)
                for _ in range(2):
                    if side: emit(side.pop(0))
            if nb in (1, 3):
                due = [x for x in range(OPRE, 32) if x not in issued and issue_step(x) <= g]
                if due:
                    o_load(due[0]); issued.add(due[0])
    stamp(10)
    a("s_nop 7")
    for x in red_send(1): emit(x)
    a.wait_lds_all()
    a("s_barrier")
    for x in red_recv(1): emit(x)
    if stamps:
        a("s_waitcnt vmcnt(0)")
        stamp(11)
        a(f"""
        s_lshl_b32 s{S_T0}, s2, 3
        s_add_u32 s{S_T0}, s{S_T0}, s{S_WID}
        s_lshl_b32 s{S_T0}, s{S_T0}, 6
        s_add_u32 s{S_T0}, s{S_T0}, {WS_STAMP}
        v_mov_b32 v7, 0
        """)
        for i in range(16): a(f"v_mov_b32 v{8+i}, s{4+i}")
        a(f"""
        s_mov_b64 exec, 1
        buffer_store_dwordx4 v[8:11], v7, {sr(S_WS,4)}, s{S_T0} offen
        buffer_store_dwordx4 v[12:15], v7, {sr(S_WS,4)}, s{S_T0} offen offset:16
        buffer_store_dwordx4 v[16:19], v7, {sr(S_WS,4)}, s{S_T0} offen offset:32
        buffer_store_dwordx4 v[20:23], v7, {sr(S_WS,4)}, s{S_T0} offen offset:48
        s_mov_b64 exec, -1
        """)
    if not EARLY: a(f"""
    s_cmp_lg_u32 s{S_WID}, 0
    s_cbranch_scc1 L_end
    v_mov_b32 v4, 1
    v_mov_b32 v7, 0
    s_mov_b64 exec, 1
    buffer_atomic_add v4, v7, {sr(S_DBG,4)}, 0 offen sc0
    s_waitcnt vmcnt(0)
    v_readfirstlane_b32 s{S_T0}, v4
    s_cmp_lg_u32 s{S_T0}, 255
    s_cbranch_scc1 L_end
    v_mov_b32 v4, s{S_NON}
    s_mov_b32 s{S_T1}, {WS_FLAG}
    buffer_store_dword v4, v7, {sr(S_WS,4)}, s{S_T1} offen sc1
    """)
    a(f"""
    L_end:
    s_endpgm
    """)
    for U, O, Ls, Q in (("A", OA, LA, QA), ("B", OB, LB, QB)):
        S = 64; P = 112; K2 = 120; V2 = 160; M = 168; NB = 169; AK = 170; AT = 171
        if U == "A":
            S = SS[0]; P = PP[0]; K2 = KF; V2 = VF; M = SS[1]; NB = M + 1; AK = M + 2; AT = M + 3
        a(f"""
        L_slow{U}:
        v_and_b32 v{AK}, 0x33, v0
        v_bfe_u32 v{AT}, v0, 2, 1
        v_lshl_or_b32 v{AK}, v{AT}, 3, v{AK}
        v_bfe_u32 v{AT}, v0, 3, 1
        v_lshl_or_b32 v{AK}, v{AT}, 2, v{AK}
        v_lshlrev_b32 v{AK}, 4, v{AK}
        v_mov_b32 v{M}, 0xff800000
        s_mov_b32 s{S_U0}, 0
        L_sp{U}:
        s_mov_b32 s{S_U1}, 0
        s_cmp_eq_u32 s{S_C}, 0
        s_cbranch_scc0 L_st{U}
        s_sub_u32 s{S_U1}, 8, s{S_QB}
        L_st{U}:
        s_add_u32 s{S_U2}, s{S_U1}, s{S_QB}
        s_lshl_b32 s{S_U2}, s{S_U2}, 12
        s_add_u32 s{S_U2}, s{S_U2}, s{S_KVB}
        s_sub_u32 s{S_U2}, s{S_U2}, 0x8000
        buffer_load_dwordx4 {vr(K2,4)}, v{AK}, {sr(S_WS,4)}, s{S_U2} offen sc1
        buffer_load_dwordx4 {vr(K2+4,4)}, v{AK}, {sr(S_WS,4)}, s{S_U2} offen offset:1024 sc1
        buffer_load_dwordx4 {vr(V2,4)}, v{VL}, {sr(S_WS,4)}, s{S_U2} offen offset:2048 sc1
        buffer_load_dwordx4 {vr(V2+4,4)}, v{VL}, {sr(S_WS,4)}, s{S_U2} offen offset:3072 sc1
        s_waitcnt vmcnt(0)
        s_cmp_eq_u32 s{S_U1}, 0
        s_cbranch_scc1 L_sf{U}
        s_cmp_eq_u32 s{S_U1}, 8
        s_cbranch_scc1 L_sd{U}
        v_mfma_f32_32x32x16_bf16 {vr(S,16)}, {vr(K2,4)}, {vr(Q,4)}, 0
        s_branch L_sj{U}
        L_sf{U}:
        v_mfma_f32_32x32x16_bf16 {vr(S,16)}, {vr(K2,4)}, {vr(Q,4)}, {vr(BF,16)}
        s_branch L_sj{U}
        L_sd{U}:
        v_mfma_f32_32x32x16_bf16 {vr(S,16)}, {vr(K2,4)}, {vr(Q,4)}, {vr(BD,16)}
        L_sj{U}:
        v_mfma_f32_32x32x16_bf16 {vr(S,16)}, {vr(K2+4,4)}, {vr(Q+4,4)}, {vr(S,16)}
        s_nop 7
        s_nop 7
        s_cmp_eq_u32 s{S_U0}, 0
        s_cbranch_scc0 L_s2{U}
        """)
        for r in range(16): a(f"v_max_f32 v{M}, v{M}, v{S+r}")
        a(f"s_branch L_sn{U}")
        a(f"L_s2{U}:")
        for r in range(16): a(f"v_sub_f32 v{S+r}, v{S+r}, v{M}")
        for r in range(16): a(f"v_exp_f32 v{S+r}, v{S+r}")
        a("s_nop 0")
        for j in range(8): a(f"v_cvt_pk_bf16_f32 v{P+j}, v{S+2*j}, v{S+2*j+1}")
        a("s_nop 1")
        for f in range(2):
            a(f"v_mfma_f32_32x32x16_bf16 {vr(O,16)}, {vr(V2+4*f,4)}, {vr(P+4*f,4)}, {vr(O,16)}")
        for f in range(2):
            a(f"v_mfma_f32_16x16x32_bf16 {vr(Ls,4)}, {vr(ON,4)}, {vr(P+4*f,4)}, {vr(Ls,4)}")
        a(f"""
        s_nop 7
        s_nop 7
        L_sn{U}:
        s_add_u32 s{S_U1}, s{S_U1}, 1
        s_cmp_le_u32 s{S_U1}, 8
        s_cbranch_scc1 L_st{U}
        s_cmp_eq_u32 s{S_U0}, 0
        s_cbranch_scc0 L_sx{U}
        v_mov_b32 v{NB}, v{M}
        s_nop 1
        v_permlane32_swap_b32 v{NB}, v{M}
        s_nop 1
        v_max_f32 v{M}, v{M}, v{NB}
        """)
        for r in range(16): a(f"v_mov_b32 v{O+r}, 0")
        for r in range(4): a(f"v_mov_b32 v{Ls+r}, 0")
        a(f"""
        s_mov_b32 s{S_U0}, 1
        s_branch L_sp{U}
        L_sx{U}:
        s_setpc_b64 s[{S_RET}:{S_RET+1}]
        """)
    a("L_codeend:")
    hdr = open("concat_heads__sliding_block__sliding_block__prompt.s.ref").read().split("; Override launch")[0]
    head = hdr + f"""; @launch grid=(256,1,1) block=(512,1,1) lds={LDS_BYTES}
;
; Generated by a Python script of my own (dev/gen.py); one fused kernel, 256 workgroups x 8 waves, one per CU.
; Workgroup = (problem p, 256-token chunk c, head pair hp).
;  phase 1  QKV GEMM, tile 256 x 192 (q,k,v of two heads), K = 1024.  Waves 0-3 compute (128 x 96 each, 16x16x32 MFMA),
;           waves 4-7 stage x / wqkv tiles into LDS (LDS-DMA ring).  The last three k-blocks run K,V columns first so the
;           K/V fragments can be published (write-through stores + per-wave flag) while the Q columns finish.
;  phase 2  sliding-window attention on 32-query units (32x32x16 MFMA, S^T layout).  K/V of the previous chunk come from
;           the neighbour workgroup through d_ws.  Softmax: p = 2^(s*log2e/sqrt(d)) is first formed against a zero shift;
;           every row sum is range-checked at run time (2^-60 <= sum <= 2^60) and any unit with a row outside that range
;           is recomputed by L_slowA/L_slowB with the exact row maximum subtracted (shift invariance is exact otherwise).
;  phase 3  output projection, 256 x 64 per workgroup in two 128-row halves, split-K over wave pairs.
; Hand-offs between workgroups use write-through (sc1) stores, s_waitcnt, then an 8-byte flag holding this launch's
; epoch (old epoch word in d_ws + 1; the last workgroup, counted in d_debug, stores the new value); consumers poll with
; sc1 loads (bounded spins).  Nothing depends on workgroup placement except cache-locality choices.
.amdgcn_target "amdgcn-amd-amdhsa--gfx950"
.text
.globl {name}
.p2align 8
.type {name},@function
{name}:
"""
    tail = f"""
.section .rodata,"a"
.p2align 6
.amdhsa_kernel {name}
  .amdhsa_next_free_vgpr 256
  .amdhsa_next_free_sgpr 102
  .amdhsa_accum_offset 256
  .amdhsa_group_segment_fixed_size 0
  .amdhsa_kernarg_size 72
  .amdhsa_user_sgpr_count 2
  .amdhsa_user_sgpr_kernarg_segment_ptr 1
  .amdhsa_system_sgpr_workgroup_id_x 1
.end_amdhsa_kernel
"""
    def relayout(t):
        if not opts.get("lfirst", 1): return t
        i0 = t.index("L_loader:\n"); i1 = t.index("L_attn:\n")
        blk = t[i0:i1]
        t = t[:i0] + t[i1:]
        br = f"    s_cmp_ge_u32 s{S_WID}, 4\n    s_cbranch_scc1 L_loader\n"
        assert br in t
        t = t.replace(br, f"    s_cmp_lt_u32 s{S_WID}, 4\n    s_cbranch_scc1 L_compute\n" + blk + "    s_branch L_attn\nL_compute:\n")
        return t.replace("    s_branch L_attn\nL_attn:\n", "L_attn:\n")
    return head + relayout(a.text()).replace("CODE_END_BYTES", "(L_codeend - L_pcref)") + tail

if __name__ == "__main__":
    stamps = "--stamps" in sys.argv
    opts = {}
    for x in sys.argv[2:]:
        if "=" in x:
            k, v = x.split("="); opts[k] = int(v)
    open(sys.argv[1], "w").write(gen(stamps, opts=opts))
```

```python
import sys, struct

class Asm:
    def __init__(self):
        self.l = []
        self.q = []
        self.vq = []
    def __call__(self, s):
        for x in s.strip("\n").split("\n"):
            x = x.strip()
            if not x: continue
            self.l.append(x if x.endswith(":") else "    " + x)
    def text(self):
        return "\n".join(self.l) + "\n"
    def lds(self, s, tag):
        self(s); self.q.append(tag)
    def wait_lds(self, *tags):
        idx = [i for i, t in enumerate(self.q) if t in tags]
        if not idx: return
        last = max(idx); n = min(len(self.q) - 1 - last, 15)
        self(f"s_waitcnt lgkmcnt({n})")
        self.q = self.q[len(self.q)-n:] if n else []
    def wait_lds_all(self):
        self("s_waitcnt lgkmcnt(0)"); self.q = []
    def vm(self, s, tag):
        self(s); self.vq.append(tag)
    def wait_vm(self, *tags):
        idx = [i for i, t in enumerate(self.vq) if t in tags]
        if not idx: return
        last = max(idx); n = len(self.vq) - 1 - last
        assert n <= 63, n
        self(f"s_waitcnt vmcnt({n})")
        self.vq = self.vq[last+1:]
    def wait_vm_all(self):
        self("s_waitcnt vmcnt(0)"); self.vq = []

def vr(a, n): return f"v[{a}:{a+n-1}]"
def sr(a, n): return f"s[{a}:{a+n-1}]"
def f32bits(x): return struct.unpack("<I", struct.pack("<f", x))[0]
def L(s): return [x.strip() for x in s.strip().split("\n") if x.strip()]

WS_KV = 0
WS_O = 16 << 20
WS_FLAG = 24 << 20
WS_FKV = WS_FLAG + 4096
WS_FO = WS_FLAG + 65536
WS_STAMP = 25 << 20
WS_BYTES = 26 << 20
TAGX = 0x5bd1e995

A_SLOT = 32768; B_BASE = 3 * A_SLOT; B_SLOT = 12288
LDS_BYTES = 160 * 1024
R_V = 0; R_PREV = 32768; R_K = 98304; R_Q = 131072; R_RED = 65536
def wo_slot(st): return [R_V, R_K, R_Q, R_PREV][st // 4] + (st % 4) * 8192

S_X = 36; S_W = 40; S_WS = 44; S_WO = 48; S_OUT = 52; S_DBG = 56
S_P = 60; S_C = 61; S_HP = 62; S_WID = 63
S_T0 = 64; S_T1 = 65; S_T2 = 66; S_T3 = 67
S_ASL = 68; S_BSL = 69; S_KA = 70; S_KB = 71; S_CNT = 72
S_TH = 73; S_HH = 74; S_DA = 75; S_DB = 76
S_NON = 77; S_KVB = 78; S_OC = 79; S_OJ = 80; S_TAG = 81
S_LA = 82; S_LB = 83
S_M0 = 84; S_M1 = 86
S_QB = 88; S_OB = 89
S_RET = 90; S_CODE = 92
S_FO = 96; S_U0 = 97; S_U1 = 98; S_U2 = 99
S_LO = 34; S_HI = 35

QSCALE = 0.17677669529663687 * 1.4426950408889634
CODE_LINES = 512

def gen(stamps=False, name="concat_heads__sliding_block__sliding_block__prompt_kernel", opts=None):
    opts = opts or {}
    a = Asm()
    SN = ["start", "bar0", "main", "kv", "qend", "pub", "barA", "p1end", "barC", "p2end", "got", "barE", "mm1", "mm", "end", "ofl"]
    def stamp(i):
        if isinstance(i, str): i = SN.index(i)
        else: i = SN.index({0: "start", 1: "bar0", 2: "kv", 3: "barA", 4: "p1end", 5: "barC", 7: "p2end", 9: "barE", 10: "mm", 11: "end"}.get(i, "none")) if i not in (6, 8) else None
        if i is None: return
        if stamps:
            a(f"s_memtime s[100:101]" if opts.get("cyc") else f"s_memrealtime s[100:101]")
            a(f"s_waitcnt lgkmcnt(0)")
            a(f"s_mov_b32 s{4+i}, s100")
            a.q = []
    a(f"""
    s_cmp_ge_u32 s2, 256
    s_cbranch_scc1 L_end
    s_load_dwordx16 s[16:31], s[0:1], 0
    s_load_dwordx2 s[32:33], s[0:1], 64
    """)
    stamp(0)
    a(f"""
    v_lshrrev_b32 v1, 6, v0
    v_and_b32 v0, 63, v0
    s_and_b32 s{S_T0}, s2, 7
    v_readfirstlane_b32 s{S_WID}, v1
    s_lshr_b32 s{S_T1}, s2, 3
    s_lshr_b32 s{S_P}, s{S_T0}, 2
    s_and_b32 s{S_T2}, s{S_T0}, 3              ; hq
    s_lshr_b32 s{S_C}, s{S_T1}, 2              ; chunk
    s_and_b32 s{S_T3}, s{S_T1}, 3
    s_lshl_b32 s{S_HP}, s{S_T2}, 2
    s_add_u32 s{S_HP}, s{S_HP}, s{S_T3}
    s_lshr_b32 s{S_OC}, s{S_T1}, 4
    s_lshl_b32 s{S_T3}, s{S_T2}, 1
    s_add_u32 s{S_OC}, s{S_OC}, s{S_T3}
    s_and_b32 s{S_OJ}, s{S_T1}, 15
    s_and_b32 s{S_HH}, s{S_WID}, 1
    s_waitcnt lgkmcnt(0)
    s_cmp_eq_u32 s{S_P}, 0
    s_cselect_b32 s{S_X}, s16, s22
    s_cselect_b32 s{S_X+1}, s17, s23
    s_cselect_b32 s{S_W}, s18, s24
    s_cselect_b32 s{S_W+1}, s19, s25
    s_cselect_b32 s{S_WO}, s20, s26
    s_cselect_b32 s{S_WO+1}, s21, s27
    s_lshl_b32 s{S_T0}, s{S_C}, 19
    s_add_u32 s{S_X}, s{S_X}, s{S_T0}
    s_addc_u32 s{S_X+1}, s{S_X+1}, 0
    s_mov_b32 s{S_X+2}, 0x80000
    s_mov_b32 s{S_X+3}, 0x20000
    s_mov_b32 s{S_W+2}, 0x600000
    s_mov_b32 s{S_W+3}, 0x20000
    s_cmp_ge_u32 s{S_WID}, 4
    s_cbranch_scc1 L_loader
    """)
    def common_setup():
        a(f"""
        s_add_u32 s{S_T0}, s32, {WS_FLAG}
        s_addc_u32 s{S_T1}, s33, 0
        s_load_dword s{S_NON}, s[{S_T0}:{S_T1}], 0
        s_mov_b32 s{S_WS}, s32
        s_mov_b32 s{S_WS+1}, s33
        s_mov_b32 s{S_WS+2}, {WS_BYTES}
        s_mov_b32 s{S_WS+3}, 0x20000
        s_mov_b32 s{S_WO+2}, 0x200000
        s_mov_b32 s{S_WO+3}, 0x20000
        s_mov_b32 s{S_OUT}, s28
        s_mov_b32 s{S_OUT+1}, s29
        s_mov_b32 s{S_OUT+2}, 0x800000
        s_mov_b32 s{S_OUT+3}, 0x20000
        s_mov_b32 s{S_DBG}, s30
        s_mov_b32 s{S_DBG+1}, s31
        s_mov_b32 s{S_DBG+2}, 256
        s_mov_b32 s{S_DBG+3}, 0x20000
        s_lshl_b32 s{S_T3}, s{S_HP}, 1
        s_add_u32 s{S_T3}, s{S_T3}, s{S_HH}        ; head
        s_lshl_b32 s{S_T2}, s{S_P}, 5
        s_add_u32 s{S_T2}, s{S_T2}, s{S_T3}        ; p*32+head
        s_lshl_b32 s{S_T2}, s{S_T2}, 6
        s_lshl_b32 s{S_KVB}, s{S_C}, 3
        s_add_u32 s{S_T2}, s{S_T2}, s{S_KVB}
        s_lshl_b32 s{S_KVB}, s{S_T2}, 12
        s_lshl_b32 s{S_T2}, s{S_P}, 3
        s_add_u32 s{S_T2}, s{S_T2}, s{S_C}         ; p*8+c
        s_lshl_b32 s{S_OB}, s{S_T2}, 19
        s_lshl_b32 s{S_FO}, s{S_T3}, 10
        s_add_u32 s{S_OB}, s{S_OB}, s{S_FO}
        s_add_u32 s{S_OB}, s{S_OB}, {WS_O}
        s_lshl_b32 s{S_FO}, s{S_T2}, 11
        s_lshl_b32 s{S_T3}, s{S_T3}, 3
        s_add_u32 s{S_FO}, s{S_FO}, s{S_T3}
        s_add_u32 s{S_FO}, s{S_FO}, {WS_FO}
        s_mov_b32 s{S_LO}, {f32bits(2.0**-60)}
        s_mov_b32 s{S_HI}, {f32bits(2.0**60)}
        s_waitcnt lgkmcnt(0)
        s_add_u32 s{S_NON}, s{S_NON}, 1
        s_xor_b32 s{S_TAG}, s{S_NON}, {TAGX}
        """)
    BD = 88; BF = 136; ON = 184; VW = 188; VO = 189; VK = 190; VV = 191; CT = 192; VW2 = 195; VKP = 196; VVP = 197; VFL = 198
    QA = 8; QB = 16; OA = 24; OB = 40; LA = 56; LB = 60; KF = 80; VF = 104; SS = [224, 240]; PP = [128, 152]
    VLS = 194
    def attn_consts0(vl):
        return L(f"""
        v_and_b32 v{CT}, 0x33, v0
        v_bfe_u32 v{CT+1}, v0, 2, 1
        v_lshl_or_b32 v{CT}, v{CT+1}, 3, v{CT}
        v_bfe_u32 v{CT+1}, v0, 3, 1
        v_lshl_or_b32 v{CT}, v{CT+1}, 2, v{CT}
        s_lshl_b32 s{S_T0}, s{S_HH}, 14
        v_lshlrev_b32 v{VK}, 4, v{CT}
        v_add_u32 v{VV}, s{S_T0}, v{vl}
        s_add_u32 s{S_T0}, s{S_T0}, {R_K}
        v_add_u32 v{VK}, s{S_T0}, v{VK}
        s_lshl_b32 s{S_T0}, s{S_HH}, 14
        s_add_u32 s{S_T1}, s{S_T0}, {(R_PREV - R_K) & 0xffffffff:#x}
        v_add_u32 v{VKP}, s{S_T1}, v{VK}
        s_add_u32 s{S_T1}, s{S_T0}, {R_PREV + 2048}
        v_add_u32 v{VVP}, s{S_T1}, v{VV}
        s_add_u32 s{S_T1}, s{S_T0}, {R_Q}
        v_mov_b32 v{VFL}, s{S_T1}
        v_lshrrev_b32 v{CT}, 2, v0
        v_lshrrev_b32 v{CT+1}, 4, v0
        v_xor_b32 v{CT}, v{CT}, v{CT+1}
        v_and_b32 v{CT}, 1, v{CT}
        v_subrev_u32 v{CT}, 1, v{CT}
        v_and_b32 v{ON}, 0x3f803f80, v{CT}
        v_mov_b32 v{ON+1}, v{ON}
        v_mov_b32 v{ON+2}, v{ON}
        v_mov_b32 v{ON+3}, v{ON}
        """)
    def attn_consts1():
        c = L(f"""
        v_and_b32 v{CT}, 31, v0
        v_lshrrev_b32 v{BD}, 5, v0
        v_lshlrev_b32 v{BD}, 3, v{BD}
        v_sub_u32 v{CT}, v{CT}, v{BD}
        s_mov_b32 s{S_T1}, 0xff800000
        """)
        for r in range(16):
            f, u_, e = r >> 3, (r >> 2) & 1, r & 3
            kc = 16*f + 4*u_ + e
            c += [f"v_subrev_u32 v{BD+r}, {kc}, v{CT}", f"v_ashrrev_i32 v{BD+r}, 31, v{BD+r}", f"v_and_b32 v{BD+r}, s{S_T1}, v{BD+r}"]
        return c
    def attn_consts2():
        c = [f"s_mov_b32 s{S_T1}, 0xff800000"]
        c += [f"v_xor_b32 v{BF+r}, s{S_T1}, v{BD+r}" for r in range(16)]
        c += L(f"""
        v_lshrrev_b32 v{CT}, 3, v0
        v_and_b32 v{VW}, 7, v0
        v_bfe_u32 v{VO}, v0, 4, 2
        v_lshlrev_b32 v{VO}, 1, v{VO}
        v_xor_b32 v{VW}, v{VW}, v{VO}
        s_lshr_b32 s{S_T0}, s{S_WID}, 2
        s_lshl_b32 s{S_T0}, s{S_T0}, 20
        s_and_b32 s{S_T1}, s{S_WID}, 3
        s_lshl_b32 s{S_T1}, s{S_T1}, 14
        s_add_u32 s{S_T0}, s{S_T0}, s{S_T1}
        s_lshl_b32 s{S_T1}, s{S_OJ}, 7
        s_add_u32 s{S_T0}, s{S_T0}, s{S_T1}
        v_lshlrev_b32 v{CT}, 11, v{CT}
        v_add_u32 v{CT}, s{S_T0}, v{CT}
        v_lshl_add_u32 v{VW}, v{VW}, 4, v{CT}
        v_xor_b32 v{VW2}, 0x100000, v{VW}
        s_lshl_b32 s{S_LA}, s{S_WID}, 10
        v_and_b32 v{VO}, 15, v0
        v_lshrrev_b32 v{CT}, 5, v0
        v_lshl_add_u32 v{VO}, v{CT}, 4, v{VO}
        v_lshlrev_b32 v{VO}, 4, v{VO}
        v_bfe_u32 v{CT}, v0, 4, 1
        v_lshl_add_u32 v{VO}, v{CT}, 15, v{VO}
        """)
        return c
    D = opts.get("D", 3); MB = 16 - D
    KVS = B_BASE; QS = B_BASE + 32768; A4 = KVS
    qorder = [15, 14, 13] + list(range(12, MB - 1, -1))
    qorder = qorder[:D]
    aslot_q = {}
    for i, b in enumerate(qorder):
        aslot_q[b] = (b % 3) * A_SLOT if b >= 13 else [A4, 0, 2 * A_SLOT, A_SLOT][(i - 3) % 4]
    nst = 32 + D
    items = []
    for u in range(32):
        b, kk = divmod(u, 2)
        if kk == 0:
            for hf in range(2): items.append(dict(need=u, kind="A", blk=b, hf=hf, lds=(b % 3)*A_SLOT + hf*16384, size=16384,
                                                  free=(u + 2) if b < 13 or b not in qorder else 32 + qorder.index(b) + 2))
        if u <= 2*MB: items.append(dict(need=u, kind="B", u=u, lds=B_BASE + (u % 5)*B_SLOT, size=B_SLOT, free=u + 1))
        else: items.append(dict(need=u, kind="KV", u=u, lds=None, size=8192, free=u + 1))
    for i, b in enumerate(qorder):
        if b < 13:
            for hf in range(2): items.append(dict(need=32 + i, kind="A", blk=b, hf=hf, lds=aslot_q[b] + hf*16384, size=16384, free=32 + i + 2))
        for kk in range(2): items.append(dict(need=32 + i, kind="Q", u=2*b + kk, qi=(i, kk), lds=None, size=4096, free=32 + i + 2))
    def after_of(n, lo, size):
        r = -1
        for pv_ in items[:n]:
            if pv_["lds"] < lo + size and lo < pv_["lds"] + pv_["size"]: r = max(r, pv_["free"])
        return r
    for n, it in enumerate(items):
        if it["lds"] is None:
            lo_lim = B_BASE if it["kind"] == "KV" else QS
            cands = range(lo_lim, LDS_BYTES - 8192 - it["size"] + 1, 4096)
            it["lds"] = min(cands, key=lambda lo: (max(after_of(n, lo, it["size"]), it["need"] - 5), lo))
        it["after"] = after_of(n, it["lds"], it["size"])
        assert it["after"] < it["need"], it
        it["n"] = {"A": 4, "B": 3, "KV": 2, "Q": 1}[it["kind"]]
    def kvslot(u): return [it["lds"] for it in items if it["kind"] == "KV" and it["u"] == u][0]
    def qslot(i, kk): return [it["lds"] for it in items if it["kind"] == "Q" and it["qi"] == (i, kk)][0]
    VA = 1; VB = 3; VT = 5
    XF = 8; WF = 40; ACC = 64
    SEG = [1, 1, 2, 2, 0, 0]
    def acc(rb, col): return ACC + (rb * 6 + col) * 4
    def xf(rb): return XF + 4 * rb
    def wf(sl): return WF + 4 * sl
    a(f"""
    s_lshr_b32 s{S_TH}, s{S_WID}, 1
    v_and_b32 v{VT}, 15, v0
    v_lshrrev_b32 v{VT+1}, 4, v0
    v_bfe_u32 v{VT+2}, v0, 1, 3
    v_xor_b32 v{VT+2}, v{VT+2}, v{VT+1}
    v_lshlrev_b32 v{VT+2}, 4, v{VT+2}
    v_lshl_add_u32 v{VT+2}, v{VT}, 7, v{VT+2}
    s_lshl_b32 s{S_T0}, s{S_TH}, 14
    v_add_u32 v{VA}, s{S_T0}, v{VT+2}
    v_xor_b32 v{VA+1}, 64, v{VA}
    v_bfe_u32 v{VT}, v0, 2, 2
    v_lshlrev_b32 v{VB}, 7, v{VT}
    v_and_b32 v{VT}, 3, v0
    v_lshl_add_u32 v{VB}, v{VT}, 3, v{VB}
    v_mul_u32_u24 v{VT}, 3072, v{VT+1}
    v_add_u32 v{VB}, v{VB}, v{VT}
    v_bfe_u32 v{VT}, v0, 3, 2
    s_lshl_b32 s{S_T0}, s{S_HH}, 1
    v_xor_b32 v{VT}, s{S_T0}, v{VT}
    v_lshl_add_u32 v{VB}, v{VT}, 5, v{VB}
    v_add_u32 v{VB}, {B_BASE}, v{VB}
    v_xor_b32 v{VB+1}, 32, v{VB}
    """)
    LOOK = opts.get("look", 4)
    a(f"""
    s_and_b32 s{S_T0}, s{S_HP}, 3
    s_lshl_b32 s{S_T0}, s{S_T0}, 6
    s_lshl_b32 s{S_T1}, s{S_WID}, 4
    s_add_u32 s{S_T0}, s{S_T0}, s{S_T1}
    s_lshl_b32 s{S_T0}, s{S_T0}, 11
    v_lshlrev_b32 v5, 11, v0
    v_add_u32 v5, s{S_T0}, v5
    v_mov_b32 v11, 0x7f000000
    v_cmp_lt_u32 vcc, 15, v0
    v_and_b32 v9, 1, v0
    v_lshrrev_b32 v10, 1, v0
    v_cndmask_b32 v5, v5, v11, vcc
    s_lshl_b32 s{S_T0}, s{S_C}, 3
    s_lshl_b32 s{S_T1}, s{S_WID}, 1
    s_add_u32 s{S_T0}, s{S_T0}, s{S_T1}
    v_add_u32 v6, s{S_T0}, v9
    v_mul_u32_u24 v6, 6144, v6
    v_lshl_add_u32 v6, v10, 11, v6
    s_lshl_b32 s{S_T0}, s{S_HP}, 7
    v_add_u32 v6, s{S_T0}, v6
    v_cmp_lt_u32 vcc, 5, v0
    s_movk_i32 s{S_KA}, {128*LOOK}
    s_mov_b32 s{S_KB}, {64*6144*LOOK}
    v_cndmask_b32 v6, v6, v11, vcc
    s_getpc_b64 s[{S_CODE}:{S_CODE+1}]
    s_mov_b32 s{S_CODE+2}, CODE_END_BYTES
    s_mov_b32 s{S_CODE+3}, 0x20000
    s_lshr_b32 s{S_T0}, s2, 3
    s_and_b32 s{S_T0}, s{S_T0}, 7
    s_lshl_b32 s{S_T0}, s{S_T0}, 2
    s_add_u32 s{S_T0}, s{S_T0}, s{S_WID}
    s_mul_i32 s{S_T0}, s{S_T0}, {CODE_LINES // 32 * 128}
    v_lshlrev_b32 v12, 7, v0
    v_add_u32 v12, s{S_T0}, v12
    v_cmp_lt_u32 vcc, 15, v0
    s_nop 1
    v_cndmask_b32 v12, v12, v11, vcc
    """)
    a(f"""
    s_and_b32 s{S_T0}, s{S_OC}, 1
    s_lshl_b32 s{S_T0}, s{S_T0}, 9
    s_mul_i32 s{S_T1}, s{S_WID}, 10
    s_add_u32 s{S_T0}, s{S_T0}, s{S_T1}
    s_lshl_b32 s{S_T0}, s{S_T0}, 11
    s_lshl_b32 s{S_T1}, s{S_OJ}, 7
    s_add_u32 s{S_QB}, s{S_T0}, s{S_T1}
    v_cmp_lt_u32 vcc, 9, v0
    v_lshlrev_b32 v0, 11, v0
    s_nop 0
    v_cndmask_b32 v0, v0, v11, vcc
    """)
    a("L_pcref:")
    common_setup()
    for r in range(ACC, 256):
        a(f"v_mov_b32 v{r}, 0")
    a(f"""
    s_mov_b32 s{S_ASL}, 0
    s_mov_b32 s{S_BSL}, 0
    s_mov_b32 s{S_CNT}, {MB}
    s_barrier
    """)
    stamp(1)
    VTOUCH = opts.get("vtouch", 0)
    for b in range(3, LOOK if VTOUCH else 0):
        a(f"s_mov_b32 s{S_T0}, {64*6144*b}")
        a(f"buffer_load_dword v7, v6, {sr(S_W,4)}, s{S_T0} offen")
        a(f"buffer_load_dword v7, v5, {sr(S_X,4)}, 0 offen offset:{128*b}")
    if opts.get("codetouch", 1):
        a(f"buffer_load_dword v7, v12, {sr(S_CODE,4)}, 0 offen")
    EARLY = opts.get("eep", 0)
    if EARLY:
        a(f"""
        s_cmp_lg_u32 s{S_WID}, 0
        s_cbranch_scc1 L_noadd
        v_mov_b32 v5, 1
        v_mov_b32 v6, 0
        s_mov_b64 exec, 1
        buffer_atomic_add v5, v6, {sr(S_DBG,4)}, 0 offen sc0
        s_mov_b64 exec, -1
        L_noadd:
        """)
    def rdX(rb, va, off=0):
        a.lds(f"ds_read_b128 {vr(xf(rb),4)}, v{va} offset:{2048*rb+off}", f"x{rb}")
    def rdW(sl, col, half, off=0):
        a.lds(f"ds_read_b64_tr_b16 {vr(wf(sl)+2*half,2)}, v{VB+(col&1)} offset:{off+SEG[col]*1024+half*512}", f"w{sl}")
    def mf(rb, col, sl):
        d = vr(acc(rb, col), 4)
        if col in (2, 3):
            a(f"v_mfma_f32_16x16x32_bf16 {d}, {vr(xf(rb),4)}, {vr(wf(sl),4)}, {d}")
        else:
            a(f"v_mfma_f32_16x16x32_bf16 {d}, {vr(wf(sl),4)}, {vr(xf(rb),4)}, {d}")
    for rb in range(8):
        if rb < 3:
            rdW(rb, rb, 0); rdW(rb, rb, 1)
        rdX(rb, VA)
    q0 = list(a.q)
    a("L_cloop:\n; ---- phase 1 main loop: two k32 units per iteration, one barrier per unit")
    for kk in range(2):
        fill = {}
        for i, (c, h) in enumerate([(c, h) for c in (3, 4, 5) for h in (0, 1)]):
            fill[i] = (lambda c=c, h=h: rdW(c, c, h))
        for i, x in enumerate(L(f"""
            s_add_u32 s{S_T0}, s{S_BSL}, {B_SLOT}
            s_cmp_eq_u32 s{S_T0}, {5*B_SLOT}
            s_cselect_b32 s{S_T0}, 0, s{S_T0}
            s_sub_u32 s{S_DB}, s{S_T0}, s{S_BSL}
            s_mov_b32 s{S_BSL}, s{S_T0}
            """)): fill[6 + i] = (lambda x=x: a(x))
        fill[12] = lambda: a(f"v_add_u32 v{VB}, s{S_DB}, v{VB}")
        fill[13] = lambda: a(f"v_add_u32 v{VB+1}, s{S_DB}, v{VB+1}")
        if kk == 1:
            for i, x in enumerate(L(f"""
                s_add_u32 s{S_T0}, s{S_ASL}, {A_SLOT}
                s_cmp_eq_u32 s{S_T0}, {3*A_SLOT}
                s_cselect_b32 s{S_T0}, 0, s{S_T0}
                s_sub_u32 s{S_DA}, s{S_T0}, s{S_ASL}
                s_mov_b32 s{S_ASL}, s{S_T0}
                v_add_u32 v{VA}, s{S_DA}, v{VA}
                v_add_u32 v{VA+1}, s{S_DA}, v{VA+1}
                """)): fill[14 + i] = (lambda x=x: a(x))
        m = 0
        for rb in range(8):
            if rb == 0: a.wait_lds("w0", "w1", "w2", "x3")
            if rb == 4: a.wait_lds("x7")
            for c in range(3):
                mf(rb, c, c)
                if m in fill: fill[m]()
                m += 1
        a.wait_lds_all()
        if not opts.get("x_nobar"): a("s_barrier")
        pend = [(c, h) for c in (0, 1, 2) for h in (0, 1)]
        m = 0
        for rb in range(8):
            for c in range(3, 6):
                mf(rb, c, c)
                if c == 5: rdX(rb, VA + (kk ^ 1))
                elif pend:
                    cc, h = pend.pop(0); rdW(cc, cc, h)
                elif kk == 1 and m == 18: a(f"s_sub_u32 s{S_CNT}, s{S_CNT}, 1")
                elif kk == 1 and m == 19: a(f"s_cmp_lg_u32 s{S_CNT}, 0")
                m += 1
        if kk == 0: qmid = list(a.q)
        else: assert a.q == qmid
    assert qmid == q0, (qmid, q0)
    a("s_cbranch_scc1 L_cloop")
    qsave = list(a.q); stamp("main"); a.q = qsave
    VAH = 56; VLN = 58; VG2 = 59; VQ = 60
    u0 = 2 * MB
    if EARLY:
        assert not VTOUCH
        a(f"""
        s_cmp_lg_u32 s{S_WID}, 0
        s_cbranch_scc1 L_noep
        s_waitcnt vmcnt(0)
        v_readfirstlane_b32 s{S_T0}, v5
        s_cmp_lg_u32 s{S_T0}, 255
        s_cbranch_scc1 L_noep
        v_mov_b32 v5, s{S_NON}
        s_mov_b32 s{S_T1}, {WS_FLAG}
        s_mov_b64 exec, 1
        buffer_store_dword v5, v6, {sr(S_WS,4)}, s{S_T1} offen sc1
        s_mov_b64 exec, -1
        L_noep:
        """)
    a(f"""
    v_mbcnt_lo_u32_b32 v0, -1, 0
    v_mbcnt_hi_u32_b32 v0, -1, v0
    v_add_u32 v{VA}, {(-(MB % 3)*A_SLOT) & 0xffffffff:#x}, v{VA}
    v_add_u32 v{VA+1}, {(-(MB % 3)*A_SLOT) & 0xffffffff:#x}, v{VA+1}
    v_add_u32 v{VB}, {(-(u0 % 5)*B_SLOT) & 0xffffffff:#x}, v{VB}
    v_add_u32 v{VB+1}, {(-(u0 % 5)*B_SLOT) & 0xffffffff:#x}, v{VB+1}
    """)
    def rdXs(rb, slot, kk):
        if slot < 65536: rdX(rb, VA + kk, slot)
        else: rdX(rb, VAH + kk, slot - 65536)
    def rdWkv(sl, col, half, u):
        a.lds(f"ds_read_b64_tr_b16 {vr(wf(sl)+2*half,2)}, v{VB+(col&1)} offset:{kvslot(u)-B_BASE+(col>>1)*1024+half*512}", f"w{sl}")
    def rdWq(sl, j, half, i, kk):
        a.lds(f"ds_read_b64_tr_b16 {vr(wf(sl)+2*half,2)}, v{VQ+j} offset:{qslot(i,kk)-B_BASE+half*512}", f"w{sl}")
    for u in range(u0, 32):
        blk, kk = divmod(u, 2)
        pend = [(3, 0), (3, 1)] if u == u0 else [(2, 0), (2, 1), (3, 0), (3, 1)]
        for rb in range(8):
            if rb == 0: a.wait_lds("w0", "w1", "x3")
            if rb == 4: a.wait_lds("x7")
            for c in range(2):
                mf(rb, c, c)
                if pend:
                    cc, h = pend.pop(0)
                    if u == u0: rdW(cc, cc, h, (u0 % 5) * B_SLOT)
                    else: rdWkv(cc, cc, h, u)
            if u == u0 and rb == 2:
                a(f"""
                v_add_u32 v{VAH}, 0x10000, v{VA}
                v_add_u32 v{VAH+1}, 0x10000, v{VA+1}
                v_lshrrev_b32 v{VG2}, 4, v0
                v_lshlrev_b32 v{VG2}, 10, v{VG2}
                v_sub_u32 v{VB}, v{VB}, v{VG2}
                v_sub_u32 v{VB+1}, v{VB+1}, v{VG2}
                v_sub_u32 v{VQ}, v{VB}, v{VG2}
                v_sub_u32 v{VQ+1}, v{VB+1}, v{VG2}
                v_lshlrev_b32 v{VLN}, 4, v0
                """)
            if kk == 0 and rb == 5 and blk + LOOK < 16 and VTOUCH:
                a(f"buffer_load_dword v7, v6, {sr(S_W,4)}, s{S_KB} offen")
                a(f"s_add_u32 s{S_KB}, s{S_KB}, {64*6144}")
            if kk == 0 and rb == 6 and blk + LOOK < 16 and VTOUCH:
                a(f"buffer_load_dword v7, v5, {sr(S_X,4)}, s{S_KA} offen")
                a(f"s_add_u32 s{S_KA}, s{S_KA}, 128")
        a.wait_lds_all()
        a("s_barrier")
        if u == 31: break
        for rb in range(8):
            for c in (2, 3):
                mf(rb, c, c)
                if rb < 4 and c == 2: rdWkv(rb >> 1, rb >> 1, rb & 1, u + 1)
            rdXs(rb, (((u + 1) // 2) % 3) * A_SLOT, (u + 1) % 2)
    S_G = S_ASL; S_LK = S_KB
    KVSC = ["", " sc1", " nt", " sc0"][opts.get("kvsc", 1)]
    def pack(rd, ra, rb_):
        return [f"v_cvt_pk_bf16_f32 v{rd}, v{ra}, v{ra+1}", f"v_cvt_pk_bf16_f32 v{rd+1}, v{ra+2}, v{ra+3}",
                f"v_cvt_pk_bf16_f32 v{rd+2}, v{rb_}, v{rb_+1}", f"v_cvt_pk_bf16_f32 v{rd+3}, v{rb_+2}, v{rb_+3}"]
    def swap(ra):
        return [f"v_permlane16_swap_b32 v{ra}, v{ra+2}", f"v_permlane16_swap_b32 v{ra+1}, v{ra+3}"]
    frs = []
    for tb in range(4):
        frs.append((acc(2*tb, 0), acc(2*tb, 0), acc(2*tb+1, 0), tb, 0))
        frs.append((acc(2*tb, 1), acc(2*tb, 1), acc(2*tb+1, 1), tb, 1))
        frs.append((acc(2*tb, 2), acc(2*tb, 2), acc(2*tb, 3), tb, 2))
        frs.append((acc(2*tb, 3), acc(2*tb+1, 2), acc(2*tb+1, 3), tb, 3))
    C_LDS = LDS_BYTES - 8192
    assert all(it["lds"] + it["size"] <= C_LDS for it in items if it["free"] > 31)
    assert D == 3
    qfr = [(acc(2*tb, 4+f), acc(2*tb+1, 4+f), tb, f) for tb in range(4) for f in range(2)]
    order = [i for i in range(16) if frs[i][4] < 2] + [i for i in range(16) if frs[i][4] >= 2]
    NSQ = opts.get("nsq", 12)
    stores = []
    def kv_store(vl):
        rd, _, _, tb, sl = frs[stores.pop(0)]
        a(f"s_add_u32 s{S_T3}, s{S_G}, {tb*4096}")
        a(f"buffer_store_dwordx4 {vr(rd,4)}, v{vl}, {sr(S_WS,4)}, s{S_T3} offen offset:{sl*1024}{KVSC}")
    def publish(vt):
        a(f"""
        s_lshl_b32 s{S_U0}, s{S_P}, 7
        s_lshl_b32 s{S_U1}, s{S_HP}, 3
        s_add_u32 s{S_U0}, s{S_U0}, s{S_U1}
        s_add_u32 s{S_U0}, s{S_U0}, s{S_C}
        s_lshl_b32 s{S_U0}, s{S_U0}, 7
        s_lshl_b32 s{S_U1}, s{S_WID}, 3
        s_add_u32 s{S_U0}, s{S_U0}, s{S_U1}
        s_add_u32 s{S_U0}, s{S_U0}, {WS_FKV}
        v_mov_b32 v{vt}, s{S_NON}
        v_mov_b32 v{vt+1}, s{S_TAG}
        v_mov_b32 v{vt+2}, 0
        s_sub_u32 s{S_KA}, s{S_U0}, 128
        s_waitcnt vmcnt(0)
        s_mov_b64 exec, 1
        buffer_store_dwordx2 v[{vt}:{vt+1}], v{vt+2}, {sr(S_WS,4)}, s{S_U0} offen sc1
        s_mov_b64 exec, -1
        s_nop 3
        """)
        qs = list(a.q); stamp("pub"); a.q = qs
    def qpass(th):
        side = L(f"""
        s_add_u32 s{S_G}, s{S_KVB}, {th << 14}
        s_lshl_b32 s{S_LK}, s{S_HH}, 14
        s_add_u32 s{S_LK}, s{S_LK}, {th << 13}
        v_add_u32 v{VG2}, s{S_LK}, v{VLN}
        v_add_u32 v{VG2+3}, {R_K}, v{VG2}
        """)
        for n, i in enumerate(order + [None]):
            if n == 8: side.append(("vwait",))
            if i is not None: side += pack(frs[i][0], frs[i][1], frs[i][2])
            else: side += ["s_nop 1"]
            if n >= 1: side += swap(frs[order[n-1]][0]) + [("ready", order[n-1])]
        side += L(f"""
        s_mov_b32 s{S_M0}, {f32bits(QSCALE)}
        s_mov_b32 s{S_M0+1}, {f32bits(QSCALE)}
        v_add_u32 v{VG2+4}, {LDS_BYTES - 8192}, v{VLN}
        """) + attn_consts0(VLN) + attn_consts2()[17:]
        cread = [f"ds_read_b128 {vr((BD if i < 4 else BF) + 4*(i%4), 4)}, v{VG2+4} offset:{1024*i}" for i in range(8)]
        ready = set()
        stores[:] = list(order)
        done = [-16]
        def emit_side(n):
            while side and n > 0:
                x = side[0]
                if x == ("vwait",):
                    if done[0] < 4: return
                    side.pop(0); continue
                side.pop(0)
                if isinstance(x, tuple): ready.add(x[1])
                else: a(x); n -= 1
        nm = 32 * D
        st_first, st_mid, st_last = opts.get("st0", -6), opts.get("stm", 40), nm - opts.get("st1", 8)
        st_pub = opts.get("stp", 76)
        kw = order[:8]; vw = order[8:]
        def stage(lst):
            rd, _, _, tb, sl = frs[lst.pop(0)]
            a.lds(f"ds_write_b128 v{VG2 if sl >= 2 else VG2+3}, {vr(rd,4)} offset:{tb*2048+(sl&1)*1024}", "kw")
        def after_mfma(j, last):
            done[0] += 1
            d = done[0]
            emit_side(opts.get("spm", 2))
            nd = 16 - len(stores)
            if th == 1:
                if stores and stores[0] in ready and d >= st_first + (st_mid - st_first) * nd // 16: kv_store(VLN)
                if d == st_pub: publish(4)
            elif nd < NSQ and stores[0] in ready and d >= st_mid + (st_last - st_mid) * nd // NSQ: kv_store(VLN)
            if j == 1 and kw and kw[0] in ready: stage(kw)
            if j == 1 and last and vw and not kw: stage(vw)
            if j == 0 and last and cread and order[-1] in ready and not side: a.lds(cread.pop(0), "cr")
        for rb in range(8):
            for c in (2, 3):
                mf(rb, c, c)
                if rb < 4 and c == 2: rdWq(rb >> 1, rb >> 1, rb & 1, 0, 0)
                after_mfma(c - 2, False)
            rdXs(rb, aslot_q[qorder[0]], 0)
        qsave = list(a.q); stamp(2); a.q = qsave
        for i, b in enumerate(qorder):
            last = (i == D - 1)
            for kk in range(2):
                cur = (0, 1) if kk == 0 else (2, 3)
                if kk == 0: pend = [(2, 0, 0), (2, 0, 1), (3, 1, 0), (3, 1, 1)]
                else: pend = [] if last else [(0, 0, 0), (0, 0, 1), (1, 1, 0), (1, 1, 1)]
                if kk == 1 and not last: a("s_barrier")
                for rb in range(8):
                    if rb == 0: a.wait_lds(f"w{cur[0]}", f"w{cur[1]}", "x3")
                    if rb == 4: a.wait_lds("x7")
                    for j in range(2):
                        mf(rb, 4 + j, cur[j])
                        if pend:
                            sl, jj, h = pend.pop(0)
                            rdWq(sl, jj, h, i, 1) if kk == 0 else rdWq(sl, jj, h, i + 1, 0)
                        after_mfma(j, last)
                    if kk == 0: rdXs(rb, aslot_q[b], 1)
                    elif not last: rdXs(rb, aslot_q[qorder[i+1]], 0)
                    if last and kk == 1 and rb >= 3 and rb % 2 == 1:
                        a("s_nop 1")
                        for f in range(2):
                            ra, rb_, _, _ = qfr[(rb - 3) + f]
                            for r in (ra, ra+2, rb_, rb_+2):
                                a(f"v_pk_mul_f32 v[{r}:{r+1}], v[{r}:{r+1}], s[{S_M0}:{S_M0+1}]")
                            for x in pack(ra, ra, rb_): a(x)
                        a("s_nop 0")
                        for f in range(2):
                            for x in swap(qfr[(rb - 3) + f][0]): a(x)
        assert not cread and not side and not kw and not vw and len(stores) == (0 if th else 16 - NSQ), (len(side), stores, kw, vw, cread)
        a.wait_lds_all()
    assert not a.q
    a(f"s_cmp_eq_u32 s{S_TH}, 1")
    a("s_cbranch_scc1 L_q1")
    qpass(0)
    deferred = list(stores)
    a("s_branch L_qe")
    a("L_q1:")
    qpass(1)
    a("L_qe:")
    stamp("qend")
    a("s_barrier")
    a(f"v_add_u32 v{VG2+1}, {R_Q}, v{VG2}")
    for f in range(2):
        ra, rb_, _, _ = qfr[6 + f]
        for r in (ra, ra+2, rb_, rb_+2):
            a(f"v_pk_mul_f32 v[{r}:{r+1}], v[{r}:{r+1}], s[{S_M0}:{S_M0+1}]")
        for x in pack(ra, ra, rb_): a(x)
    for i in range(6):
        r, _, tb, f = qfr[i]
        a(f"ds_write_b128 v{VG2+1}, {vr(r,4)} offset:{tb*2048+f*1024}")
    for f in range(2):
        for x in swap(qfr[6 + f][0]): a(x)
    a(f"v_mov_b32 v1, v{VLN}")
    for i in (6, 7):
        r, _, tb, f = qfr[i]
        a(f"ds_write_b128 v{VG2+1}, {vr(r,4)} offset:{tb*2048+f*1024}")
    a("s_setprio 1")
    a("s_branch L_attn")
    a("L_loader:\n; ---- phase 1, staging waves: statically scheduled LDS-DMA stream")
    if stamps: a("\n".join(f"s_mov_b32 s{r}, s4" for r in [5, 6, 7, 8, 9, 14]))
    VOA = 2; VOB = 6
    a(f"""
    s_sub_u32 s{S_T3}, s{S_WID}, 4
    v_lshrrev_b32 v10, 3, v0
    v_and_b32 v11, 7, v0
    v_lshrrev_b32 v12, 1, v10
    v_xor_b32 v13, v11, v12
    v_xor_b32 v14, 4, v13
    s_lshl_b32 s{S_T0}, s{S_T3}, 16
    v_lshlrev_b32 v15, 11, v10
    v_add_u32 v15, s{S_T0}, v15
    v_lshl_add_u32 v{VOA}, v13, 4, v15
    v_lshl_add_u32 v{VOA+1}, v14, 4, v15
    v_add_u32 v{VOA+1}, {16384-1024}, v{VOA+1}
    v_add_u32 v{VOA+2}, {2*(16384-1024)}, v{VOA}
    v_add_u32 v{VOA+3}, {2*(16384-1024)}, v{VOA+1}
    s_lshl_b32 s{S_LA}, s{S_T3}, 12
    """)
    FL = ["", " sc1", " nt", " sc0", " sc1 nt", " sc0 sc1 nt"]
    LDX = FL[opts.get("ldx", 0)]; LDW = FL[opts.get("ldw", 0)]
    def issue(it, tag):
        k = it["kind"]
        if opts.get("x_noload") and 4 <= it["need"] < 2*MB: return
        if k == "A":
            a(f"s_mov_b32 s{S_KA}, {it['hf']*128*2048 + it['blk']*128}")
            a(f"s_add_u32 m0, s{S_LA}, {it['lds']}")
            a("s_nop 0")
            for i in range(4): a.vm(f"buffer_load_dwordx4 v{VOA+i}, {sr(S_X,4)}, s{S_KA} offen offset:{1024*i}{LDX} lds", tag)
        elif k == "B":
            a(f"s_mov_b32 s{S_KB}, {it['u']*32*6144}")
            a(f"s_add_u32 m0, s{S_LB}, {it['lds']}")
            a("s_nop 0")
            for i in range(3): a.vm(f"buffer_load_dwordx4 v{VOB+i}, {sr(S_W,4)}, s{S_KB} offen offset:{1024*i}{LDW} lds", tag)
        elif k == "KV":
            a(f"s_mov_b32 s{S_KB}, {it['u']*32*6144 + 1024}")
            a(f"s_add_u32 m0, s{S_ASL}, {it['lds']}")
            a("s_nop 0")
            for i in range(2): a.vm(f"buffer_load_dwordx4 v{VOB+1+i}, {sr(S_W,4)}, s{S_KB} offen offset:{1024*i}{LDW} lds", tag)
        else:
            a(f"s_mov_b32 s{S_KB}, {it['u']*32*6144}")
            a(f"s_add_u32 m0, s{S_BSL}, {it['lds']}")
            a("s_nop 0")
            a.vm(f"buffer_load_dwordx4 v{VOB}, {sr(S_W,4)}, s{S_KB} offen{LDW} lds", tag)
    a.vq = []
    issue(items[0], "n0")
    a(f"""
    v_and_b32 v12, 1, v12
    s_and_b32 s{S_T0}, s{S_T3}, 1
    s_lshl_b32 s{S_T0}, s{S_T0}, 1
    v_or_b32 v12, s{S_T0}, v12
    v_lshlrev_b32 v12, 1, v12
    v_xor_b32 v13, v11, v12
    s_mul_i32 s{S_T0}, s{S_T3}, {8*6144}
    s_lshl_b32 s{S_T1}, s{S_HP}, 7
    s_add_u32 s{S_T0}, s{S_T0}, s{S_T1}
    v_mul_u32_u24 v15, 6144, v10
    v_add_u32 v15, s{S_T0}, v15
    v_lshl_add_u32 v{VOB}, v13, 4, v15
    v_add_u32 v{VOB+1}, {2048-1024}, v{VOB}
    v_add_u32 v{VOB+2}, {2*(2048-1024)}, v{VOB}
    s_mul_i32 s{S_LB}, s{S_T3}, 3072
    s_lshl_b32 s{S_ASL}, s{S_T3}, 11
    s_lshl_b32 s{S_BSL}, s{S_T3}, 10
    """)
    st_sched = {}
    def ST(k, x):
        st_sched.setdefault(k, []).append(x)
        if x.startswith("s_load") and opts.get("s2", 1):
            head, off = x.rsplit(", ", 1)
            st_sched[k].append(f"{head}, {int(off) + 64}")
    TW, TX, TO, TO2 = 16, 18, 20, 24
    if opts.get("stouch", 1):
        lead = opts.get("slead", 8)
        for i in range(8):
            k = max(4*i - lead, i)
            for seg in range(3): ST(k, f"s_load_dword s22, s[{TW}:{TW+1}], {seg*2048}")
            ST(k, f"s_add_u32 s{TW}, s{TW}, {128*6144}"); ST(k, f"s_addc_u32 s{TW+1}, s{TW+1}, 0")
        for j in range(16): ST(j // 8, f"s_load_dword s22, s[{TX}:{TX+1}], {j*2048 + 3*128}")
        for j in range(16): ST(opts.get("sx11", 6) + j // 2, f"s_load_dword s22, s[{TX}:{TX+1}], {j*2048 + 11*128}")
        for j in range(16): ST(opts.get("swo", 14) + j // 2, f"s_load_dword s22, s[{TO}:{TO+1}], {(j//2)*2048 + (3 + 8*(j&1))*128}")
        woa = opts.get("woa", 16)
        if woa < 16:
            R = (16 - woa) * 32 // 128
            lst = [(kh, j, l) for kh in range(2) for j in range(R) for l in range(16) if l % 8 != 3]
            k0, k1 = opts.get("wk0", 14), opts.get("wk1", 31)
            for i, (kh, j, l) in enumerate(lst):
                ST(k0 + i * (k1 - k0) // len(lst), f"s_load_dword s22, s[{TO2}:{TO2+1}], {kh*512*2048 + j*2048 + l*128 - 0x80000}")
    def st_setup():
        a(f"""
        s_lshr_b32 s{S_T0}, s2, 3
        s_lshl_b32 s{S_T0}, s{S_T0}, 2
        s_add_u32 s{S_T0}, s{S_T0}, s{S_WID}
        s_sub_u32 s{S_T0}, s{S_T0}, 4              ; n = slot*4 + w
        s_mul_i32 s{S_T1}, s{S_T0}, 6144
        s_or_b32 s{S_T2}, s{S_HP}, 3
        s_lshl_b32 s{S_T2}, s{S_T2}, 7
        s_add_u32 s{S_T1}, s{S_T1}, s{S_T2}
        s_add_u32 s{TW}, s{S_W}, s{S_T1}
        s_addc_u32 s{TW+1}, s{S_W+1}, 0
        s_lshl_b32 s{S_T1}, s{S_T0}, 15
        s_lshl_b32 s{S_T2}, s{S_C}, 19
        s_sub_u32 s{TX}, s{S_X}, s{S_T2}
        s_subb_u32 s{TX+1}, s{S_X+1}, 0
        s_add_u32 s{TX}, s{TX}, s{S_T1}
        s_addc_u32 s{TX+1}, s{TX+1}, 0
        s_lshl_b32 s{S_T1}, s{S_T0}, 14
        s_add_u32 s{TO}, s{S_WO}, s{S_T1}
        s_addc_u32 s{TO+1}, s{S_WO+1}, 0
        s_mul_i32 s{S_T1}, s{S_T0}, {(16 - opts.get("woa", 16)) * 32 // 128 * 2048}
        s_add_u32 s{S_T1}, s{S_T1}, {32 * opts.get("woa", 16) * 2048 + 0x80000}
        s_add_u32 s{TO2}, s{S_WO}, s{S_T1}
        s_addc_u32 s{TO2+1}, s{S_WO+1}, 0
        """)
    pendq = items[1:]
    for k in range(-1, nst):
        budget = opts.get("pro", 14) if k < 0 else (opts.get("bud0", 10) if k < 4 else (opts.get("bud", 7) if k < 31 else 10))
        for it in list(pendq):
            if it["after"] <= k and it["need"] <= k + 6 and (budget >= it["n"] or it["need"] <= k + 2):
                pendq.remove(it); issue(it, f"n{it['need']}"); budget -= it["n"]
        if k == -1:
            common_setup(); st_setup()
        for x in st_sched.get(k, []): a(x)
        if k == opts.get("wvt", 99):
            a(f"""
            s_and_b32 s{S_T0}, s{S_OC}, 1
            s_lshl_b32 s{S_T0}, s{S_T0}, 2
            s_add_u32 s{S_T0}, s{S_T0}, s{S_WID}
            s_sub_u32 s{S_T0}, s{S_T0}, 4
            s_lshl_b32 s{S_T0}, s{S_T0}, 18
            s_lshl_b32 s{S_T1}, s{S_OJ}, 7
            s_add_u32 s{S_T0}, s{S_T0}, s{S_T1}
            v_lshlrev_b32 v9, 11, v0
            s_add_u32 s{S_T1}, s{S_T0}, 0x20000
            """)
            a.vm(f"buffer_load_dword v10, v9, {sr(S_WO,4)}, s{S_T0} offen", "wt")
            a.vm(f"buffer_load_dword v10, v9, {sr(S_WO,4)}, s{S_T1} offen", "wt")
        if 18 <= k < 28:
            if k == 18:
                a("v_lshlrev_b32 v1, 4, v0")
                lc = [x for x in attn_consts0(1) + attn_consts1() + attn_consts2() if not x.startswith(f"s_lshl_b32 s{S_LA},")]
                lc.append(f"v_add_u32 v{CT}, {LDS_BYTES - 8192}, v1")
                lc = [x.replace(f"s{S_T0}", "s26").replace(f"s{S_T1}", "s27") for x in lc]
                per = -(-len(lc) // 10)
            for x in lc[(k-18)*per:(k-17)*per]: a(x)
        if k == 32:
            a(f"s_lshl_b32 s{S_LA}, s{S_WID}, 10")
            for i in range(8): a(f"ds_write_b128 v{CT}, {vr((BD if i < 4 else BF) + 4*(i%4), 4)} offset:{1024*i}")
            a("s_waitcnt lgkmcnt(0)")
        if k + 1 < nst:
            assert not any(it["need"] <= k + 1 for it in pendq), k
            a.wait_vm(*[f"n{j}" for j in range(k + 2)])
            if not (opts.get("x_nobar") and 0 <= k < 2*MB): a("s_barrier")
            elif opts.get("x_nobar") == 2: a("s_sleep 10")
    assert not pendq and set(a.vq) <= {"wt"}, (pendq, a.vq)
    a("s_barrier")
    VL = 1; VT = 4
    a("L_attn:\n; ---- phase 2: attention; four specialised streams (query-block pairs u, 7-u)")
    a(f"""
    s_lshr_b32 s{S_T0}, s{S_WID}, 1
    s_waitcnt lgkmcnt(0)
    s_barrier
    """)
    stamp(3)
    a(f"""
    s_cmp_eq_u32 s{S_T0}, 1
    s_cbranch_scc1 L_u1
    s_cmp_eq_u32 s{S_T0}, 2
    s_cbranch_scc1 L_u2
    s_cmp_eq_u32 s{S_T0}, 3
    s_cbranch_scc1 L_u3
    """)
    def wo_dma(step, vw=VW, both=False):
        a(f"s_add_u32 m0, s{S_LA}, {wo_slot(step)}")
        a(f"s_mov_b32 s{S_T3}, {step*32*2048}")
        a.vm(f"buffer_load_dwordx4 v{vw}, {sr(S_WO,4)}, s{S_T3} offen{FL[opts.get('ldo', 0)]} lds", f"d{step}")
        if both:
            a(f"s_xor_b32 s{S_T2}, s{S_LA}, 4096")
            a(f"s_add_u32 m0, s{S_T2}, {wo_slot(step)}")
            a("s_nop 0")
            a.vm(f"buffer_load_dwordx4 v{VW2}, {sr(S_WO,4)}, s{S_T3} offen{FL[opts.get('ldo', 0)]} lds", f"d{step}")
    def run_tasks(tasks, hooks, first_touch):
        n = len(tasks)
        def rdK(i):
            for f in range(2):
                a.lds(f"ds_read_b128 {vr(KF+4*f,4)}, v{VKP if tasks[i][4] else VK} offset:{tasks[i][1]+1024*f}", f"k{f}")
        def rdV(i):
            for f in range(2):
                a.lds(f"ds_read_b128 {vr(VF+4*f,4)}, v{VVP if tasks[i][4] else VV} offset:{tasks[i][2]+1024*f}", f"v{f}")
        def qk(i, f):
            u, _, _, bias, _ = tasks[i]
            q = QA if u == "A" else QB
            s = vr(SS[i % 2], 16)
            c = s if f else (vr(bias, 16) if bias is not None else "0")
            a.wait_lds(f"k{f}")
            a(f"v_mfma_f32_32x32x16_bf16 {s}, {vr(KF+4*f,4)}, {vr(q+4*f,4)}, {c}")
        def pv(i, f):
            u = tasks[i][0]
            o = vr(OA if u == "A" else OB, 16)
            c = "0" if (u in first_touch and f == 0) else o
            a.wait_lds(f"v{f}")
            a(f"v_mfma_f32_32x32x16_bf16 {o}, {vr(VF+4*f,4)}, {vr(PP[i%2]+4*f,4)}, {c}")
        def sm(i, f):
            u = tasks[i][0]
            l = vr(LA if u == "A" else LB, 4)
            c = l
            if u in first_touch and f == 0:
                c = "0"; first_touch.discard(u)
            a(f"v_mfma_f32_16x16x32_bf16 {l}, {vr(ON,4)}, {vr(PP[i%2]+4*f,4)}, {c}")
        rdK(0)
        qk(0, 0); qk(0, 1)
        if n > 1: rdK(1)
        for i in range(n + 1):
            for h in hooks.get(i, []): h()
            s = SS[i % 2]; p = PP[i % 2]
            ex = [f"v_exp_f32 v{s+r}, v{s+r}" for r in range(16)] if i < n else []
            cv = [f"v_cvt_pk_bf16_f32 v{p+j}, v{s+2*j}, v{s+2*j+1}" for j in range(8)] if i < n else []
            def E(k):
                for _ in range(k):
                    if ex: a(ex.pop(0))
            def C(k):
                for _ in range(k):
                    if cv: a(cv.pop(0))
            if i + 1 < n: qk(i+1, 0)
            if i == 0: a("s_nop 7"); a("s_nop 3")
            if i == n: a("s_nop 1")
            E(3)
            if i >= 1: pv(i-1, 0)
            E(3)
            if i + 1 < n:
                qk(i+1, 1)
                if i + 2 < n: rdK(i+2)
            E(3)
            if i >= 1: pv(i-1, 1)
            if i < n: rdV(i)
            E(3); C(2)
            if i >= 1: sm(i-1, 0)
            E(4); C(1)
            if i >= 1: sm(i-1, 1)
            C(5)
    uid = [0]
    def finalize(U, qb_expr):
        O, Ls = (OA, LA) if U == "A" else (OB, LB)
        uid[0] += 1
        a(f"""
        {qb_expr}
        s_nop 3
        v_cmp_le_f32 s[{S_M0}:{S_M0+1}], s{S_LO}, v{Ls}
        v_cmp_ge_f32 s[{S_M1}:{S_M1+1}], s{S_HI}, v{Ls}
        s_lshl_b32 s{S_T0}, s{S_QB}, 16
        s_add_u32 s{S_T0}, s{S_T0}, s{S_OB}
        s_and_b64 s[{S_M0}:{S_M0+1}], s[{S_M0}:{S_M0+1}], s[{S_M1}:{S_M1+1}]
        s_cmp_eq_u64 s[{S_M0}:{S_M0+1}], -1
        s_cbranch_scc1 L_ok{uid[0]}
        s_call_b64 s[{S_RET}:{S_RET+1}], L_slow{U}
        L_ok{uid[0]}:
        v_rcp_f32 v{Ls+1}, v{Ls}
        s_nop 0
        """)
        for r in range(16): a(f"v_mul_f32 v{O+r}, v{O+r}, v{Ls+1}")
        for j in range(8): a(f"v_cvt_pk_bf16_f32 v{O+j}, v{O+2*j}, v{O+2*j+1}")
        a.vm(f"buffer_store_dwordx4 {vr(O,4)}, v{VO}, {sr(S_WS,4)}, s{S_T0} offen sc1", "o" + U)
        a.vm(f"buffer_store_dwordx4 {vr(O+4,4)}, v{VO}, {sr(S_WS,4)}, s{S_T0} offen offset:512 sc1", "o" + U)
    def o_flag(U, qb_expr, alt=None):
        VT = 4 if alt is None else 48
        a(f"""
        {qb_expr}
        s_lshl_b32 s{S_T0}, s{S_QB}, 8
        s_add_u32 s{S_T0}, s{S_T0}, s{S_FO}
        v_mov_b32 v{VT}, s{S_NON}
        v_mov_b32 v{VT+1}, s{S_TAG}
        v_mov_b32 v{VT+2}, 0
        """)
        a.wait_vm("o" + U)
        a("s_mov_b64 exec, 1")
        a.vm(f"buffer_store_dwordx2 v[{VT}:{VT+1}], v{VT+2}, {sr(S_WS,4)}, s{S_T0} offen sc1", "fl")
        a("s_mov_b64 exec, -1")
        a("s_nop 3")
        if U == "B":
            qs = list(a.q); stamp("ofl"); a.q = qs
    VR = 8; VPL = 12; VOUT = 13; VL2 = 14; VRD = 15
    WFR = 16; TMP = 48; ACB = [224, 128]
    ORING = [64, 72, 112, 120, 160, 168, 176, 200, 208, 216]
    OSC = " sc1"
    OPRE = opts.get("opre", 6)
    OAH = opts.get("oahead", 8)
    def ofr(g): return ORING[g % 10]
    def p3_pre():
        a(f"""
        s_lshr_b32 s{S_TH}, s{S_WID}, 2
        s_and_b32 s{S_DB}, s{S_WID}, 3
        s_lshl_b32 s{S_T0}, s{S_P}, 3
        s_add_u32 s{S_T0}, s{S_T0}, s{S_OC}
        s_lshl_b32 s{S_T1}, s{S_T0}, 3
        s_add_u32 s{S_T1}, s{S_T1}, s{S_DB}
        s_lshl_b32 s{S_KB}, s{S_T1}, 8
        s_lshl_b32 s{S_T2}, s{S_TH}, 7
        s_add_u32 s{S_KB}, s{S_KB}, s{S_T2}
        s_add_u32 s{S_KB}, s{S_KB}, {WS_FO}
        v_and_b32 v7, 15, v0
        v_lshlrev_b32 v7, 3, v7
        s_lshl_b32 s{S_KA}, s{S_T1}, 16
        s_lshl_b32 s{S_T2}, s{S_TH}, 14
        s_add_u32 s{S_KA}, s{S_KA}, s{S_T2}
        s_add_u32 s{S_KA}, s{S_KA}, {WS_O + 4*65536}
        v_add_u32 v{CT}, 0x8000, v{VL}
        s_and_b32 s{S_T2}, s{S_OJ}, {opts.get("x_rot", 0)}
        s_lshl_b32 s{S_T2}, s{S_T2}, 10
        s_add_u32 s{S_KA}, s{S_KA}, s{S_T2}
        """)
        a.vm(f"buffer_load_dwordx2 v[2:3], v7, {sr(S_WS,4)}, s{S_KB} offen offset:1024 sc1", "pl")
    def flags_ok():
        a(f"""
        v_cmp_eq_u32 s[{S_M0}:{S_M0+1}], s{S_NON}, v2
        v_cmp_eq_u32 s[{S_M1}:{S_M1+1}], s{S_TAG}, v3
        s_nop 1
        s_and_b64 s[{S_M0}:{S_M0+1}], s[{S_M0}:{S_M0+1}], s[{S_M1}:{S_M1+1}]
        s_cmp_eq_u64 s[{S_M0}:{S_M0+1}], -1
        """)
    def poll(tag, off, vpl):
        a.wait_vm("pl")
        a(f"s_mov_b32 s{S_CNT}, 0x40000")
        a(f"L_op{tag}:")
        flags_ok()
        a(f"""
        s_cbranch_scc1 L_og{tag}
        s_sub_u32 s{S_CNT}, s{S_CNT}, 1
        s_cmp_eq_u32 s{S_CNT}, 0
        s_cbranch_scc1 L_og{tag}
        s_sleep 1
        buffer_load_dwordx2 v[2:3], v{vpl}, {sr(S_WS,4)}, s{S_KB} offen offset:{off} sc1
        s_waitcnt vmcnt(0)
        s_branch L_op{tag}
        L_og{tag}:
        """)
    def o_load(g, vl2=VL2):
        i = g % 16
        if g == 16: a(f"s_sub_u32 s{S_KA}, s{S_KA}, {4*65536 + 3*4096}")
        elif i % 4 == 0 and i: a(f"s_add_u32 s{S_KA}, s{S_KA}, 4096")
        r = ofr(g)
        a.vm(f"buffer_load_dwordx4 {vr(r,4)}, v{VL}, {sr(S_WS,4)}, s{S_KA} offen offset:{(i%4)*1024}{OSC}", f"o{g}")
        a.vm(f"buffer_load_dwordx4 {vr(r+4,4)}, v{vl2}, {sr(S_WS,4)}, s{S_KA} offen offset:{(i%4)*1024}{OSC}", f"o{g}")
    for u in range(4):
        if u: a(f"L_u{u}:")
        qa, qb = u, 7 - u
        a(f"v_add_u32 v{VT}, v{VFL}, v{VL}")
        for f in range(2):
            a.lds(f"ds_read_b128 {vr(QB+4*f,4)}, v{VT} offset:{qb*2048+f*1024}", "q")
        for f in range(2):
            a.lds(f"ds_read_b128 {vr(QA+4*f,4)}, v{VT} offset:{qa*2048+f*1024}", "qa")
        a.wait_lds("q")
        own = lambda U, q: [(U, t*2048, t*2048, None, 0) for t in range(q)] + [(U, q*2048, q*2048, BD, 0)]
        prv = lambda U, q: [(U, q*4096, q*4096, BF, 1)] + [(U, t*4096, t*4096, None, 1) for t in range(q+1, 8)]
        hooks = {}
        def H(i, f): hooks.setdefault(i, []).append(f)
        def poll_issue():
            a(f"""
            s_cmp_eq_u32 s{S_C}, 0
            s_cbranch_scc1 L_np{u}
            v_mov_b32 v{VT+2}, 0
            buffer_load_dwordx2 v[2:3], v{VT+2}, {sr(S_WS,4)}, s{S_KA} offen sc1
            L_np{u}:
            """)
        def kv_dma(j):
            def f():
                a(f"""
                s_cmp_eq_u32 s{S_C}, 0
                s_cbranch_scc1 L_nd{u}_{j}
                s_add_u32 m0, s{S_DB}, {4096*j}
                s_add_u32 s{S_T2}, s{S_DA}, {4096*j}
                """)
                for k in range(4):
                    a(f"buffer_load_dwordx4 v{VL}, {sr(S_WS,4)}, s{S_T2} offen offset:{1024*k} sc1 lds")
                a(f"L_nd{u}_{j}:")
            return f
        def poll_check():
            a(f"""
            s_cmp_eq_u32 s{S_C}, 0
            s_cbranch_scc1 L_got{u}
            s_mov_b32 s{S_CNT}, 0x40000
            L_poll{u}:
            s_waitcnt vmcnt(0)
            v_readfirstlane_b32 s{S_T2}, v2
            v_readfirstlane_b32 s{S_T3}, v3
            s_cmp_eq_u32 s{S_T2}, s{S_NON}
            s_cselect_b32 s{S_T2}, 1, 0
            s_cmp_eq_u32 s{S_T3}, s{S_TAG}
            s_cselect_b32 s{S_T2}, s{S_T2}, 0
            s_cmp_lg_u32 s{S_T2}, 0
            s_cbranch_scc1 L_got{u}
            s_sub_u32 s{S_CNT}, s{S_CNT}, 1
            s_cmp_eq_u32 s{S_CNT}, 0
            s_cbranch_scc1 L_got{u}
            s_sleep 1
            buffer_load_dwordx2 v[2:3], v{VT+2}, {sr(S_WS,4)}, s{S_KA} offen sc1
            s_branch L_poll{u}
            L_got{u}:
            s_add_u32 s{S_DA}, s{S_KVB}, {(u*16384 - 32768) & 0xffffffff}
            s_lshl_b32 s{S_DB}, s{S_HH}, 15
            s_add_u32 s{S_DB}, s{S_DB}, {R_PREV + u*16384}
            """)
            qs = list(a.q); stamp("got"); a.q = qs
        def landed_b():
            a(f"""
            v_mov_b32 v2, s{S_NON}
            v_mov_b32 v3, s{S_TAG}
            s_lshl_b32 s{S_T2}, s{S_HH}, 3
            s_add_u32 s{S_T2}, s{S_T2}, {R_Q + 24576}
            v_mov_b32 v{VFL}, s{S_T2}
            """)
            a.wait_vm_all()
            a.lds(f"ds_write_b64 v{VFL}, v[2:3]", "fw")
        def wait_b():
            a(f"""
            s_lshl_b32 s{S_T2}, s{S_HH}, 3
            s_add_u32 s{S_T2}, s{S_T2}, {R_Q + 24576}
            v_mov_b32 v{VFL}, s{S_T2}
            """)
            a.wait_lds_all()
            wait_landed(0, "b")
        def landed():
            a.wait_lds("qa")
            a(f"""
            v_mov_b32 v2, s{S_NON}
            v_mov_b32 v3, s{S_TAG}
            s_waitcnt vmcnt(0)
            """)
            a.lds(f"ds_write_b64 v{VFL}, v[2:3] offset:{qa*2048}", "fw")
        def wait_landed(th, tag):
            assert not a.q
            a(f"""
            s_mov_b32 s{S_CNT}, 0x400000
            L_wl{u}{tag}:
            ds_read_b64 v[2:3], v{VFL} offset:{th*2048}
            s_waitcnt lgkmcnt(0)
            v_readfirstlane_b32 s{S_T2}, v2
            v_readfirstlane_b32 s{S_T3}, v3
            s_cmp_eq_u32 s{S_T2}, s{S_NON}
            s_cselect_b32 s{S_T2}, 1, 0
            s_cmp_eq_u32 s{S_T3}, s{S_TAG}
            s_cselect_b32 s{S_T2}, s{S_T2}, 0
            s_cmp_lg_u32 s{S_T2}, 0
            s_cbranch_scc1 L_wd{u}{tag}
            s_sub_u32 s{S_CNT}, s{S_CNT}, 1
            s_cmp_eq_u32 s{S_CNT}, 0
            s_cbranch_scc1 L_wd{u}{tag}
            s_sleep 1
            s_branch L_wl{u}{tag}
            L_wd{u}{tag}:
            """)
        if u == 1:
            c1 = opts.get("c1", 1)
            H(0, poll_issue); H(c1, poll_check)
            for j in range(4): H(c1 + j // 2, kv_dma(j))
            H(opts.get("l1", 4), landed)
        if u == 0:
            stores[:] = list(deferred)
            nd = len(deferred); spt = opts.get("spt", 2)
            for j in range(nd): H(j // spt, lambda: kv_store(VL))
            pub = opts.get("pub_at", 3)
            H(pub, lambda: publish(VT)); H(pub, poll_issue)
            c0_ = opts.get("c0", 6)
            H(c0_, poll_check)
            for j in range(4): H(c0_ + j // 2, kv_dma(j))
        ft = {"A", "B"}
        run_tasks(own("B", qb), hooks, ft)
        a.wait_lds_all()
        stamp(4)
        a(f"s_cmp_eq_u32 s{S_C}, 0")
        a(f"s_cbranch_scc1 L_z{u}")
        wait_landed(1, "a")
        a.vq = []
        hooks = {}
        nB = 8 - qb
        qbx = f"s_mov_b32 s{S_QB}, {qb}"
        n23 = nB + qa + 1
        H(nB + 1, lambda: finalize("B", qbx))
        fl = nB + 1 + opts.get("ofl", 2)
        if fl <= n23: H(fl, lambda: o_flag("B", qbx))
        run_tasks(prv("B", qb) + own("A", qa), hooks, ft)
        vq23 = list(a.vq)
        a(f"s_branch L_w{u}")
        a(f"L_z{u}:")
        a.vq = []
        a("s_nop 7")
        finalize("B", qbx)
        run_tasks(own("A", qa), {}, {"A"})
        if fl <= n23: o_flag("B", qbx)
        a.vq = vq23
        a(f"L_w{u}:")
        a.wait_lds_all()
        if u < 2: a("s_setprio 0")
        a("s_barrier")
        stamp(5)
        hooks = {}
        if fl > n23: H(max(fl - n23 - 1, 0), lambda: o_flag("B", qbx))
        nA = 8 - qa
        w0 = max(fl - n23 - 1, 0)
        sts = list(range(11))
        wpt = opts.get("wpt", 3)
        if u == 0:
            H(opts.get("lb", 1), landed_b); w0 = max(w0, opts.get("lb", 1))
        for t in range(w0, nA - 1):
            k = wpt if t < nA - 2 else 12
            for st in sts[:k]: H(t, (lambda s_: (lambda: wo_dma(s_)))(st))
            sts = sts[k:]
        assert not sts
        hooks_c0 = {t: list(v) for t, v in hooks.items()}
        if u: H(2, wait_b)
        H(nA - 1, p3_pre); hooks_c0.setdefault(nA - 1, []).append(p3_pre)
        a(f"s_cmp_eq_u32 s{S_C}, 0")
        a(f"s_cbranch_scc1 L_y{u}")
        vq4 = list(a.vq)
        run_tasks(prv("A", qa)[::-1], hooks, set())
        stamp(7)
        a(f"s_mov_b32 s{S_QB}, {qa}")
        a("s_nop 7")
        a("s_branch L_last")
        a(f"L_y{u}:")
        a.vq = vq4
        for t in sorted(hooks_c0):
            for h in hooks_c0[t]: h()
        a.wait_lds_all()
        stamp(7)
        a(f"s_mov_b32 s{S_QB}, {qa}")
        if u < 3: a("s_branch L_last")
    a("L_last:\n; ---- last attention epilogue, then phase 3: output projection")
    a.vq = ["old"]
    finalize("A", "")
    a.wait_vm("old")
    flags_ok()
    a("s_cbranch_scc0 L_late")
    for g in range(OPRE): o_load(g, CT)
    o_flag("A", "")
    a("s_branch L_p3")
    a("L_late:")
    vq_keep = list(a.vq)
    a.vq = ["oA", "oA"]
    o_flag("A", "")
    a.vm(f"buffer_load_dwordx2 v[2:3], v7, {sr(S_WS,4)}, s{S_KB} offen offset:1024 sc1", "pl")
    poll("1", 1024, 7)
    for g in range(OPRE): o_load(g, CT)
    a("s_waitcnt vmcnt(0)")
    a.vq = vq_keep
    a("L_p3:")
    a(f"""
    v_bfe_u32 v5, v0, 2, 2
    v_bfe_u32 v6, v0, 4, 1
    v_lshl_add_u32 v5, v6, 2, v5
    v_lshlrev_b32 v{VR}, 7, v5
    v_bfe_u32 v6, v5, 1, 2
    v_lshl_add_u32 v{VR}, v6, 5, v{VR}
    v_and_b32 v6, 3, v0
    v_lshl_add_u32 v{VR}, v6, 3, v{VR}
    v_lshrrev_b32 v6, 5, v0
    v_lshl_add_u32 v{VR}, v6, 11, v{VR}
    s_lshl_b32 s{S_T0}, s{S_TH}, 12
    v_add_u32 v{VR}, s{S_T0}, v{VR}
    s_lshl_b32 s{S_T0}, s{S_TH}, 6
    v_xor_b32 v{VR}, s{S_T0}, v{VR}
    v_xor_b32 v{VR+1}, 32, v{VR}
    v_xor_b32 v{VR+2}, 64, v{VR}
    v_xor_b32 v{VR+3}, 0x60, v{VR}
    v_mov_b32 v{VPL}, v7
    v_mov_b32 v{VL2}, v{CT}
    v_mov_b32 v7, v{VW}
    """)
    a("s_barrier")
    stamp(9)
    for st in range(11, 16): wo_dma(st, 7)
    a(f"""
    v_and_b32 v{VOUT}, 15, v0
    v_lshlrev_b32 v{VOUT}, 12, v{VOUT}
    v_bfe_u32 v6, v0, 4, 1
    v_lshl_add_u32 v{VOUT}, v6, 5, v{VOUT}
    v_lshrrev_b32 v6, 5, v0
    v_lshl_add_u32 v{VOUT}, v6, 4, v{VOUT}
    s_lshl_b32 s{S_T0}, s{S_OC}, 8
    s_lshl_b32 s{S_T1}, s{S_DB}, 5
    s_add_u32 s{S_T0}, s{S_T0}, s{S_T1}
    s_lshl_b32 s{S_T0}, s{S_T0}, 12
    s_lshl_b32 s{S_T1}, s{S_P}, 11
    s_add_u32 s{S_T0}, s{S_T0}, s{S_T1}
    s_lshl_b32 s{S_T1}, s{S_OJ}, 7
    s_add_u32 s{S_T0}, s{S_T0}, s{S_T1}
    s_lshl_b32 s{S_T1}, s{S_TH}, 6
    s_add_u32 s{S_DA}, s{S_T0}, s{S_T1}
    s_lshl_b32 s{S_T0}, s{S_WID}, 12
    s_add_u32 s{S_T0}, s{S_T0}, {R_RED}
    v_add_u32 v{VRD}, s{S_T0}, v{VL}
    s_xor_b32 s{S_T0}, s{S_T0}, 0x4000
    v_add_u32 v4, s{S_T0}, v{VL}
    """)
    cur_base = [0]
    def rdWo(g, nb, hh_=None):
        slot = wo_slot(g % 16)
        assert slot & ~0xffff == cur_base[0], (g, nb)
        w = WFR + 16 * (g % 2) + 4 * nb
        for h in (range(2) if hh_ is None else [hh_]):
            a.lds(f"ds_read_b64_tr_b16 {vr(w+2*h,2)}, v{VR+nb} offset:{(slot & 0xffff) + h*1024}", f"w{g%2}_{nb}")
    def rebase(g):
        base = wo_slot(g % 16) & ~0xffff
        if base != cur_base[0]:
            d = (base - cur_base[0]) & 0xffffffff
            for q in range(4): a(f"v_add_u32 v{VR+q}, {d:#x}, v{VR+q}")
            cur_base[0] = base
    def ac(sl, nb, tb): return ACB[sl] + (nb*2 + tb)*4
    KEEP = f"s[{S_CODE}:{S_CODE+1}]"
    def red_send(sl):
        hi = ac(sl, 2, 0)
        return [("lds", f"ds_write_b128 v{VRD}, {vr(hi+4*i,4)} offset:{1024*i}", "rw") for i in range(4)]
    def red_recv(sl):
        lo = ac(sl, 0, 0)
        o = [("lds", f"ds_read_b128 {vr(TMP+4*i,4)}, v4 offset:{1024*i}", f"rr{i}") for i in range(4)]
        for i in range(4):
            o.append(("wait", f"rr{i}"))
            for r in range(4): o.append(f"v_add_f32 v{lo+4*i+r}, v{lo+4*i+r}, v{TMP+4*i+r}")
        for tb in range(2):
            ra, rb_, t = lo + 4*tb, lo + 8 + 4*tb, TMP + 4*tb
            o += [f"v_cvt_pk_bf16_f32 v{t}, v{ra}, v{ra+1}", f"v_cvt_pk_bf16_f32 v{t+1}, v{ra+2}, v{ra+3}",
                  f"v_cvt_pk_bf16_f32 v{t+2}, v{rb_}, v{rb_+1}", f"v_cvt_pk_bf16_f32 v{t+3}, v{rb_+2}, v{rb_+3}"]
        o += [f"s_add_u32 s{S_T0}, s{S_DA}, {(1-sl)*128*4096}", f"s_add_u32 s{S_T1}, s{S_T0}, 0x10000"]
        for tb in range(2): o += swap(TMP + 4*tb)
        o.append("s_nop 0")
        for tb in range(2):
            o.append(("vm", f"buffer_store_dwordx4 {vr(TMP+4*tb,4)}, v{VOUT}, {sr(S_OUT,4)}, s{S_T1 if tb else S_T0} offen{['', ' sc1', ' nt', ' sc0 sc1'][opts.get('outsc', 1)]}", "st"))
        return o
    def emit(x):
        if isinstance(x, str): a(x)
        elif x[0] == "lds": a.lds(x[1], x[2])
        elif x[0] == "vm": a.vm(x[1], x[2])
        else: a.wait_lds(x[1])
    for nb in range(4): rdWo(0, nb)
    side = []
    P2C = opts.get("p2c", 11)
    issued = set()
    def issue_step(x): return max(x - OAH, P2C) if x >= 16 else x - OAH
    for g in range(32):
        sl, st = divmod(g, 16)
        if g == 9:
            a.wait_vm("d15"); a("s_barrier")
        if g == P2C - 2:
            a.vm(f"buffer_load_dwordx2 v[2:3], v{VPL}, {sr(S_WS,4)}, s{S_KB} offen sc1", "pl")
        if g == P2C: poll("0", 0, VPL)
        if g == 16:
            qsave = list(a.q); stamp("mm1"); a.q = qsave
        if g == 17: side = red_send(0)
        if g == 19:
            assert not side
            a.wait_lds("rw"); a("s_barrier"); side = red_recv(0)
        if g == 27:
            assert not side
            a("s_barrier")
        a.wait_vm(f"o{g}")
        if g < 31: rebase(g + 1)
        a.wait_lds(*[f"w{g%2}_{nb}" for nb in range(4)])
        for nb in range(4):
            for tb in range(2):
                d = vr(ac(sl, nb, tb), 4)
                a(f"v_mfma_f32_16x16x32_bf16 {d}, {vr(WFR+16*(g%2)+4*nb,4)}, {vr(ofr(g)+4*tb,4)}, {d if st else '0'}")
                if g < 31: rdWo(g + 1, nb, tb)
                for _ in range(2):
                    if side: emit(side.pop(0))
            if nb in (1, 3):
                due = [x for x in range(OPRE, 32) if x not in issued and issue_step(x) <= g]
                if due:
                    o_load(due[0]); issued.add(due[0])
    stamp(10)
    a("s_nop 7")
    for x in red_send(1): emit(x)
    a.wait_lds_all()
    a("s_barrier")
    for x in red_recv(1): emit(x)
    if stamps:
        a("s_waitcnt vmcnt(0)")
        stamp(11)
        a(f"""
        s_lshl_b32 s{S_T0}, s2, 3
        s_add_u32 s{S_T0}, s{S_T0}, s{S_WID}
        s_lshl_b32 s{S_T0}, s{S_T0}, 6
        s_add_u32 s{S_T0}, s{S_T0}, {WS_STAMP}
        v_mov_b32 v7, 0
        """)
        for i in range(16): a(f"v_mov_b32 v{8+i}, s{4+i}")
        a(f"""
        s_mov_b64 exec, 1
        buffer_store_dwordx4 v[8:11], v7, {sr(S_WS,4)}, s{S_T0} offen
        buffer_store_dwordx4 v[12:15], v7, {sr(S_WS,4)}, s{S_T0} offen offset:16
        buffer_store_dwordx4 v[16:19], v7, {sr(S_WS,4)}, s{S_T0} offen offset:32
        buffer_store_dwordx4 v[20:23], v7, {sr(S_WS,4)}, s{S_T0} offen offset:48
        s_mov_b64 exec, -1
        """)
    if not EARLY: a(f"""
    s_cmp_lg_u32 s{S_WID}, 0
    s_cbranch_scc1 L_end
    v_mov_b32 v4, 1
    v_mov_b32 v7, 0
    s_mov_b64 exec, 1
    buffer_atomic_add v4, v7, {sr(S_DBG,4)}, 0 offen sc0
    s_waitcnt vmcnt(0)
    v_readfirstlane_b32 s{S_T0}, v4
    s_cmp_lg_u32 s{S_T0}, 255
    s_cbranch_scc1 L_end
    v_mov_b32 v4, s{S_NON}
    s_mov_b32 s{S_T1}, {WS_FLAG}
    buffer_store_dword v4, v7, {sr(S_WS,4)}, s{S_T1} offen sc1
    """)
    a(f"""
    L_end:
    s_endpgm
    """)
    for U, O, Ls, Q in (("A", OA, LA, QA), ("B", OB, LB, QB)):
        S = 64; P = 112; K2 = 120; V2 = 160; M = 168; NB = 169; AK = 170; AT = 171
        if U == "A":
            S = SS[0]; P = PP[0]; K2 = KF; V2 = VF; M = SS[1]; NB = M + 1; AK = M + 2; AT = M + 3
        a(f"""
        L_slow{U}:
        v_and_b32 v{AK}, 0x33, v0
        v_bfe_u32 v{AT}, v0, 2, 1
        v_lshl_or_b32 v{AK}, v{AT}, 3, v{AK}
        v_bfe_u32 v{AT}, v0, 3, 1
        v_lshl_or_b32 v{AK}, v{AT}, 2, v{AK}
        v_lshlrev_b32 v{AK}, 4, v{AK}
        v_mov_b32 v{M}, 0xff800000
        s_mov_b32 s{S_U0}, 0
        L_sp{U}:
        s_mov_b32 s{S_U1}, 0
        s_cmp_eq_u32 s{S_C}, 0
        s_cbranch_scc0 L_st{U}
        s_sub_u32 s{S_U1}, 8, s{S_QB}
        L_st{U}:
        s_add_u32 s{S_U2}, s{S_U1}, s{S_QB}
        s_lshl_b32 s{S_U2}, s{S_U2}, 12
        s_add_u32 s{S_U2}, s{S_U2}, s{S_KVB}
        s_sub_u32 s{S_U2}, s{S_U2}, 0x8000
        buffer_load_dwordx4 {vr(K2,4)}, v{AK}, {sr(S_WS,4)}, s{S_U2} offen sc1
        buffer_load_dwordx4 {vr(K2+4,4)}, v{AK}, {sr(S_WS,4)}, s{S_U2} offen offset:1024 sc1
        buffer_load_dwordx4 {vr(V2,4)}, v{VL}, {sr(S_WS,4)}, s{S_U2} offen offset:2048 sc1
        buffer_load_dwordx4 {vr(V2+4,4)}, v{VL}, {sr(S_WS,4)}, s{S_U2} offen offset:3072 sc1
        s_waitcnt vmcnt(0)
        s_cmp_eq_u32 s{S_U1}, 0
        s_cbranch_scc1 L_sf{U}
        s_cmp_eq_u32 s{S_U1}, 8
        s_cbranch_scc1 L_sd{U}
        v_mfma_f32_32x32x16_bf16 {vr(S,16)}, {vr(K2,4)}, {vr(Q,4)}, 0
        s_branch L_sj{U}
        L_sf{U}:
        v_mfma_f32_32x32x16_bf16 {vr(S,16)}, {vr(K2,4)}, {vr(Q,4)}, {vr(BF,16)}
        s_branch L_sj{U}
        L_sd{U}:
        v_mfma_f32_32x32x16_bf16 {vr(S,16)}, {vr(K2,4)}, {vr(Q,4)}, {vr(BD,16)}
        L_sj{U}:
        v_mfma_f32_32x32x16_bf16 {vr(S,16)}, {vr(K2+4,4)}, {vr(Q+4,4)}, {vr(S,16)}
        s_nop 7
        s_nop 7
        s_cmp_eq_u32 s{S_U0}, 0
        s_cbranch_scc0 L_s2{U}
        """)
        for r in range(16): a(f"v_max_f32 v{M}, v{M}, v{S+r}")
        a(f"s_branch L_sn{U}")
        a(f"L_s2{U}:")
        for r in range(16): a(f"v_sub_f32 v{S+r}, v{S+r}, v{M}")
        for r in range(16): a(f"v_exp_f32 v{S+r}, v{S+r}")
        a("s_nop 0")
        for j in range(8): a(f"v_cvt_pk_bf16_f32 v{P+j}, v{S+2*j}, v{S+2*j+1}")
        a("s_nop 1")
        for f in range(2):
            a(f"v_mfma_f32_32x32x16_bf16 {vr(O,16)}, {vr(V2+4*f,4)}, {vr(P+4*f,4)}, {vr(O,16)}")
        for f in range(2):
            a(f"v_mfma_f32_16x16x32_bf16 {vr(Ls,4)}, {vr(ON,4)}, {vr(P+4*f,4)}, {vr(Ls,4)}")
        a(f"""
        s_nop 7
        s_nop 7
        L_sn{U}:
        s_add_u32 s{S_U1}, s{S_U1}, 1
        s_cmp_le_u32 s{S_U1}, 8
        s_cbranch_scc1 L_st{U}
        s_cmp_eq_u32 s{S_U0}, 0
        s_cbranch_scc0 L_sx{U}
        v_mov_b32 v{NB}, v{M}
        s_nop 1
        v_permlane32_swap_b32 v{NB}, v{M}
        s_nop 1
        v_max_f32 v{M}, v{M}, v{NB}
        """)
        for r in range(16): a(f"v_mov_b32 v{O+r}, 0")
        for r in range(4): a(f"v_mov_b32 v{Ls+r}, 0")
        a(f"""
        s_mov_b32 s{S_U0}, 1
        s_branch L_sp{U}
        L_sx{U}:
        s_setpc_b64 s[{S_RET}:{S_RET+1}]
        """)
    a("L_codeend:")
    hdr = open("concat_heads__sliding_block__sliding_block__prompt.s.ref").read().split("; Override launch")[0]
    head = hdr + f"""; @launch grid=(256,1,1) block=(512,1,1) lds={LDS_BYTES}
;
; Generated by a Python script of my own (dev/gen.py); one fused kernel, 256 workgroups x 8 waves, one per CU.
; Workgroup = (problem p, 256-token chunk c, head pair hp).
;  phase 1  QKV GEMM, tile 256 x 192 (q,k,v of two heads), K = 1024.  Waves 0-3 compute (128 x 96 each, 16x16x32 MFMA),
;           waves 4-7 stage x / wqkv tiles into LDS (LDS-DMA ring).  The last three k-blocks run K,V columns first so the
;           K/V fragments can be published (write-through stores + per-wave flag) while the Q columns finish.
;  phase 2  sliding-window attention on 32-query units (32x32x16 MFMA, S^T layout).  K/V of the previous chunk come from
;           the neighbour workgroup through d_ws.  Softmax: p = 2^(s*log2e/sqrt(d)) is first formed against a zero shift;
;           every row sum is range-checked at run time (2^-60 <= sum <= 2^60) and any unit with a row outside that range
;           is recomputed by L_slowA/L_slowB with the exact row maximum subtracted (shift invariance is exact otherwise).
;  phase 3  output projection, 256 x 64 per workgroup in two 128-row halves, split-K over wave pairs.
; Hand-offs between workgroups use write-through (sc1) stores, s_waitcnt, then an 8-byte flag holding this launch's
; epoch (old epoch word in d_ws + 1; the last workgroup, counted in d_debug, stores the new value); consumers poll with
; sc1 loads (bounded spins).  Nothing depends on workgroup placement except cache-locality choices.
.amdgcn_target "amdgcn-amd-amdhsa--gfx950"
.text
.globl {name}
.p2align 8
.type {name},@function
{name}:
"""
    tail = f"""
.section .rodata,"a"
.p2align 6
.amdhsa_kernel {name}
  .amdhsa_next_free_vgpr 256
  .amdhsa_next_free_sgpr 102
  .amdhsa_accum_offset 256
  .amdhsa_group_segment_fixed_size 0
  .amdhsa_kernarg_size 72
  .amdhsa_user_sgpr_count 2
  .amdhsa_user_sgpr_kernarg_segment_ptr 1
  .amdhsa_system_sgpr_workgroup_id_x 1
.end_amdhsa_kernel
"""
    def relayout(t):
        if not opts.get("lfirst", 1): return t
        i0 = t.index("L_loader:\n"); i1 = t.index("L_attn:\n")
        blk = t[i0:i1]
        t = t[:i0] + t[i1:]
        br = f"    s_cmp_ge_u32 s{S_WID}, 4\n    s_cbranch_scc1 L_loader\n"
        assert br in t
        t = t.replace(br, f"    s_cmp_lt_u32 s{S_WID}, 4\n    s_cbranch_scc1 L_compute\n" + blk + "    s_branch L_attn\nL_compute:\n")
        return t.replace("    s_branch L_attn\nL_attn:\n", "L_attn:\n")
    return head + relayout(a.text()).replace("CODE_END_BYTES", "(L_codeend - L_pcref)") + tail

if __name__ == "__main__":
    stamps = "--stamps" in sys.argv
    opts = {}
    for x in sys.argv[2:]:
        if "=" in x:
            k, v = x.split("="); opts[k] = int(v)
    open(sys.argv[1], "w").write(gen(stamps, opts=opts))
```
